```python
import torch

def _softmax(x, axis=-1):
    return torch.softmax(x, dim=axis)

def _gelu(x):
    return torch.nn.functional.gelu(x, approximate='tanh')

def _silu(x):
    return torch.nn.functional.silu(x)

def _sigmoid(x):
    return torch.sigmoid(x)

def _layernorm(x, axis=-1, eps=1e-05):
    m = x.mean(dim=axis, keepdim=True)
    v = x.var(dim=axis, keepdim=True, unbiased=False)
    return (x - m) / torch.sqrt(v + eps)

def _scatter_add(tgt, idx, src, axis=0):
    return tgt.clone().index_add_(axis, idx, src)

def _segment_sum(src, seg, n):
    out = torch.zeros((n,) + src.shape[1:], dtype=src.dtype)
    return out.index_add_(0, seg, src)

def _pad(x, pw):
    flat = tuple((v for pair in reversed(pw) for v in pair))
    return torch.nn.functional.pad(x, flat)
kernel_name = 'adaLN_cond__sliding_local_dilated__glu_gated_swiglu__prompt'

def setup_inputs():

    _w = lambda a: (lambda t: t.to(torch.bfloat16) if t.is_floating_point() else t)(torch.as_tensor(a))

    def _A_setup():
        B, S, D = (1, 2048, 512)
        return {'x': _w((lambda *s: torch.randn(*s, dtype=torch.bfloat16) * 0.05)(B, S, D)), 'wqkv': _w((lambda *s: torch.randn(*s, dtype=torch.bfloat16) * 0.1)(D, 3 * D)), 'wo': _w((lambda *s: torch.randn(*s, dtype=torch.bfloat16) * 0.1)(D, D))}
    _A_in = _A_setup()

    def _B_setup():
        B, S, D, F = (1, 2048, 512, 1376)
        return {'x': _w((lambda *s: torch.randn(*s, dtype=torch.bfloat16) * 0.05)(B, S, D)), 'w1': _w((lambda *s: torch.randn(*s, dtype=torch.bfloat16) * 1.6)(D, F) * (2.0 / D) ** 0.5), 'w3': _w((lambda *s: torch.randn(*s, dtype=torch.bfloat16) * 1.6)(D, F) * (2.0 / D) ** 0.5), 'w2': _w((lambda *s: torch.randn(*s, dtype=torch.bfloat16) * 1.6)(F, D) * (2.0 / F) ** 0.5)}
    _B_in = _B_setup()
    return {'A_x': _A_in['x'], 'A_wqkv': _A_in['wqkv'], 'A_wo': _A_in['wo'], 'B_x': _B_in['x'], 'B_w1': _B_in['w1'], 'B_w3': _B_in['w3'], 'B_w2': _B_in['w2'], 'c': _w((lambda *s: torch.randn(*s, dtype=torch.bfloat16) * 0.2)(1, 512) * 8.0), 'w_mod': _w((lambda *s: torch.randn(*s, dtype=torch.bfloat16) * 0.2)(512, 6 * 512) * 512 ** (-0.5) * 8.0)}

def reference(A_x, A_wqkv, A_wo, B_x, B_w1, B_w3, B_w2, c, w_mod):

    def _A_ref(x, wqkv, wo):
        B, S, D = x.shape
        H = 32
        Dh = D // H
        W, dil = (8, 2)
        qkv = (lambda x, *d: x.permute(*d))((x @ wqkv).reshape(B, S, 3, H, Dh), 2, 0, 3, 1, 4)
        q, k, v = (qkv[0], qkv[1], qkv[2])
        scale = Dh ** (-0.5)
        pos = torch.arange(S)
        off = torch.arange(W) * dil
        idx = pos[:, None] - off[None, :]
        mask = idx >= 0
        idx_c = torch.where(mask, idx, 0).reshape(-1)
        kg = k[:, :, idx_c, :].reshape(B, H, S, W, Dh)
        vg = v[:, :, idx_c, :].reshape(B, H, S, W, Dh)
        logits = torch.einsum('bhsd,bhswd->bhsw', q, kg) * scale
        logits = torch.where(mask[None, None, :, :], logits, -1000000000.0)
        attn = _softmax(logits, axis=-1)
        o = torch.einsum('bhsw,bhswd->bhsd', attn, vg)
        return (lambda x, *d: x.permute(*d))(o, 0, 2, 1, 3).reshape(B, S, D) @ wo

    def _B_ref(x, w1, w3, w2):
        gate = torch.einsum('bsd,df->bsf', x, w1)
        up = torch.einsum('bsd,df->bsf', x, w3)
        h = _silu(gate) * up
        out = torch.einsum('bsf,fd->bsd', h, w2)
        return out
    x = A_x
    mod = (_silu(c) @ w_mod).reshape(c.shape[0], 6, 1, -1)
    sa, ca, ga, sb, cb, gb = (mod[:, 0].clone(), mod[:, 1].clone(), mod[:, 2].clone(), mod[:, 3].clone(), mod[:, 4].clone(), mod[:, 5].clone())
    h = _layernorm(x, axis=-1) * (1 + ca) + sa
    x = x + ga * _A_ref(h, A_wqkv, A_wo)
    h = _layernorm(x, axis=-1) * (1 + cb) + sb
    x = x + gb * _B_ref(h, B_w1, B_w3, B_w2)
    return x
```

```python
import re

REG_RE = re.compile(r'\b([vas])\[(\d+):(\d+)\]|\b([vas])(\d+)\b|\b(vcc|exec|m0|scc)\b')

def regs_of(tok):
    out = []
    for m in REG_RE.finditer(tok):
        if m.group(1):
            out += [(m.group(1), i) for i in range(int(m.group(2)), int(m.group(3)) + 1)]
        elif m.group(4):
            out.append((m.group(4), int(m.group(5))))
        else:
            out.append((m.group(6), 0))
    return out

TRANS = ('v_exp_', 'v_log_', 'v_rcp_', 'v_rsq_', 'v_sqrt_', 'v_sin_', 'v_cos_')

class Ins:
    def __init__(self, text):
        self.text = text
        t = text.split(';')[0].strip()
        parts = t.split(None, 1)
        self.mn = parts[0]
        rest = parts[1] if len(parts) > 1 else ''
        ops, depth, cur = [], 0, ''
        for ch in rest:
            if ch == '[': depth += 1
            if ch == ']': depth -= 1
            if ch == ',' and depth == 0:
                ops.append(cur.strip()); cur = ''
            else:
                cur += ch
        if cur.strip(): ops.append(cur.strip())
        self.ops = ops
        mn = self.mn
        self.is_mfma = mn.startswith('v_mfma')
        self.is_valu = mn.startswith('v_') and not self.is_mfma
        self.is_salu = mn.startswith('s_')
        self.is_vmem = mn.startswith(('buffer_', 'global_', 'flat_'))
        self.is_ds = mn.startswith('ds_')
        self.is_trans = mn.startswith(TRANS)
        self.is_lds_dma = self.is_vmem and re.search(r'\blds\b', rest) is not None
        self.dst, self.src = [], []
        self.srcC = []
        self.srcAB = []
        def opregs(o):
            o = re.sub(r'\b(op_sel|op_sel_hi|neg_lo|neg_hi):\[[^\]]*\]', '', o)
            o = re.sub(r'\b(offset\d?|row_\w+|quad_perm|bank_mask|row_mask|bound_ctrl):\S+', '', o)
            return regs_of(o)
        if self.is_mfma:
            self.dst = opregs(ops[0]); self.srcAB = opregs(ops[1]) + opregs(ops[2]); self.srcC = opregs(ops[3])
            self.src = self.srcAB + self.srcC
            self.passes = 8 if '32x32x16' in mn else 4 if '16x16x32' in mn else 16
        elif self.is_vmem:
            if 'store' in mn or self.is_lds_dma or ('atomic' in mn and 'sc0' not in rest):
                for o in ops: self.src += opregs(o)
                if self.is_lds_dma: self.src.append(('m0', 0))
                self.store_data = opregs(ops[0]) if ('store' in mn and mn.startswith('buffer_')) else (opregs(ops[1]) if 'store' in mn else [])
            else:
                self.dst = opregs(ops[0])
                for o in ops[1:]: self.src += opregs(o)
        elif self.is_ds:
            if mn.startswith(('ds_read', 'ds_bpermute', 'ds_permute', 'ds_swizzle')):
                self.dst = opregs(ops[0])
                for o in ops[1:]: self.src += opregs(o)
            else:
                for o in ops: self.src += opregs(o)
        elif self.is_valu:
            if mn.startswith('v_permlane') and 'swap' in mn:
                self.dst = opregs(ops[0]) + opregs(ops[1]); self.src = list(self.dst)
            else:
                self.dst = opregs(ops[0])
                k = 1
                if mn.startswith(('v_add_co', 'v_sub_co', 'v_addc_co', 'v_subb_co', 'v_div_scale', 'v_mad_u64')):
                    self.dst += opregs(ops[1]); k = 2
                for o in ops[k:]: self.src += opregs(o)
                if mn.startswith(('v_fmac', 'v_dot2c', 'v_pk_fmac', 'v_writelane')):
                    self.src += self.dst
                if mn.startswith('v_cmp') and not self.dst: self.dst = [('vcc', 0)]
        elif self.is_salu:
            if mn.startswith(('s_cmp', 's_cbranch', 's_branch', 's_waitcnt', 's_barrier', 's_nop', 's_endpgm', 's_sleep', 's_setprio')):
                for o in ops: self.src += opregs(o)
            else:
                if ops: self.dst = opregs(ops[0])
                for o in ops[1:]: self.src += opregs(o)
        self.wide_store = self.is_vmem and 'store' in mn and ('x4' in mn or 'x3' in mn)
    def states(self):
        if self.mn == 's_nop': return int(self.ops[0], 0) + 1
        return 1

def need(p, c):
    n = 0
    pd, cs, cd = set(p.dst), set(c.src), set(c.dst)
    tab = {2: 0, 4: 1, 8: 2, 16: 3}
    if p.is_valu:
        vd = {r for r in pd if r[0] in 'va'}
        sd = {r for r in pd if r[0] in ('s', 'vcc')}
        if c.is_mfma and vd & cs: n = max(n, 2)
        if p.is_trans and c.is_valu and not c.is_trans and vd & cs: n = max(n, 1)
        if p.is_trans and (c.is_mfma) and vd & cs: n = max(n, 2)
        if c.mn.startswith('v_permlane') and vd & cs: n = max(n, 2)
        if c.mn.startswith(('v_readlane', 'v_readfirstlane')) and vd & cs: n = max(n, 1)
        if c.is_valu and ('row_' in c.text or 'quad_perm' in c.text or 'dpp' in c.mn) and vd & cs: n = max(n, 2)
        if sd:
            if c.is_valu and sd & cs: n = max(n, 4 if c.mn.startswith(('v_readlane', 'v_writelane')) else 2)
            if c.is_valu and c.mn.startswith(('v_cndmask', 'v_addc', 'v_subb')) and ('vcc', 0) in sd: n = max(n, 2)
            if c.is_vmem and sd & cs: n = max(n, 5)
            if c.is_salu and sd & cs: n = max(n, 1)
    if p.is_mfma:
        i = tab[p.passes]
        if c.is_mfma:
            if pd & set(c.srcAB): n = max(n, [5, 8, 12, 20][i])
            if pd & set(c.srcC):
                if c.srcC == p.dst and c.passes == p.passes: n = max(n, [2, 0, 0, 0][i])
                else: n = max(n, [4, 6, 10, 18][i])
            elif pd & cd: n = max(n, [4, 6, 10, 18][i])
        elif (c.is_valu or c.is_vmem or c.is_ds) and (pd & (cs | cd)): n = max(n, [5, 8, 12, 20][i])
        if (c.is_valu) and set(p.srcC) & cd: n = max(n, [1, 3, 7, 15][i])
        if (c.is_vmem or c.is_ds) and set(p.srcC) & cd: n = max(n, [1, 3, 7, 15][i])
    if p.is_salu and ('m0', 0) in pd and (c.is_lds_dma): n = max(n, 1)
    if p.wide_store and set(p.store_data) & cd: n = max(n, 2 if c.is_valu else 1)
    return n

class Asm:
    def __init__(self):
        self.items = []
    def I(self, s):
        for line in s.strip().split('\n'):
            line = line.strip()
            if not line: continue
            if line.startswith(';') or line.startswith('.') or line.endswith(':'):
                self.items.append(('t', line))
            else:
                self.items.append(('i', Ins(line)))
    def T(self, s): self.items.append(('t', s))
    def render(self):
        out = []
        hist = []
        pos = 0
        for kind, it in self.items:
            if kind == 't':
                out.append(it)
                continue
            req = 0
            for (p, ppos) in hist:
                gap = pos - ppos
                nd = need(p, it)
                if nd > gap: req = max(req, nd - gap)
            while req > 0:
                k = min(req, 16)
                out.append(f'  s_nop {k-1}')
                pos += k; req -= k
            out.append('  ' + it.text)
            pos += it.states()
            hist.append((it, pos))
            hist = [(p, q) for (p, q) in hist if pos - q < 24]
        return '\n'.join(out) + '\n'
```

```python
import sys
sys.path.insert(0, 'work')
from asmlib import Asm

NAME = "adaLN_cond__sliding_local_dilated__glu_gated_swiglu__prompt"
A_X, A_WQKV, A_WO, A_BX, A_W1, A_W3, A_W2, A_C, A_WMOD, A_OUT, A_DBG, A_WS = [8*i for i in range(12)]
MODP = 0
MODF = 0x10000
UT   = 0x14000
XN   = 0x100000
WQ   = 0x300000
OO   = 0x500000
WO   = 0x700000
X1   = 0x800000
W13  = 0xA00000
HH   = 0xD00000
W2   = 0x1300000
WS_BYTES = 0x2000000
LOG2E = 0x3fb8aa3b

def srd(a, d, b, nbytes):
    a.I(f"s_mov_b32 s{d}, s{b}\ns_and_b32 s{d+1}, s{b+1}, 0xffff\ns_mov_b32 s{d+2}, {nbytes}\ns_mov_b32 s{d+3}, 0x00020000")

def header(a, name):
    a.T(f".globl {name}\n.p2align 8\n.type {name},@function\n{name}:")

def desc(name, vgpr, agpr=0, sgpr=96):
    acc = (vgpr + 3) // 4 * 4
    return f""".p2align 6
.amdhsa_kernel {name}
  .amdhsa_next_free_vgpr {acc + agpr if agpr else vgpr}
  .amdhsa_next_free_sgpr {sgpr}
  .amdhsa_accum_offset {acc}
  .amdhsa_group_segment_fixed_size 0
  .amdhsa_kernarg_size 96
  .amdhsa_user_sgpr_count 2
  .amdhsa_user_sgpr_kernarg_segment_ptr 1
  .amdhsa_system_sgpr_workgroup_id_x 1
.end_amdhsa_kernel
"""

def round_bf16(a, dst, src):
    a.I(f"v_cvt_pk_bf16_f32 v{dst}, v{src}, v{src}\nv_lshlrev_b32 v{dst}, 16, v{dst}")

def transpose8x8(a, R, D, s_lo, s_hi):
    for c in range(4):
        for e in range(2):
            n = 2*c + e
            for jj in range(4):
                a.I(f"v_perm_b32 v{D+4*n+jj}, v{R+4*(2*jj+1)+c}, v{R+4*(2*jj)+c}, s{s_hi if e else s_lo}")

def gen_k0(a):
    header(a, "k0_kernel")
    a.I(f"""
    s_load_dwordx2 s[4:5], s[0:1], {A_WS}
    s_load_dwordx2 s[6:7], s[0:1], {A_X}
    s_load_dwordx2 s[16:17], s[0:1], {A_WQKV}
    s_load_dwordx2 s[18:19], s[0:1], {A_WO}
    s_load_dwordx2 s[20:21], s[0:1], {A_W2}
    s_load_dwordx2 s[22:23], s[0:1], {A_C}
    s_load_dwordx2 s[24:25], s[0:1], {A_WMOD}
    v_lshrrev_b32 v1, 6, v0
    v_and_b32 v2, 63, v0
    v_readfirstlane_b32 s3, v1
    s_mov_b32 s40, 0x05040100
    s_mov_b32 s41, 0x07060302
    s_waitcnt lgkmcnt(0)
    """)
    srd(a, 8, 4, WS_BYTES)
    a.I("""
    s_cmp_lt_u32 s2, 192
    s_cbranch_scc1 K0_MOD
    s_cmp_lt_u32 s2, 256
    s_cbranch_scc1 K0_XN
    s_cmp_lt_u32 s2, 304
    s_cbranch_scc1 K0_WQ
    s_cmp_lt_u32 s2, 320
    s_cbranch_scc1 K0_WO
    s_cmp_lt_u32 s2, 364
    s_cbranch_scc1 K0_W2
    s_endpgm
    """)
    a.T("K0_MOD:")
    srd(a, 12, 24, 512*3072*2)
    srd(a, 28, 22, 1024)
    a.I(f"""
    s_mov_b32 s32, 0x5555556      ; ceil(2^32/48)
    s_mul_hi_u32 s33, s2, s32
    s_mul_i32 s34, s33, 48
    s_sub_u32 s34, s2, s34        ; cb
    v_lshrrev_b32 v3, 3, v0       ; kg
    v_and_b32 v4, 7, v0           ; cq
    s_lshl_b32 s35, s33, 8
    v_lshlrev_b32 v5, 3, v3
    buffer_load_dwordx2 v[6:7], v5, s[28:31], s35 offen
    s_mul_i32 s36, s33, {128*6144}
    s_lshl_b32 s37, s34, 7
    s_add_u32 s36, s36, s37
    s_mov_b32 s38, {4*6144}
    v_mul_lo_u32 v8, v3, s38
    v_lshl_add_u32 v8, v4, 4, v8
    v_add_u32 v9, 6144, v8
    v_add_u32 v10, {2*6144}, v8
    v_add_u32 v11, {3*6144}, v8
    buffer_load_dwordx4 v[16:19], v8, s[12:15], s36 offen
    buffer_load_dwordx4 v[20:23], v9, s[12:15], s36 offen
    buffer_load_dwordx4 v[24:27], v10, s[12:15], s36 offen
    buffer_load_dwordx4 v[28:31], v11, s[12:15], s36 offen
    s_mov_b32 s39, {LOG2E}
    s_waitcnt vmcnt(4)
    v_lshlrev_b32 v12, 16, v6
    v_and_b32 v13, 0xffff0000, v6
    v_lshlrev_b32 v14, 16, v7
    v_and_b32 v15, 0xffff0000, v7
    """)
    for i in range(4):
        r = 12 + i
        a.I(f"""
        v_mul_f32 v32, s39, v{r}
        v_exp_f32 v32, -v32
        v_add_f32 v32, 1.0, v32
        v_rcp_f32 v32, v32
        v_mul_f32 v{r}, v{r}, v32
        """)
        round_bf16(a, r, r)
    a.I("s_waitcnt vmcnt(0)")
    for i in range(4):
        for c in range(4):
            a.I(f"v_lshlrev_b32 v33, 16, v{16+4*i+c}\nv_and_b32 v34, 0xffff0000, v{16+4*i+c}")
            if i == 0:
                a.I(f"v_mul_f32 v{40+2*c}, v{12+i}, v33\nv_mul_f32 v{41+2*c}, v{12+i}, v34")
            else:
                a.I(f"v_fmac_f32 v{40+2*c}, v{12+i}, v33\nv_fmac_f32 v{41+2*c}, v{12+i}, v34")
    a.I(f"""
    v_lshlrev_b32 v5, 5, v0
    ds_write_b128 v5, v[40:43]
    ds_write_b128 v5, v[44:47] offset:16
    s_waitcnt lgkmcnt(0)
    s_barrier
    s_cmp_lg_u32 s3, 0
    s_cbranch_scc1 K0_END
    v_lshlrev_b32 v5, 2, v0
    """)
    for kg in range(32):
        a.I(f"ds_read_b32 v{16+kg}, v5 offset:{kg*256}")
    a.I("s_waitcnt lgkmcnt(0)")
    for kg in range(1, 32):
        a.I(f"v_add_f32 v16, v16, v{16+kg}")
    a.I(f"""
    s_mul_i32 s36, s33, {3072*4}
    s_lshl_b32 s37, s34, 8
    s_add_u32 s36, s36, s37
    buffer_store_dword v16, v5, s[8:11], s36 offen offset:{MODP}
    s_endpgm
    """)
    a.T("K0_XN:")
    srd(a, 12, 6, 2048*1024)
    a.I(f"""
    s_sub_u32 s33, s2, 192        ; mb
    v_and_b32 v3, 31, v2          ; m
    v_lshrrev_b32 v4, 5, v2       ; h
    v_lshlrev_b32 v5, 10, v3
    v_lshl_add_u32 v5, v4, 7, v5  ; m*1024 + h*128
    s_lshl_b32 s34, s33, 15
    s_lshl_b32 s35, s3, 8
    s_add_u32 s34, s34, s35
    """)
    for s in range(8):
        a.I(f"buffer_load_dwordx4 v[{16+4*s}:{19+4*s}], v5, s[12:15], s34 offen offset:{16*s}")
    a.I("s_waitcnt vmcnt(0)")
    for d in range(32):
        a.I(f"v_lshlrev_b32 v{64+2*d}, 16, v{16+d}\nv_and_b32 v{65+2*d}, 0xffff0000, v{16+d}")
    def wg_rowsum(src):
        a.I(f"""
        v_mov_b32 v7, v{src}
        v_permlane32_swap_b32 v{src}, v7
        v_add_f32 v{src}, v{src}, v7
        """)
    a.I("v_add_f32 v6, v64, v65")
    for d in range(2, 64):
        a.I(f"v_add_f32 v6, v6, v{64+d}")
    wg_rowsum(6)
    a.I(f"""
    v_lshlrev_b32 v8, 2, v3       ; m*4
    s_lshl_b32 s35, s3, 7
    v_add_u32 v9, s35, v8
    ds_write_b32 v9, v6
    s_waitcnt lgkmcnt(0)
    s_barrier
    ds_read_b32 v10, v8
    ds_read_b32 v11, v8 offset:128
    ds_read_b32 v12, v8 offset:256
    ds_read_b32 v13, v8 offset:384
    s_waitcnt lgkmcnt(0)
    v_add_f32 v10, v10, v11
    v_add_f32 v12, v12, v13
    v_add_f32 v10, v10, v12
    v_mul_f32 v14, 0x3b000000, v10      ; mean (f32)
    """)
    a.I("v_sub_f32 v7, v64, v14\nv_mul_f32 v6, v7, v7")
    for d in range(1, 64):
        a.I(f"v_sub_f32 v7, v{64+d}, v14\nv_fmac_f32 v6, v7, v7")
    wg_rowsum(6)
    a.I(f"""
    ds_write_b32 v9, v6 offset:512
    s_waitcnt lgkmcnt(0)
    s_barrier
    ds_read_b32 v10, v8 offset:512
    ds_read_b32 v11, v8 offset:640
    ds_read_b32 v12, v8 offset:768
    ds_read_b32 v13, v8 offset:896
    s_waitcnt lgkmcnt(0)
    v_add_f32 v10, v10, v11
    v_add_f32 v12, v12, v13
    v_add_f32 v10, v10, v12
    v_mul_f32 v15, 0x3b000000, v10      ; var
    """)
    round_bf16(a, 14, 14)
    round_bf16(a, 15, 15)
    a.I("v_add_f32 v15, 0x3727c5ac, v15")
    round_bf16(a, 15, 15)
    a.I("v_sqrt_f32 v15, v15")
    round_bf16(a, 15, 15)
    a.I("v_rcp_f32 v15, v15")
    for d in range(32):
        lo, hi = 64+2*d, 65+2*d
        a.I(f"""
        v_sub_f32 v{lo}, v{lo}, v14
        v_sub_f32 v{hi}, v{hi}, v14
        v_cvt_pk_bf16_f32 v6, v{lo}, v{hi}
        v_lshlrev_b32 v{lo}, 16, v6
        v_and_b32 v{hi}, 0xffff0000, v6
        v_mul_f32 v{lo}, v{lo}, v15
        v_mul_f32 v{hi}, v{hi}, v15
        v_cvt_pk_bf16_f32 v{16+d}, v{lo}, v{hi}
        """)
    a.I(f"""
    v_lshlrev_b32 v5, 4, v2
    s_lshl_b32 s34, s33, 15
    s_lshl_b32 s35, s3, 13
    s_add_u32 s34, s34, s35
    s_add_u32 s34, s34, {XN}
    """)
    for s in range(8):
        if s % 4 == 0 and s: a.I("s_add_u32 s34, s34, 4096")
        a.I(f"buffer_store_dwordx4 v[{16+4*s}:{19+4*s}], v5, s[8:11], s34 offen offset:{1024*(s%4)}")
    a.I("s_endpgm")
    a.T("K0_WQ:")
    srd(a, 12, 16, 512*3072)
    a.I(f"""
    s_sub_u32 s33, s2, 256
    s_lshl_b32 s33, s33, 2
    s_add_u32 s33, s33, s3        ; u
    s_mov_b32 s32, 0xaaaaaab      ; ceil(2^32/24)
    s_mul_hi_u32 s34, s33, s32    ; kh = u/24
    s_mul_i32 s35, s34, 24
    s_sub_u32 s35, s33, s35       ; np
    v_lshrrev_b32 v3, 3, v2       ; s
    v_and_b32 v4, 7, v2           ; nq
    s_mov_b32 s38, {8*3072}
    v_mul_lo_u32 v5, v3, s38
    v_lshl_add_u32 v5, v4, 4, v5
    s_mul_i32 s36, s34, {64*3072}
    s_lshl_b32 s37, s35, 7
    s_add_u32 s36, s36, s37
    """)
    for j in range(8):
        a.I(f"buffer_load_dwordx4 v[{16+4*j}:{19+4*j}], v5, s[12:15], s36 offen")
        if j < 7: a.I("s_add_u32 s36, s36, 3072")
    a.I(f"""
    s_and_b32 s36, s35, 7
    s_mul_i32 s36, s36, {2*98304}
    s_lshr_b32 s37, s35, 3        ; type
    s_lshl_b32 s37, s37, 10
    s_add_u32 s36, s36, s37
    s_lshr_b32 s37, s34, 1        ; kq
    s_mul_i32 s37, s37, {8*3072}
    s_add_u32 s36, s36, s37
    s_and_b32 s37, s34, 1         ; h
    s_lshl_b32 s37, s37, 9
    s_add_u32 s36, s36, s37
    s_add_u32 s36, s36, {WQ}
    v_lshrrev_b32 v6, 2, v4
    s_mov_b32 s38, 98304
    v_mul_lo_u32 v6, v6, s38
    s_mov_b32 s38, 3072
    v_mul_lo_u32 v7, v3, s38
    v_add_u32 v6, v6, v7
    v_and_b32 v7, 3, v4
    v_lshl_add_u32 v6, v7, 7, v6
    s_waitcnt vmcnt(0)
    """)
    transpose8x8(a, 16, 64, 40, 41)
    for i in range(8):
        a.I(f"buffer_store_dwordx4 v[{64+4*i}:{67+4*i}], v6, s[8:11], s36 offen offset:{16*i}")
    a.I("s_endpgm")
    def relayout_chained(label, base_id, sptr, nbytes, nkb, tmax, dst, ct_stride):
        a.T(label + ":")
        srd(a, 12, sptr, nbytes)
        a.I(f"""
        s_sub_u32 s33, s2, {base_id}
        s_lshl_b32 s33, s33, 2
        s_add_u32 s33, s33, s3        ; u
        s_and_b32 s35, s33, 7
        s_lshr_b32 s34, s33, 3        ; kb
        v_lshrrev_b32 v3, 4, v2       ; tt
        v_bfe_u32 v8, v2, 3, 1        ; h
        v_and_b32 v4, 7, v2           ; nq
        v_lshlrev_b32 v5, 14, v3
        v_lshl_add_u32 v5, v8, 12, v5 ; + h*4*1024
        v_lshl_add_u32 v5, v4, 4, v5
        v_add_u32 v9, 8192, v5
        s_lshl_b32 s36, s34, 16
        s_lshl_b32 s37, s35, 7
        s_add_u32 s36, s36, s37
        """)
        for j in range(8):
            a.I(f"buffer_load_dwordx4 v[{16+4*j}:{19+4*j}], v{5 if j < 4 else 9}, s[12:15], s36 offen offset:{1024*(j%4)}")
        a.I(f"""
        s_mul_i32 s36, s35, {2*ct_stride}
        s_lshl_b32 s37, s34, 12
        s_add_u32 s36, s36, s37
        s_add_u32 s36, s36, {dst}
        v_lshrrev_b32 v6, 2, v4
        s_mov_b32 s38, {ct_stride}
        v_mul_lo_u32 v6, v6, s38
        v_lshl_add_u32 v6, v3, 10, v6
        v_lshl_add_u32 v6, v8, 9, v6
        v_and_b32 v7, 3, v4
        v_lshl_add_u32 v6, v7, 7, v6
        s_lshl_b32 s37, s34, 2
        v_add_u32 v7, s37, v3         ; t
        v_cmp_gt_u32 vcc, {tmax}, v7
        v_mov_b32 v7, 0x7ff00000
        v_cndmask_b32 v6, v7, v6, vcc
        s_waitcnt vmcnt(0)
        """)
        transpose8x8(a, 16, 64, 40, 41)
        for i in range(8):
            a.I(f"buffer_store_dwordx4 v[{64+4*i}:{67+4*i}], v6, s[8:11], s36 offen offset:{16*i}")
        a.I("s_endpgm")
    relayout_chained("K0_WO", 304, 18, 512*1024, 8, 32, WO, 32768)
    relayout_chained("K0_W2", 320, 20, 1376*1024, 22, 86, W2, 88064)
    a.T("K0_END:")
    a.I("s_endpgm")

def wg_map(a):
    a.I("""
    s_and_b32 s33, s2, 7
    s_lshl_b32 s33, s33, 1
    s_bfe_u32 s34, s2, 0x10003
    s_add_u32 s33, s33, s34
    s_lshr_b32 s34, s2, 4
    """)

def gen_k1(a):
    WT, TAB, KT, VT, HP = 0, 98304, 102400, 111616, 130048
    header(a, "k1_kernel")
    a.I(f"""
    s_cmp_ge_u32 s2, 256
    s_cbranch_scc1 K1_END
    s_load_dwordx2 s[4:5], s[0:1], {A_WS}
    v_lshrrev_b32 v1, 6, v0
    v_and_b32 v2, 63, v0
    v_readfirstlane_b32 s3, v1
    """)
    wg_map(a)
    a.I("s_waitcnt lgkmcnt(0)")
    srd(a, 8, 4, WS_BYTES)
    XB = 128
    HB = 112
    a.I("v_lshlrev_b32 v3, 3, v0")
    for ks in range(4):
        a.I(f"s_mov_b32 s35, {MODP + ks*12288}")
        a.I(f"buffer_load_dwordx2 v[{16+2*ks}:{17+2*ks}], v3, s[8:11], s35 offen")
        a.I(f"buffer_load_dwordx2 v[{24+2*ks}:{25+2*ks}], v3, s[8:11], s35 offen offset:2048")
    a.I(f"""
    v_and_b32 v4, 15, v2
    v_lshrrev_b32 v5, 4, v2         ; g
    v_lshrrev_b32 v6, 1, v5
    v_and_b32 v7, 1, v5
    v_lshlrev_b32 v6, 10, v6
    v_lshl_add_u32 v6, v7, 9, v6
    v_lshl_add_u32 v6, v4, 4, v6
    v_add_u32 v6, 256, v6
    s_lshl_b32 s36, s33, 2          ; mb0
    s_sub_u32 s37, s36, 1
    s_max_i32 s37, s37, 0
    s_lshl_b32 s37, s37, 15
    s_lshl_b32 s38, s3, 13
    s_add_u32 s37, s37, s38
    s_add_u32 s37, s37, {XN}
    """)
    for i in range(4):
        a.I(f"buffer_load_dwordx4 v[{HB+4*i}:{HB+3+4*i}], v6, s[8:11], s37 offen offset:{2048*(i%2)}")
        if i == 1: a.I("s_add_u32 s37, s37, 4096")
    a.I(f"""
    v_lshlrev_b32 v8, 4, v2         ; lane*16
    s_add_u32 s36, s36, s3          ; mb
    s_lshl_b32 s37, s36, 15
    s_add_u32 s37, s37, {XN}
    s_mul_i32 s38, s34, 98304
    s_add_u32 s38, s38, {WQ}
    s_lshl_b32 s39, s3, 10
    s_add_u32 s38, s38, s39
    s_mov_b32 s40, s39
    """)
    for g in range(8):
        for i in range(4):
            t = 4*g + i
            a.I(f"buffer_load_dwordx4 v[{XB+4*t}:{XB+3+4*t}], v8, s[8:11], s37 offen offset:{1024*i}")
        a.I("s_add_u32 s37, s37, 4096")
        for i in range(3):
            a.I(f"s_mov_b32 m0, s40\nbuffer_load_dwordx4 v8, s[8:11], s38 offen lds\ns_add_u32 s38, s38, 4096\ns_add_u32 s40, s40, 4096")
    a.I("s_waitcnt vmcnt(60)")
    a.I("""
    v_add_f32 v16, v16, v18
    v_add_f32 v17, v17, v19
    v_add_f32 v20, v20, v22
    v_add_f32 v21, v21, v23
    v_add_f32 v16, v16, v20
    v_add_f32 v17, v17, v21
    v_add_f32 v24, v24, v26
    v_add_f32 v25, v25, v27
    v_add_f32 v28, v28, v30
    v_add_f32 v29, v29, v31
    v_add_f32 v24, v24, v28
    v_add_f32 v25, v25, v29
    """)
    for r in (16, 17, 24, 25): round_bf16(a, r, r)
    a.I("v_add_f32 v24, 1.0, v24\nv_add_f32 v25, 1.0, v25")
    for r in (24, 25): round_bf16(a, r, r)
    a.I(f"""
    v_lshrrev_b32 v4, 6, v0         ; k>>7
    v_bfe_u32 v5, v0, 2, 3          ; (k>>3)&7
    v_lshl_add_u32 v4, v4, 3, v5    ; t
    v_bfe_u32 v5, v0, 5, 1          ; h
    v_lshl_add_u32 v4, v4, 1, v5
    v_and_b32 v5, 3, v0             ; j/2
    v_lshlrev_b32 v4, 5, v4
    v_lshl_add_u32 v4, v5, 3, v4
    v_add_u32 v4, {TAB}, v4
    ds_write_b64 v4, v[24:25]
    ds_write_b64 v4, v[16:17] offset:2048
    """)
    a.I(f"""
    s_cmp_ge_u32 s2, 12
    s_cbranch_scc1 K1_NOFIN
    v_lshlrev_b32 v3, 2, v0
    s_lshl_b32 s35, s2, 10
    buffer_load_dword v16, v3, s[8:11], s35 offen
    s_add_u32 s41, s35, 12288
    buffer_load_dword v17, v3, s[8:11], s41 offen
    s_add_u32 s41, s35, 24576
    buffer_load_dword v18, v3, s[8:11], s41 offen
    s_add_u32 s41, s35, 36864
    buffer_load_dword v19, v3, s[8:11], s41 offen
    s_waitcnt vmcnt(0)
    v_add_f32 v16, v16, v17
    v_add_f32 v18, v18, v19
    v_add_f32 v16, v16, v18
    """)
    round_bf16(a, 16, 16)
    a.I("""
    s_lshr_b32 s41, s2, 1
    s_cmp_eq_u32 s41, 1
    s_cselect_b32 s42, 1, 0
    s_cmp_eq_u32 s41, 4
    s_cselect_b32 s42, 1, s42
    s_cmp_eq_u32 s42, 0
    s_cbranch_scc1 K1_FINST
    v_add_f32 v16, 1.0, v16
    """)
    round_bf16(a, 16, 16)
    a.T("K1_FINST:")
    a.I(f"s_add_u32 s35, s35, {MODF}\nbuffer_store_dword v16, v3, s[8:11], s35 offen")
    a.T("K1_NOFIN:")
    for i in range(48): a.I(f"v_accvgpr_write_b32 a{i}, 0")
    a.I(f"""
    v_lshrrev_b32 v4, 5, v2
    v_lshlrev_b32 v10, 5, v4
    v_add_u32 v10, {TAB}, v10
    v_mov_b32 v9, v8
    v_add_u32 v11, 65536, v8
    """)
    def afrag_addr(f):
        off = f*1024
        return ("v9", off) if off < 65536 else ("v11", off-65536)
    AF = 32
    TB = 56
    TMP = 72
    def modulate(base, tb):
        for d in range(4):
            a.I(f"""
            v_lshlrev_b32 v{TMP+2*(d%2)}, 16, v{base+d}
            v_and_b32 v{TMP+1+2*(d%2)}, 0xffff0000, v{base+d}
            v_pk_fma_f32 v[{TMP+2*(d%2)}:{TMP+1+2*(d%2)}], v[{TMP+2*(d%2)}:{TMP+1+2*(d%2)}], v[{tb+2*d}:{tb+1+2*d}], v[{tb+8+2*d}:{tb+9+2*d}]
            v_cvt_pk_bf16_f32 v{base+d}, v{TMP+2*(d%2)}, v{TMP+1+2*(d%2)}
            """)
    for g in range(8):
        rem = 7*(7-g)
        a.I(f"s_waitcnt vmcnt({rem}) lgkmcnt(0)\ns_barrier")
        for i in range(4):
            t = 4*g + i
            a.I(f"""
            ds_read_b128 v[{TB}:{TB+3}], v10 offset:{t*64}
            ds_read_b128 v[{TB+4}:{TB+7}], v10 offset:{t*64+16}
            ds_read_b128 v[{TB+8}:{TB+11}], v10 offset:{2048+t*64}
            ds_read_b128 v[{TB+12}:{TB+15}], v10 offset:{2048+t*64+16}
            """)
            st = AF + 12*(t % 2)
            for ty in range(3):
                r, off = afrag_addr(t*3+ty)
                a.I(f"ds_read_b128 v[{st+4*ty}:{st+4*ty+3}], {r} offset:{off}")
            a.I("s_waitcnt lgkmcnt(3)")
            modulate(XB+4*t, TB)
            a.I("s_waitcnt lgkmcnt(0)")
            for ty in range(3):
                a.I(f"v_mfma_f32_32x32x16_bf16 a[{16*ty}:{16*ty+15}], v[{st+4*ty}:{st+4*ty+3}], v[{XB+4*t}:{XB+4*t+3}], a[{16*ty}:{16*ty+15}]")
    a.I(f"""
    v_lshrrev_b32 v5, 4, v2         ; g
    v_lshlrev_b32 v12, 5, v5
    s_lshl_b32 s35, s3, 9           ; 8w*64
    v_add_u32 v12, s35, v12
    v_add_u32 v12, {TAB}, v12       ; + i*128
    v_lshrrev_b32 v6, 1, v5
    v_mul_u32_u24 v6, 3072, v6
    v_and_b32 v7, 1, v5
    v_lshl_add_u32 v6, v7, 9, v6
    v_and_b32 v4, 15, v2
    v_lshl_add_u32 v6, v4, 4, v6
    s_mul_i32 s35, s3, {8*3072}
    v_add_u32 v13, s35, v6
    """)
    HA = 80
    for i in range(16): a.I(f"v_mov_b32 v{HA+i}, 0")
    for i in range(4):
        a.I(f"""
        ds_read_b128 v[{TB}:{TB+3}], v12 offset:{i*128}
        ds_read_b128 v[{TB+4}:{TB+7}], v12 offset:{i*128+16}
        ds_read_b128 v[{TB+8}:{TB+11}], v12 offset:{2048+i*128}
        ds_read_b128 v[{TB+12}:{TB+15}], v12 offset:{2048+i*128+16}
        """)
        for nb in range(4):
            a.I(f"ds_read_b128 v[{AF+4*nb}:{AF+4*nb+3}], v13 offset:{i*6144 + (1+(nb>>1))*1024 + (nb&1)*256}")
        a.I("s_waitcnt lgkmcnt(4)")
        modulate(HB+4*i, TB)
        a.I("s_waitcnt lgkmcnt(0)")
        for nb in range(4):
            a.I(f"v_mfma_f32_16x16x32_bf16 v[{HA+4*nb}:{HA+4*nb+3}], v[{AF+4*nb}:{AF+4*nb+3}], v[{HB+4*i}:{HB+4*i+3}], v[{HA+4*nb}:{HA+4*nb+3}]")
    a.I(f"""
    s_lshl_b32 s35, s3, 12
    v_add_u32 v14, s35, v8
    v_add_u32 v14, {HP}, v14
    """)
    for nb in range(4):
        a.I(f"ds_write_b128 v14, v[{HA+4*nb}:{HA+4*nb+3}] offset:{nb*1024}")
    for i in range(48): a.I(f"v_accvgpr_read_b32 v{128+i}, a{i}")
    QP = 176
    for d in range(8): a.I(f"v_cvt_pk_bf16_f32 v{QP+d}, v{128+2*d}, v{129+2*d}")
    KP = 184
    for d in range(8): a.I(f"v_cvt_pk_bf16_f32 v{KP+d}, v{144+2*d}, v{145+2*d}")
    for d in range(8):
        a.I(f"v_cvt_pk_bf16_f32 v{TMP}, v{160+2*d}, v{161+2*d}\nv_lshlrev_b32 v{160+2*d}, 16, v{TMP}\nv_and_b32 v{161+2*d}, 0xffff0000, v{TMP}")
    a.I(f"""
    v_and_b32 v3, 31, v2            ; m
    v_lshrrev_b32 v4, 5, v2         ; h
    s_lshl_b32 s35, s3, 5
    v_add_u32 v5, s35, v3
    v_add_u32 v5, 16, v5            ; rr
    v_mul_u32_u24 v6, {144*16}, v4
    v_lshl_add_u32 v15, v5, 4, v6
    v_add_u32 v15, {KT}, v15        ; K addr (e=0), e=1: +2*144*16
    v_mul_u32_u24 v6, {2*144*16}, v4
    v_lshl_add_u32 v7, v5, 4, v6
    v_add_u32 v7, {VT}, v7          ; V addr (e=0,a=0); a: +144*16 ; e: +4*144*16
    ds_write_b128 v15, v[{KP}:{KP+3}]
    ds_write_b128 v15, v[{KP+4}:{KP+7}] offset:{2*144*16}
    ds_write_b128 v7, v[160:163]
    ds_write_b128 v7, v[164:167] offset:{144*16}
    ds_write_b128 v7, v[168:171] offset:{4*144*16}
    ds_write_b128 v7, v[172:175] offset:{5*144*16}
    s_waitcnt lgkmcnt(0)
    s_barrier
    """)
    a.I(f"""
    s_lshl_b32 s35, s3, 10
    v_add_u32 v14, s35, v8
    v_add_u32 v14, {HP}, v14
    ds_read_b128 v[80:83], v14
    ds_read_b128 v[84:87], v14 offset:4096
    ds_read_b128 v[88:91], v14 offset:8192
    ds_read_b128 v[92:95], v14 offset:12288
    s_waitcnt lgkmcnt(0)
    """)
    for r in range(4):
        a.I(f"v_add_f32 v{80+r}, v{80+r}, v{84+r}\nv_add_f32 v{88+r}, v{88+r}, v{92+r}\nv_add_f32 v{80+r}, v{80+r}, v{88+r}")
    a.I(f"""
    v_cvt_pk_bf16_f32 v84, v80, v81
    v_cvt_pk_bf16_f32 v85, v82, v83
    v_and_b32 v3, 15, v2
    v_lshrrev_b32 v4, 4, v2         ; g
    v_and_b32 v5, 1, v4             ; h
    v_lshrrev_b32 v6, 1, v4         ; a
    s_and_b32 s35, s3, 1            ; e
    s_cmp_ge_u32 s3, 2
    s_cbranch_scc1 K1_HV
    s_mul_i32 s35, s35, {2*144*16}
    v_mul_u32_u24 v5, {144*16}, v5
    v_lshl_add_u32 v5, v3, 4, v5
    v_lshl_add_u32 v5, v6, 3, v5
    v_add_u32 v5, s35, v5
    v_add_u32 v5, {KT}, v5
    ds_write_b64 v5, v[84:85]
    s_branch K1_HD
    """)
    a.T("K1_HV:")
    a.I(f"""
    v_lshlrev_b32 v80, 16, v84
    v_and_b32 v81, 0xffff0000, v84
    v_lshlrev_b32 v82, 16, v85
    v_and_b32 v83, 0xffff0000, v85
    s_mul_i32 s35, s35, {4*144*16}
    v_lshl_add_u32 v5, v5, 1, v6
    v_mul_u32_u24 v5, {144*16}, v5
    v_lshl_add_u32 v5, v3, 4, v5
    v_add_u32 v5, s35, v5
    v_add_u32 v5, {VT}, v5
    ds_write_b128 v5, v[80:83]
    """)
    a.T("K1_HD:")
    a.I("s_waitcnt lgkmcnt(0)\ns_barrier")
    a.I("v_subrev_u32 v15, 224, v15\nv_subrev_u32 v7, 224, v7")
    for e in range(2):
        for w in range(8):
            a.I(f"ds_read_b128 v[{16+(e*8+w)*4}:{19+(e*8+w)*4}], v15 offset:{e*2*144*16 + (7-w)*32}")
    LG = 96
    for e in range(2):
        a.I(f"s_waitcnt lgkmcnt({8*(1-e)})")
        for w in range(8):
            kb = 16+(e*8+w)*4
            a.I(f"v_dot2_f32_bf16 v{LG+e*8+w}, v{QP+4*e}, v{kb}, 0")
            for d in range(1, 4):
                a.I(f"v_dot2_f32_bf16 v{LG+e*8+w}, v{QP+4*e+d}, v{kb+d}, v{LG+e*8+w}")
    for e in range(2):
        for w in range(8):
            for aa in range(2):
                r = 128 + ((e*8+w)*2+aa)*4
                if r == QP or (QP <= r < QP+16): pass
                a.I(f"ds_read_b128 v[{r}:{r+3}], v7 offset:{e*4*144*16 + aa*144*16 + (7-w)*32}")
    a.I("s_nop 3")
    for w in range(8):
        a.I(f"v_permlane32_swap_b32 v{LG+w}, v{LG+8+w}\nv_add_f32 v{LG+w}, v{LG+w}, v{LG+8+w}")
    for w in range(8):
        round_bf16(a, LG+w, LG+w)
    a.I(f"""
    v_and_b32 v3, 31, v2
    s_lshl_b32 s35, s36, 5
    v_add_u32 v3, s35, v3
    v_mov_b32 v4, 0xce6e6b28        ; -1e9
    s_mov_b32 s35, {LOG2E}
    """)
    for w in range(8):
        a.I(f"v_mul_f32 v{LG+w}, 0.25, v{LG+w}" if False else f"v_mul_f32 v{LG+w}, 0x3e800000, v{LG+w}")
    for w in range(1, 8):
        a.I(f"v_cmp_le_u32 vcc, {2*w}, v3\nv_cndmask_b32 v{LG+w}, v4, v{LG+w}, vcc")
    a.I(f"v_max3_f32 v5, v{LG}, v{LG+1}, v{LG+2}\nv_max3_f32 v5, v5, v{LG+3}, v{LG+4}\nv_max3_f32 v5, v5, v{LG+5}, v{LG+6}\nv_max_f32 v5, v5, v{LG+7}")
    for w in range(8):
        a.I(f"v_sub_f32 v{LG+w}, v{LG+w}, v5\nv_mul_f32 v{LG+w}, s35, v{LG+w}\nv_exp_f32 v{LG+w}, v{LG+w}")
    a.I(f"v_add_f32 v6, v{LG}, v{LG+1}")
    for w in range(2, 8): a.I(f"v_add_f32 v6, v6, v{LG+w}")
    a.I("v_rcp_f32 v6, v6")
    for w in range(8):
        a.I(f"v_mul_f32 v{LG+w}, v{LG+w}, v6")
        round_bf16(a, LG+w, LG+w)
    for w in range(8):
        a.I(f"v_mov_b32 v{LG+8+w}, v{LG+w}")
    for w in range(8):
        a.I(f"v_permlane32_swap_b32 v{LG+w}, v{LG+8+w}")
    OA = 16
    a.I("s_waitcnt lgkmcnt(0)")
    for e in range(2):
        for w in range(8):
            p = LG + e*8 + w
            pe = p - (p % 2)
            sel = p % 2
            for q in range(4):
                r = 128 + (e*8+w)*8 + 2*q
                if w == 0:
                    a.I(f"v_pk_mul_f32 v[{OA+e*8+2*q}:{OA+e*8+2*q+1}], v[{r}:{r+1}], v[{pe}:{pe+1}] op_sel:[0,{sel}] op_sel_hi:[1,{sel}]")
                else:
                    a.I(f"v_pk_fma_f32 v[{OA+e*8+2*q}:{OA+e*8+2*q+1}], v[{r}:{r+1}], v[{pe}:{pe+1}], v[{OA+e*8+2*q}:{OA+e*8+2*q+1}] op_sel:[0,{sel},0] op_sel_hi:[1,{sel},1]")
    for d in range(8):
        a.I(f"v_cvt_pk_bf16_f32 v{32+d}, v{OA+2*d}, v{OA+2*d+1}")
    a.I(f"""
    s_lshl_b32 s37, s36, 15
    s_lshl_b32 s38, s34, 11
    s_add_u32 s37, s37, s38
    s_add_u32 s37, s37, {OO}
    buffer_store_dwordx4 v[32:35], v8, s[8:11], s37 offen
    buffer_store_dwordx4 v[36:39], v8, s[8:11], s37 offen offset:1024
    """)
    a.T("K1_END:")
    a.I("s_endpgm")

def gen_proj(a, name, nt, act_base, w_base, which):
    header(a, name)
    L = name.upper()
    a.I(f"""
    s_load_dwordx2 s[4:5], s[0:1], {A_WS}
    s_load_dwordx2 s[6:7], s[0:1], {A_X if which == 2 else A_OUT}
    s_load_dwordx2 s[16:17], s[0:1], {A_W1}
    s_load_dwordx2 s[18:19], s[0:1], {A_W3}
    v_lshrrev_b32 v1, 6, v0
    v_and_b32 v2, 63, v0
    v_readfirstlane_b32 s3, v1
    """)
    wg_map(a)
    a.I("s_waitcnt lgkmcnt(0)")
    srd(a, 8, 4, WS_BYTES)
    srd(a, 12, 6, 2048*1024)
    a.I("s_cmp_ge_u32 s2, 256")
    a.I(f"s_cbranch_scc1 {L}_X")
    a.I(f"""
    v_lshlrev_b32 v8, 4, v2
    s_lshl_b32 s36, s33, 2
    s_add_u32 s36, s36, s3          ; mb
    s_mul_i32 s37, s36, {nt*1024}
    s_add_u32 s37, s37, {act_base}
    s_mul_i32 s38, s34, {nt*1024}
    s_add_u32 s38, s38, {w_base}
    s_lshl_b32 s39, s3, 10
    s_add_u32 s38, s38, s39
    s_mov_b32 s40, s39
    v_and_b32 v3, 31, v2
    v_lshrrev_b32 v4, 5, v2
    """)
    sel = 2 if which == 2 else 5
    a.I(f"""
    v_lshlrev_b32 v5, 4, v4
    s_lshl_b32 s41, s34, 7
    s_add_u32 s41, s41, {MODF + sel*2048}
    """)
    for aa in range(4):
        a.I(f"buffer_load_dwordx4 v[{16+4*aa}:{19+4*aa}], v5, s[8:11], s41 offen offset:{32*aa}")
    a.I(f"""
    s_lshl_b32 s41, s36, 15
    s_lshl_b32 s42, s34, 6
    s_add_u32 s41, s41, s42
    v_lshlrev_b32 v6, 10, v3
    v_lshl_add_u32 v6, v4, 3, v6    ; m*1024 + h*8
    """)
    if which == 2:
        for aa in range(4):
            a.I(f"buffer_load_dwordx2 v[{32+2*aa}:{33+2*aa}], v6, s[12:15], s41 offen offset:{16*aa}")
        nres = 4
    else:
        a.I(f"""
        s_lshl_b32 s42, s36, 15
        s_lshl_b32 s43, s34, 11
        s_add_u32 s42, s42, s43
        s_add_u32 s42, s42, {X1}
        buffer_load_dwordx4 v[32:35], v8, s[8:11], s42 offen
        buffer_load_dwordx4 v[36:39], v8, s[8:11], s42 offen offset:1024
        """)
        nres = 2
    nd = (nt + 3) // 4
    for i in range(nd):
        a.I(f"s_mov_b32 m0, s40\nbuffer_load_dwordx4 v8, s[8:11], s38 offen lds\ns_add_u32 s38, s38, 4096\ns_add_u32 s40, s40, 4096")
    NB = 32
    BB = 128
    def bload(t):
        a.I(f"buffer_load_dwordx4 v[{BB+4*(t%NB)}:{BB+4*(t%NB)+3}], v8, s[8:11], s37 offen offset:{1024*(t%4)}")
        if t % 4 == 3: a.I("s_add_u32 s37, s37, 4096")
    npre = min(NB, nt)
    for t in range(npre): bload(t)
    for i in range(16): a.I(f"v_mov_b32 v{48+i}, 0")
    a.I(f"v_add_u32 v9, 65536, v8")
    a.I(f"s_waitcnt vmcnt({min(npre,63)})\ns_barrier")
    issued = npre
    AF = 64
    def aread(t):
        off = t*1024
        r, off = ("v8", off) if off < 65536 else ("v9", off-65536)
        a.I(f"ds_read_b128 v[{AF+4*(t%4)}:{AF+4*(t%4)+3}], {r} offset:{off}")
    for t in range(min(3, nt)): aread(t)
    for t in range(nt):
        if t + 3 < nt: aread(t+3)
        a.I(f"s_waitcnt vmcnt({issued-1-t}) lgkmcnt({min(3, nt-1-t)})")
        a.I(f"v_mfma_f32_32x32x16_bf16 v[48:63], v[{AF+4*(t%4)}:{AF+4*(t%4)+3}], v[{BB+4*(t%NB)}:{BB+4*(t%NB)+3}], v[48:63]")
        if issued < nt and t >= 1:
            bload(issued); issued += 1
    for d in range(8):
        r0, r1 = 48+2*d, 49+2*d
        a.I(f"""
        v_cvt_pk_bf16_f32 v80, v{r0}, v{r1}
        v_lshlrev_b32 v{r0}, 16, v80
        v_and_b32 v{r1}, 0xffff0000, v80
        v_mul_f32 v{r0}, v{r0}, v{16+2*d}
        v_mul_f32 v{r1}, v{r1}, v{17+2*d}
        v_cvt_pk_bf16_f32 v80, v{r0}, v{r1}
        v_lshlrev_b32 v{r0}, 16, v80
        v_and_b32 v{r1}, 0xffff0000, v80
        v_lshlrev_b32 v81, 16, v{32+d}
        v_and_b32 v82, 0xffff0000, v{32+d}
        v_add_f32 v{r0}, v{r0}, v81
        v_add_f32 v{r1}, v{r1}, v82
        v_cvt_pk_bf16_f32 v{84+d}, v{r0}, v{r1}
        """)
    if which == 2:
        a.I(f"""
        s_lshl_b32 s42, s36, 15
        s_lshl_b32 s43, s34, 11
        s_add_u32 s42, s42, s43
        s_add_u32 s42, s42, {X1}
        buffer_store_dwordx4 v[84:87], v8, s[8:11], s42 offen
        buffer_store_dwordx4 v[88:91], v8, s[8:11], s42 offen offset:1024
        """)
    else:
        for aa in range(4):
            a.I(f"buffer_store_dwordx2 v[{84+2*aa}:{85+2*aa}], v6, s[12:15], s41 offen offset:{16*aa}")
    a.I("s_endpgm")
    a.T(f"{L}_X:")
    if which == 2:
        gen_prep13(a)
    a.I("s_endpgm")

def gen_prep13(a):
    a.I(f"""
    s_cmp_ge_u32 s2, 342
    s_cbranch_scc1 PREP_END
    s_sub_u32 s33, s2, 256
    s_cmp_ge_u32 s33, 43
    s_cselect_b32 s34, 1, 0         ; mat
    s_cselect_b32 s16, s18, s16
    s_cselect_b32 s17, s19, s17
    s_mul_i32 s35, s34, 43
    s_sub_u32 s35, s33, s35         ; nb
    """)
    a.I("s_nop 0")
    srd(a, 20, 16, 512*2752)
    a.I(f"""
    v_lshrrev_b32 v3, 3, v2         ; t8
    v_bfe_u32 v4, v2, 2, 1          ; h
    v_and_b32 v5, 3, v2             ; nq
    s_lshl_b32 s36, s3, 3
    v_add_u32 v3, s36, v3           ; t
    v_lshlrev_b32 v6, 4, v3
    v_lshl_add_u32 v6, v4, 2, v6    ; k0 = 16t+4h
    s_mov_b32 s37, 2752
    v_mul_lo_u32 v7, v6, s37
    v_lshl_add_u32 v7, v5, 4, v7
    s_lshl_b32 s38, s35, 6
    """)
    for j in range(8):
        row = (j % 4) + 8*(j // 4)
        a.I(f"v_add_u32 v9, {row*2752}, v7\nbuffer_load_dwordx4 v[{16+4*j}:{19+4*j}], v9, s[20:23], s38 offen")
    a.I(f"""
    v_lshlrev_b32 v9, 2, v6
    s_mov_b32 s39, {MODF + 3*2048}
    buffer_load_dwordx4 v[48:51], v9, s[8:11], s39 offen             ; sb j=0..3
    buffer_load_dwordx4 v[52:55], v9, s[8:11], s39 offen offset:32   ; sb j=4..7
    buffer_load_dwordx4 v[56:59], v9, s[8:11], s39 offen offset:2048 ; c1b
    buffer_load_dwordx4 v[60:63], v9, s[8:11], s39 offen offset:2080
    s_mov_b32 s40, 0x3f803f80
    s_waitcnt vmcnt(0)
    """)
    for c in range(4):
        for e in range(2):
            n = 2*c+e
            for j in range(8):
                src = 16+4*j+c
                a.I(f"v_lshlrev_b32 v{112+j}, 16, v{src}" if e == 0 else f"v_and_b32 v{112+j}, 0xffff0000, v{src}")
            for j in range(8):
                if j == 0: a.I(f"v_mul_f32 v{104+n}, v{48+j}, v{112+j}")
                else: a.I(f"v_fmac_f32 v{104+n}, v{48+j}, v{112+j}")
                a.I(f"v_mul_f32 v{112+j}, v{56+j}, v{112+j}")
            for jj in range(4):
                a.I(f"v_cvt_pk_bf16_f32 v{64+4*n+jj}, v{112+2*jj}, v{113+2*jj}")
            a.I(f"v_dot2_f32_bf16 v{96+n}, v{64+4*n}, s40, 0")
            for jj in range(1, 4):
                a.I(f"v_dot2_f32_bf16 v{96+n}, v{64+4*n+jj}, s40, v{96+n}")
    a.I(f"""
    v_lshlrev_b32 v9, 11, v3
    v_lshl_add_u32 v9, v4, 9, v9
    v_lshl_add_u32 v9, v5, 7, v9
    s_lshl_b32 s38, s35, 16
    s_lshl_b32 s39, s34, 10
    s_add_u32 s38, s38, s39
    s_add_u32 s38, s38, {W13}
    """)
    for i in range(8):
        a.I(f"buffer_store_dwordx4 v[{64+4*i}:{67+4*i}], v9, s[8:11], s38 offen offset:{16*i}")
    a.I(f"""
    v_lshrrev_b32 v9, 2, v0
    v_lshlrev_b32 v9, 8, v9
    v_lshl_add_u32 v9, v5, 5, v9
    s_nop 3
    ds_write_b128 v9, v[96:99]
    ds_write_b128 v9, v[100:103] offset:16
    ds_write_b128 v9, v[104:107] offset:128
    ds_write_b128 v9, v[108:111] offset:144
    s_waitcnt lgkmcnt(0)
    s_barrier
    s_cmp_lg_u32 s3, 0
    s_cbranch_scc1 PREP_END
    v_lshlrev_b32 v9, 2, v0
    """)
    for b in range(4):
        for i in range(16):
            a.I(f"ds_read_b32 v{16+i}, v9 offset:{(b*16+i)*256}")
        a.I("s_waitcnt lgkmcnt(0)")
        for i in range(16):
            if b == 0 and i == 0: a.I("v_mov_b32 v10, v16")
            else: a.I(f"v_add_f32 v10, v10, v{16+i}")
    a.I(f"""
    v_lshrrev_b32 v4, 5, v2
    v_mul_u32_u24 v4, {1408*4}, v4
    v_and_b32 v3, 31, v2
    v_lshl_add_u32 v4, v3, 2, v4
    s_mul_i32 s38, s34, {2*1408*4}
    s_lshl_b32 s39, s35, 7
    s_add_u32 s38, s38, s39
    s_add_u32 s38, s38, {UT}
    buffer_store_dword v10, v4, s[8:11], s38 offen
    """)
    a.T("PREP_END:")

def gen_k3(a):
    header(a, "k3_kernel")
    a.I(f"""
    s_cmp_ge_u32 s2, 240
    s_cbranch_scc1 K3_END
    s_load_dwordx2 s[4:5], s[0:1], {A_WS}
    v_lshrrev_b32 v1, 6, v0
    v_and_b32 v2, 63, v0
    v_readfirstlane_b32 s3, v1
    """)
    wg_map(a)
    a.I("s_waitcnt lgkmcnt(0)")
    srd(a, 8, 4, WS_BYTES)
    XB = 128
    a.I(f"""
    v_lshlrev_b32 v8, 4, v2
    s_lshl_b32 s36, s33, 2
    s_add_u32 s36, s36, s3          ; mb
    s_lshl_b32 s37, s36, 15
    s_add_u32 s37, s37, {X1}
    s_mul_i32 s38, s34, {3*65536}
    s_add_u32 s38, s38, {W13}
    s_lshl_b32 s39, s3, 10
    s_add_u32 s38, s38, s39
    s_mov_b32 s40, s39
    v_lshrrev_b32 v4, 5, v2
    v_add_u32 v9, 65536, v8
    v_add_u32 v10, 131072, v8
    """)
    def dma_chunk():
        for i in range(4):
            a.I(f"s_mov_b32 m0, s40\nbuffer_load_dwordx4 v8, s[8:11], s38 offen lds\ns_add_u32 s38, s38, 4096\ns_add_u32 s40, s40, 4096")
    for g in range(4):
        for i in range(8):
            t = 8*g+i
            a.I(f"buffer_load_dwordx4 v[{XB+4*t}:{XB+4*t+3}], v8, s[8:11], s37 offen offset:{1024*(i%4)}")
            if i % 4 == 3: a.I("s_add_u32 s37, s37, 4096")
        dma_chunk()
    for g in range(4, 10): dma_chunk()
    def lds_addr(f):
        off = f*1024
        if off < 65536: return "v8", off
        if off < 131072: return "v9", off-65536
        return "v10", off-131072
    AF = 32
    ACC = 64
    a.I("v_mov_b32 v11, 0\nv_mov_b32 v12, 0\ns_mov_b32 s41, 0x3f803f80")
    outstanding = 72
    for p in range(3):
        if p == 1:
            a.I("s_cmp_eq_u32 s34, 14\ns_cbranch_scc1 K3_END")
        for i in range(32): a.I(f"v_mov_b32 v{ACC+i}, 0")
        for g in range(4):
            ch = 4*p + g
            if p == 0:
                done = 12*(g+1)
                rem = 72 - done
            else:
                rem = None
            if p == 0:
                a.I(f"s_waitcnt vmcnt({min(rem,63)})\ns_barrier")
            elif ch <= 9:
                a.I(f"s_waitcnt vmcnt({max(0, 4*(9-ch))})\ns_barrier" if p == 1 and False else "s_waitcnt vmcnt(0)\ns_barrier" if g == 0 else "s_nop 0")
            else:
                a.I("s_waitcnt vmcnt(0)\ns_barrier" if ch == 10 else "s_nop 0")
            if ch == 2:
                a.I("s_mov_b32 s40, s39")
                dma_chunk(); dma_chunk()
            for i in range(8):
                t = 8*g+i
                slot = (ch % 10)*16 + 2*i
                st = AF + 8*(t % 4)
                for mm in range(2):
                    r, off = lds_addr(slot+mm)
                    a.I(f"ds_read_b128 v[{st+4*mm}:{st+4*mm+3}], {r} offset:{off}")
                if p == 0:
                    for d in range(4):
                        a.I(f"v_dot2_f32_bf16 v11, v{XB+4*t+d}, s41, v11\nv_dot2_f32_bf16 v12, v{XB+4*t+d}, v{XB+4*t+d}, v12")
                a.I("s_waitcnt lgkmcnt(0)")
                for mm in range(2):
                    a.I(f"v_mfma_f32_32x32x16_bf16 v[{ACC+16*mm}:{ACC+16*mm+15}], v[{st+4*mm}:{st+4*mm+3}], v[{XB+4*t}:{XB+4*t+3}], v[{ACC+16*mm}:{ACC+16*mm+15}]")
        if p == 0:
            a.I("""
            s_nop 3
            v_mov_b32 v13, v11
            v_mov_b32 v14, v12
            v_permlane32_swap_b32 v11, v13
            v_permlane32_swap_b32 v12, v14
            v_add_f32 v11, v11, v13
            v_add_f32 v12, v12, v14
            v_mul_f32 v13, 0x3b000000, v11
            v_mul_f32 v12, 0x3b000000, v12
            v_fma_f32 v12, -v13, v13, v12
            v_max_f32 v12, 0, v12
            v_add_f32 v12, 0x3727c5ac, v12
            v_rsq_f32 v14, v12
            v_sub_f32 v15, 0, v13
            """)
        a.I(f"""
        v_lshlrev_b32 v5, 4, v4
        s_mul_i32 s42, s34, 384
        s_add_u32 s42, s42, {UT + p*128}
        """)
        for arr in range(4):
            a.I(f"s_add_u32 s43, s42, {arr*1408*4}")
            for aa in range(4):
                a.I(f"buffer_load_dwordx4 v[{96+ (arr%2)*16 + 4*aa}:{99+(arr%2)*16+4*aa}], v5, s[8:11], s43 offen offset:{32*aa}")
            if arr % 2 == 1:
                a.I("s_waitcnt vmcnt(0)")
                mm = arr // 2
                for r in range(16):
                    a.I(f"v_fma_f32 v{ACC+16*mm+r}, v15, v{96+r}, v{ACC+16*mm+r}\nv_fma_f32 v{ACC+16*mm+r}, v{ACC+16*mm+r}, v14, v{112+r}")
        a.I(f"s_mov_b32 s43, {LOG2E}")
        for d in range(8):
            g0, g1, u0, u1 = ACC+2*d, ACC+2*d+1, ACC+16+2*d, ACC+17+2*d
            a.I(f"""
            v_cvt_pk_bf16_f32 v16, v{g0}, v{g1}
            v_cvt_pk_bf16_f32 v17, v{u0}, v{u1}
            v_lshlrev_b32 v{g0}, 16, v16
            v_and_b32 v{g1}, 0xffff0000, v16
            v_lshlrev_b32 v{u0}, 16, v17
            v_and_b32 v{u1}, 0xffff0000, v17
            v_mul_f32 v18, s43, v{g0}
            v_mul_f32 v19, s43, v{g1}
            v_exp_f32 v18, -v18
            v_exp_f32 v19, -v19
            v_add_f32 v18, 1.0, v18
            v_add_f32 v19, 1.0, v19
            v_rcp_f32 v18, v18
            v_rcp_f32 v19, v19
            v_mul_f32 v{g0}, v{g0}, v18
            v_mul_f32 v{g1}, v{g1}, v19
            v_cvt_pk_bf16_f32 v16, v{g0}, v{g1}
            v_lshlrev_b32 v{g0}, 16, v16
            v_and_b32 v{g1}, 0xffff0000, v16
            v_mul_f32 v{g0}, v{g0}, v{u0}
            v_mul_f32 v{g1}, v{g1}, v{u1}
            v_cvt_pk_bf16_f32 v{20+d}, v{g0}, v{g1}
            """)
        a.I(f"""
        s_mul_i32 s42, s36, {86*1024}
        s_mul_i32 s43, s34, {6*1024}
        s_add_u32 s42, s42, s43
        s_add_u32 s42, s42, {HH + p*2048}
        buffer_store_dwordx4 v[20:23], v8, s[8:11], s42 offen
        buffer_store_dwordx4 v[24:27], v8, s[8:11], s42 offen offset:1024
        """)
    a.T("K3_END:")
    a.I("s_endpgm")

def main():
    a = Asm()
    gen_k0(a); gen_k1(a)
    gen_proj(a, "k2_kernel", 32, OO, WO, 2)
    gen_k3(a)
    gen_proj(a, "k4_kernel", 86, HH, W2, 4)
    head = """; generated by work/gen1.py
; @launch kernel=k0_kernel grid=(364,1,1) block=(256,1,1) lds=8192
; @launch kernel=k1_kernel grid=(256,1,1) block=(256,1,1) lds=147456
; @launch kernel=k2_kernel grid=(342,1,1) block=(256,1,1) lds=32768
; @launch kernel=k3_kernel grid=(240,1,1) block=(256,1,1) lds=163840
; @launch kernel=k4_kernel grid=(256,1,1) block=(256,1,1) lds=90112
.amdgcn_target "amdgcn-amd-amdhsa--gfx950"
.text
"""
    tail = '.section .rodata,"a"\n' + desc("k0_kernel", 128) + desc("k1_kernel", 256, 48) + desc("k2_kernel", 256) + desc("k3_kernel", 256) + desc("k4_kernel", 256)
    out = head + a.render() + tail
    path = sys.argv[1] if len(sys.argv) > 1 else f"cdna_kernels/{NAME}.s"
    open(path, "w").write(out)
    print("wrote", path, len(out))
main()
```

```python
import re

REG_RE = re.compile(r'\b([vas])\[(\d+):(\d+)\]|\b([vas])(\d+)\b|\b(vcc|exec|m0|scc)\b')

def regs_of(tok):
    out = []
    for m in REG_RE.finditer(tok):
        if m.group(1):
            out += [(m.group(1), i) for i in range(int(m.group(2)), int(m.group(3)) + 1)]
        elif m.group(4):
            out.append((m.group(4), int(m.group(5))))
        else:
            out.append((m.group(6), 0))
    return out

TRANS = ('v_exp_', 'v_log_', 'v_rcp_', 'v_rsq_', 'v_sqrt_', 'v_sin_', 'v_cos_')

class Ins:
    def __init__(self, text):
        self.text = text
        t = text.split(';')[0].strip()
        parts = t.split(None, 1)
        self.mn = parts[0]
        rest = parts[1] if len(parts) > 1 else ''
        ops, depth, cur = [], 0, ''
        for ch in rest:
            if ch == '[': depth += 1
            if ch == ']': depth -= 1
            if ch == ',' and depth == 0:
                ops.append(cur.strip()); cur = ''
            else:
                cur += ch
        if cur.strip(): ops.append(cur.strip())
        self.ops = ops
        mn = self.mn
        self.is_mfma = mn.startswith('v_mfma')
        self.is_valu = mn.startswith('v_') and not self.is_mfma
        self.is_salu = mn.startswith('s_')
        self.is_vmem = mn.startswith(('buffer_', 'global_', 'flat_'))
        self.is_ds = mn.startswith('ds_')
        self.is_trans = mn.startswith(TRANS)
        self.is_lds_dma = self.is_vmem and re.search(r'\blds\b', rest) is not None
        self.dst, self.src = [], []
        self.srcC = []
        self.srcAB = []
        def opregs(o):
            o = re.sub(r'\b(op_sel|op_sel_hi|neg_lo|neg_hi):\[[^\]]*\]', '', o)
            o = re.sub(r'\b(offset\d?|row_\w+|quad_perm|bank_mask|row_mask|bound_ctrl):\S+', '', o)
            return regs_of(o)
        if self.is_mfma:
            self.dst = opregs(ops[0]); self.srcAB = opregs(ops[1]) + opregs(ops[2]); self.srcC = opregs(ops[3])
            self.src = self.srcAB + self.srcC
            self.passes = 8 if '32x32x16' in mn else 4 if '16x16x32' in mn else 16
        elif self.is_vmem:
            if 'store' in mn or self.is_lds_dma or ('atomic' in mn and 'sc0' not in rest):
                for o in ops: self.src += opregs(o)
                if self.is_lds_dma: self.src.append(('m0', 0))
                self.store_data = opregs(ops[0]) if ('store' in mn and mn.startswith('buffer_')) else (opregs(ops[1]) if 'store' in mn else [])
            else:
                self.dst = opregs(ops[0])
                for o in ops[1:]: self.src += opregs(o)
        elif self.is_ds:
            if mn.startswith(('ds_read', 'ds_bpermute', 'ds_permute', 'ds_swizzle')):
                self.dst = opregs(ops[0])
                for o in ops[1:]: self.src += opregs(o)
            else:
                for o in ops: self.src += opregs(o)
        elif self.is_valu:
            if mn.startswith('v_permlane') and 'swap' in mn:
                self.dst = opregs(ops[0]) + opregs(ops[1]); self.src = list(self.dst)
            else:
                self.dst = opregs(ops[0])
                k = 1
                if mn.startswith(('v_add_co', 'v_sub_co', 'v_addc_co', 'v_subb_co', 'v_div_scale', 'v_mad_u64')):
                    self.dst += opregs(ops[1]); k = 2
                for o in ops[k:]: self.src += opregs(o)
                if mn.startswith(('v_fmac', 'v_dot2c', 'v_pk_fmac', 'v_writelane')):
                    self.src += self.dst
                if mn.startswith('v_cmp') and not self.dst: self.dst = [('vcc', 0)]
        elif self.is_salu:
            if mn.startswith(('s_cmp', 's_cbranch', 's_branch', 's_waitcnt', 's_barrier', 's_nop', 's_endpgm', 's_sleep', 's_setprio')):
                for o in ops: self.src += opregs(o)
            else:
                if ops: self.dst = opregs(ops[0])
                for o in ops[1:]: self.src += opregs(o)
        self.wide_store = self.is_vmem and 'store' in mn and ('x4' in mn or 'x3' in mn)
    def states(self):
        if self.mn == 's_nop': return int(self.ops[0], 0) + 1
        return 1

def n_before_dot(p, c):
    return False

def need(p, c):
    n = 0
    pd, cs, cd = set(p.dst), set(c.src), set(c.dst)
    tab = {2: 0, 4: 1, 8: 2, 16: 3}
    if p.is_valu:
        vd = {r for r in pd if r[0] in 'va'}
        sd = {r for r in pd if r[0] in ('s', 'vcc')}
        if c.is_mfma and vd & cs: n = max(n, 2)
        if p.is_trans and c.is_valu and not c.is_trans and vd & cs: n = max(n, 1)
        if p.is_trans and (c.is_mfma) and vd & cs: n = max(n, 2)
        if c.mn.startswith('v_permlane') and vd & cs: n = max(n, 2)
        if c.mn.startswith(('v_readlane', 'v_readfirstlane')) and vd & cs: n = max(n, 1)
        if c.is_valu and ('row_' in c.text or 'quad_perm' in c.text or 'dpp' in c.mn) and vd & cs: n = max(n, 2)
        if sd:
            if c.is_valu and sd & cs: n = max(n, 4 if c.mn.startswith(('v_readlane', 'v_writelane')) else 2)
            if c.is_valu and c.mn.startswith(('v_cndmask', 'v_addc', 'v_subb')) and ('vcc', 0) in sd: n = max(n, 2)
            if c.is_vmem and sd & cs: n = max(n, 5)
            if c.is_salu and sd & cs: n = max(n, 1)
    if p.mn.startswith('v_dot2') and (pd & (cs | cd)):
        if not (c.mn == p.mn and not (pd & set(c.src[:-1]) if False else False)):
            n = max(n, 3)
        if c.mn == p.mn:
            ab = set(regs_of(c.ops[1]) + regs_of(c.ops[2]))
            n = 3 if (pd & ab) else n if n_before_dot(p, c) else 0
    if p.is_mfma:
        i = tab[p.passes]
        if c.is_mfma:
            if pd & set(c.srcAB): n = max(n, [5, 8, 12, 20][i])
            if pd & set(c.srcC):
                if c.srcC == p.dst and c.passes == p.passes: n = max(n, [2, 0, 0, 0][i])
                else: n = max(n, [4, 6, 10, 18][i])
            elif pd & cd: n = max(n, [4, 6, 10, 18][i])
        elif (c.is_valu or c.is_vmem or c.is_ds) and (pd & (cs | cd)): n = max(n, [5, 8, 12, 20][i])
        if (c.is_valu) and set(p.srcC) & cd: n = max(n, [1, 3, 7, 15][i])
        if (c.is_vmem or c.is_ds) and set(p.srcC) & cd: n = max(n, [1, 3, 7, 15][i])
    if p.is_salu and ('m0', 0) in pd and (c.is_lds_dma): n = max(n, 1)
    if p.wide_store and set(p.store_data) & cd: n = max(n, 2 if c.is_valu else 1)
    return n

class Asm:
    def __init__(self):
        self.items = []
        self.reset()
    def reset(self):
        self.vmq = []; self.dsq = []
    def VM(self, s, tag=None):
        self.I(s); self.vmq.append(tag)
    def DS(self, s, tag=None):
        self.I(s); self.dsq.append(tag)
    def _n(self, q, tags):
        if not isinstance(tags, (list, tuple, set)): tags = [tags]
        last = -1
        for i, t in enumerate(q):
            if t in tags: last = i
        return None if last < 0 else len(q) - 1 - last
    def WAIT(self, vm=None, ds=None):
        parts = []
        if vm is not None:
            n = self._n(self.vmq, vm)
            if n is not None:
                parts.append(f"vmcnt({min(n,63)})")
                if n <= 63: self.vmq = self.vmq[len(self.vmq)-n:] if n else []
        if ds is not None:
            n = self._n(self.dsq, ds)
            if n is not None:
                parts.append(f"lgkmcnt({min(n,15)})")
                if n <= 15: self.dsq = self.dsq[len(self.dsq)-n:] if n else []
        if parts: self.I("s_waitcnt " + " ".join(parts))
    def WAITALL(self, vm=True, ds=True):
        p = []
        if vm: p.append("vmcnt(0)"); self.vmq = []
        if ds: p.append("lgkmcnt(0)"); self.dsq = []
        self.I("s_waitcnt " + " ".join(p))
    def I(self, s):
        for line in s.strip().split('\n'):
            line = line.strip()
            if not line: continue
            if line.startswith(';') or line.startswith('.') or line.endswith(':'):
                self.items.append(('t', line))
            else:
                self.items.append(('i', Ins(line)))
    def T(self, s): self.items.append(('t', s))
    def render(self):
        out = []
        hist = []
        pos = 0
        for kind, it in self.items:
            if kind == 't':
                out.append(it)
                continue
            req = 0
            for (p, ppos) in hist:
                gap = pos - ppos
                nd = need(p, it)
                if nd > gap: req = max(req, nd - gap)
            while req > 0:
                k = min(req, 16)
                out.append(f'  s_nop {k-1}')
                pos += k; req -= k
            out.append('  ' + it.text)
            pos += it.states()
            hist.append((it, pos))
            hist = [(p, q) for (p, q) in hist if pos - q < 24]
        return '\n'.join(out) + '\n'
```

```python
import sys
sys.path.insert(0, 'work')
from asmlib import Asm

NAME = "adaLN_cond__sliding_local_dilated__glu_gated_swiglu__prompt"
A_X, A_WQKV, A_WO, A_BX, A_W1, A_W3, A_W2, A_C, A_WMOD, A_OUT, A_DBG, A_WS = [8*i for i in range(12)]
MODP = 0
MODF = 0x10000
UT   = 0x14000
ST   = 0x40000
XN   = 0x100000
WQ   = 0x300000
OO   = 0x500000
WO   = 0x700000
X1   = 0x800000
W13  = 0xA00000
HH   = 0xD00000
W2   = 0x1300000
WS_BYTES = 0x2000000
LOG2E = 0x3fb8aa3b
PROF = "-p" in sys.argv
PROFB = 0x1800000
def opt(name, default):
    for x in sys.argv:
        if x.startswith(f"-{name}="): return int(x.split("=")[1])
    return default

class Prof:
    def __init__(self, a, kid): self.a, self.kid, self.n = a, kid, 0
    def stamp(self):
        if not PROF: return
        self.a.I(f"s_memrealtime s[{60+2*self.n}:{61+2*self.n}]"); self.a.WAITALL(vm=False)
        self.n += 1
    def flush(self):
        if not PROF: return
        a = self.a
        a.WAITALL()
        a.I(f"s_memrealtime s[{60+2*self.n}:{61+2*self.n}]\ns_waitcnt lgkmcnt(0)")
        a.I(f"s_lshl_b32 s58, s2, 3\ns_add_u32 s58, s58, s3\ns_lshl_b32 s58, s58, 7\ns_add_u32 s58, s58, {PROFB + self.kid*0x80000}\nv_mov_b32 v0, 0")
        for i in range(self.n+1):
            a.I(f"v_mov_b32 v2, s{60+2*i}\nv_mov_b32 v3, s{61+2*i}\nbuffer_store_dwordx2 v[2:3], v0, s[8:11], s58 offen offset:{8*i}")

def srd(a, d, b, nbytes):
    a.I(f"s_mov_b32 s{d}, s{b}\ns_and_b32 s{d+1}, s{b+1}, 0xffff\ns_mov_b32 s{d+2}, {nbytes}\ns_mov_b32 s{d+3}, 0x00020000")
def header(a, name):
    a.T(f".globl {name}\n.p2align 8\n.type {name},@function\n{name}:"); a.reset()
def desc(name, vgpr, agpr=0, sgpr=96):
    acc = (vgpr + 3) // 4 * 4
    return f""".p2align 6
.amdhsa_kernel {name}
  .amdhsa_next_free_vgpr {acc + agpr if agpr else vgpr}
  .amdhsa_next_free_sgpr {sgpr}
  .amdhsa_accum_offset {acc}
  .amdhsa_group_segment_fixed_size 0
  .amdhsa_kernarg_size 96
  .amdhsa_user_sgpr_count 2
  .amdhsa_user_sgpr_kernarg_segment_ptr 1
  .amdhsa_system_sgpr_workgroup_id_x 1
.end_amdhsa_kernel
"""
def round_bf16(a, dst, src):
    a.I(f"v_cvt_pk_bf16_f32 v{dst}, v{src}, v{src}\nv_lshlrev_b32 v{dst}, 16, v{dst}")
def transpose8x8(a, R, D, s_lo, s_hi):
    for c in range(4):
        for e in range(2):
            n = 2*c + e
            for jj in range(4):
                a.I(f"v_perm_b32 v{D+4*n+jj}, v{R+4*(2*jj+1)+c}, v{R+4*(2*jj)+c}, s{s_hi if e else s_lo}")

def chained_addr(a, unit_s, R):
    a.I(f"""
    s_and_b32 s35, s{unit_s}, 7
    s_lshr_b32 s34, s{unit_s}, 3
    v_lshrrev_b32 v3, 4, v2
    v_bfe_u32 v12, v2, 3, 1
    v_and_b32 v4, 7, v2
    v_lshlrev_b32 v5, 14, v3
    v_lshl_add_u32 v5, v12, 12, v5
    v_lshl_add_u32 v5, v4, 4, v5
    v_add_u32 v9, 8192, v5
    s_lshl_b32 s36, s34, 16
    s_lshl_b32 s37, s35, 7
    s_add_u32 s36, s36, s37
    """)
def chained_loads(a, R, sr, tag=None):
    for j in range(8):
        a.VM(f"buffer_load_dwordx4 v[{R+4*j}:{R+3+4*j}], v{5 if j < 4 else 9}, s[{sr}:{sr+3}], s36 offen offset:{1024*(j%4)}", tag)
def chained_dst(a, tmax, dst, ct_stride):
    a.I(f"""
    s_mul_i32 s36, s35, {2*ct_stride}
    s_lshl_b32 s37, s34, 12
    s_add_u32 s36, s36, s37
    s_add_u32 s36, s36, {dst}
    v_lshrrev_b32 v6, 2, v4
    s_mov_b32 s38, {ct_stride}
    v_mul_lo_u32 v6, v6, s38
    v_lshl_add_u32 v6, v3, 10, v6
    v_lshl_add_u32 v6, v12, 9, v6
    v_and_b32 v7, 3, v4
    v_lshl_add_u32 v6, v7, 7, v6
    s_lshl_b32 s37, s34, 2
    v_add_u32 v7, s37, v3
    v_cmp_gt_u32 vcc, {tmax}, v7
    v_mov_b32 v7, 0x7ff00000
    v_cndmask_b32 v6, v7, v6, vcc
    """)

def gen_k0(a):
    header(a, "k0_kernel")
    P = Prof(a, 0); P.stamp()
    a.I(f"""
    s_load_dwordx2 s[6:7], s[0:1], {A_WS}
    s_load_dwordx4 s[16:19], s[0:1], {A_X}
    s_load_dwordx2 s[20:21], s[0:1], {A_WO}
    s_load_dwordx4 s[28:31], s[0:1], {A_C}
    v_lshrrev_b32 v1, 6, v0
    v_and_b32 v2, 63, v0
    v_readfirstlane_b32 s3, v1
    s_mov_b32 s40, 0x05040100
    s_mov_b32 s41, 0x07060302
    s_waitcnt lgkmcnt(0)
    """)
    srd(a, 8, 6, WS_BYTES)
    a.I("""
    s_cmp_lt_u32 s2, 192
    s_cbranch_scc1 K0_MOD
    s_cmp_lt_u32 s2, 256
    s_cbranch_scc1 K0_XN
    s_cmp_lt_u32 s2, 304
    s_cbranch_scc1 K0_WQ
    s_cmp_lt_u32 s2, 320
    s_cbranch_scc1 K0_WO
    s_endpgm
    """)
    a.T("K0_MOD:"); a.reset()
    srd(a, 12, 30, 512*3072*2)
    srd(a, 52, 28, 1024)
    a.I(f"""
    s_mov_b32 s32, 0x5555556
    s_mul_hi_u32 s33, s2, s32
    s_mul_i32 s34, s33, 48
    s_sub_u32 s34, s2, s34
    v_lshrrev_b32 v3, 3, v0
    v_and_b32 v4, 7, v0
    s_lshl_b32 s35, s33, 8
    v_lshlrev_b32 v5, 3, v3
    buffer_load_dwordx2 v[6:7], v5, s[52:55], s35 offen
    s_mul_i32 s36, s33, {128*6144}
    s_lshl_b32 s37, s34, 7
    s_add_u32 s36, s36, s37
    s_mov_b32 s38, {4*6144}
    v_mul_lo_u32 v8, v3, s38
    v_lshl_add_u32 v8, v4, 4, v8
    v_add_u32 v9, 6144, v8
    v_add_u32 v10, {2*6144}, v8
    v_add_u32 v11, {3*6144}, v8
    buffer_load_dwordx4 v[16:19], v8, s[12:15], s36 offen
    buffer_load_dwordx4 v[20:23], v9, s[12:15], s36 offen
    buffer_load_dwordx4 v[24:27], v10, s[12:15], s36 offen
    buffer_load_dwordx4 v[28:31], v11, s[12:15], s36 offen
    s_mov_b32 s39, {LOG2E}
    s_waitcnt vmcnt(4)
    v_lshlrev_b32 v12, 16, v6
    v_and_b32 v13, 0xffff0000, v6
    v_lshlrev_b32 v14, 16, v7
    v_and_b32 v15, 0xffff0000, v7
    """)
    for i in range(4):
        r = 12 + i
        a.I(f"v_mul_f32 v32, s39, v{r}\nv_exp_f32 v32, -v32\nv_add_f32 v32, 1.0, v32\nv_rcp_f32 v32, v32\nv_mul_f32 v{r}, v{r}, v32")
        round_bf16(a, r, r)
    a.I("s_waitcnt vmcnt(0)")
    P.stamp()
    for i in range(4):
        for c in range(4):
            a.I(f"v_lshlrev_b32 v33, 16, v{16+4*i+c}\nv_and_b32 v34, 0xffff0000, v{16+4*i+c}")
            op = "v_mul_f32" if i == 0 else "v_fmac_f32"
            a.I(f"{op} v{40+2*c}, v{12+i}, v33\n{op} v{41+2*c}, v{12+i}, v34")
    a.I(f"""
    v_lshlrev_b32 v5, 5, v0
    ds_write_b128 v5, v[40:43]
    ds_write_b128 v5, v[44:47] offset:16
    s_waitcnt lgkmcnt(0)
    s_barrier
    s_cmp_lg_u32 s3, 0
    s_cbranch_scc1 K0_END
    v_lshlrev_b32 v5, 2, v0
    """)
    for kg in range(32):
        a.I(f"ds_read_b32 v{16+kg}, v5 offset:{kg*256}")
    a.I("s_waitcnt lgkmcnt(0)")
    for st in (16, 8, 4, 2, 1):
        for kg in range(st):
            a.I(f"v_add_f32 v{16+kg}, v{16+kg}, v{16+kg+st}")
    a.I(f"""
    s_mul_i32 s36, s33, {3072*4}
    s_lshl_b32 s37, s34, 8
    s_add_u32 s36, s36, s37
    buffer_store_dword v16, v5, s[8:11], s36 offen
    """)
    P.flush()
    a.I("s_endpgm")
    a.T("K0_XN:"); a.reset()
    Px = Prof(a, 5); Px.n = 1
    srd(a, 12, 16, 2048*1024)
    a.I(f"""
    s_sub_u32 s33, s2, 192
    v_and_b32 v3, 31, v2
    v_lshrrev_b32 v4, 5, v2
    v_lshlrev_b32 v5, 10, v3
    v_lshl_add_u32 v5, v4, 7, v5
    s_lshl_b32 s34, s33, 15
    s_lshl_b32 s35, s3, 8
    s_add_u32 s34, s34, s35
    """)
    for s in range(8):
        a.I(f"buffer_load_dwordx4 v[{16+4*s}:{19+4*s}], v5, s[12:15], s34 offen offset:{16*s}")
    a.I("s_waitcnt vmcnt(0)")
    Px.stamp()
    for d in range(32):
        a.I(f"v_lshlrev_b32 v{64+2*d}, 16, v{16+d}\nv_and_b32 v{65+2*d}, 0xffff0000, v{16+d}")
    def halfsum(src):
        a.I(f"v_mov_b32 v7, v{src}\nv_permlane32_swap_b32 v{src}, v7\nv_add_f32 v{src}, v{src}, v7")
    for c in range(4): a.I(f"v_add_f32 v{10+c}, v{64+c}, v{68+c}")
    for d in range(8, 64): a.I(f"v_add_f32 v{10+d%4}, v{10+d%4}, v{64+d}")
    a.I("v_add_f32 v10, v10, v11\nv_add_f32 v12, v12, v13\nv_add_f32 v6, v10, v12")
    halfsum(6)
    a.I(f"""
    v_lshlrev_b32 v8, 2, v3
    s_lshl_b32 s35, s3, 7
    v_add_u32 v9, s35, v8
    ds_write_b32 v9, v6
    s_waitcnt lgkmcnt(0)
    s_barrier
    ds_read_b32 v10, v8
    ds_read_b32 v11, v8 offset:128
    ds_read_b32 v12, v8 offset:256
    ds_read_b32 v13, v8 offset:384
    s_waitcnt lgkmcnt(0)
    v_add_f32 v10, v10, v11
    v_add_f32 v12, v12, v13
    v_add_f32 v10, v10, v12
    v_mul_f32 v14, 0x3b000000, v10
    """)
    for d in range(64):
        a.I(f"v_sub_f32 v7, v{64+d}, v14")
        a.I(f"v_mul_f32 v{10+d}, v7, v7" if d < 4 else f"v_fmac_f32 v{10+d%4}, v7, v7")
    a.I("v_add_f32 v10, v10, v11\nv_add_f32 v12, v12, v13\nv_add_f32 v6, v10, v12")
    halfsum(6)
    a.I(f"""
    ds_write_b32 v9, v6 offset:512
    s_waitcnt lgkmcnt(0)
    s_barrier
    ds_read_b32 v10, v8 offset:512
    ds_read_b32 v11, v8 offset:640
    ds_read_b32 v12, v8 offset:768
    ds_read_b32 v13, v8 offset:896
    s_waitcnt lgkmcnt(0)
    v_add_f32 v10, v10, v11
    v_add_f32 v12, v12, v13
    v_add_f32 v10, v10, v12
    v_mul_f32 v15, 0x3b000000, v10
    """)
    round_bf16(a, 14, 14); round_bf16(a, 15, 15)
    a.I("v_add_f32 v15, 0x3727c5ac, v15"); round_bf16(a, 15, 15)
    a.I("v_sqrt_f32 v15, v15"); round_bf16(a, 15, 15)
    a.I("v_rcp_f32 v15, v15")
    a.I(f"""
    v_lshlrev_b32 v8, 4, v2
    s_lshl_b32 s34, s33, 15
    s_lshl_b32 s35, s3, 13
    s_add_u32 s34, s34, s35
    s_add_u32 s34, s34, {XN}
    """)
    for d in range(32):
        lo, hi = 64+2*d, 65+2*d
        a.I(f"""
        v_sub_f32 v{lo}, v{lo}, v14
        v_sub_f32 v{hi}, v{hi}, v14
        v_cvt_pk_bf16_f32 v6, v{lo}, v{hi}
        v_lshlrev_b32 v{lo}, 16, v6
        v_and_b32 v{hi}, 0xffff0000, v6
        v_mul_f32 v{lo}, v{lo}, v15
        v_mul_f32 v{hi}, v{hi}, v15
        v_cvt_pk_bf16_f32 v{16+d}, v{lo}, v{hi}
        """)
        if d % 4 == 3:
            ss = d // 4
            if ss == 4: a.I("s_add_u32 s34, s34, 4096")
            a.I(f"buffer_store_dwordx4 v[{16+4*ss}:{19+4*ss}], v8, s[8:11], s34 offen offset:{1024*(ss%4)}")
    Px.flush()
    a.I("s_endpgm")
    a.T("K0_WQ:"); a.reset()
    srd(a, 12, 18, 512*3072)
    a.I(f"""
    s_sub_u32 s33, s2, 256
    s_lshl_b32 s33, s33, 2
    s_add_u32 s33, s33, s3
    s_mov_b32 s32, 0xaaaaaab
    s_mul_hi_u32 s34, s33, s32
    s_mul_i32 s35, s34, 24
    s_sub_u32 s35, s33, s35
    v_lshrrev_b32 v3, 3, v2
    v_and_b32 v4, 7, v2
    s_mov_b32 s38, {8*3072}
    v_mul_lo_u32 v5, v3, s38
    v_lshl_add_u32 v5, v4, 4, v5
    s_mul_i32 s36, s34, {64*3072}
    s_lshl_b32 s37, s35, 7
    s_add_u32 s36, s36, s37
    """)
    for j in range(8):
        a.I(f"buffer_load_dwordx4 v[{16+4*j}:{19+4*j}], v5, s[12:15], s36 offen")
        if j < 7: a.I("s_add_u32 s36, s36, 3072")
    a.I(f"""
    s_and_b32 s36, s35, 7
    s_mul_i32 s36, s36, {2*98304}
    s_lshr_b32 s37, s35, 3
    s_lshl_b32 s37, s37, 10
    s_add_u32 s36, s36, s37
    s_lshr_b32 s37, s34, 1
    s_mul_i32 s37, s37, {8*3072}
    s_add_u32 s36, s36, s37
    s_and_b32 s37, s34, 1
    s_lshl_b32 s37, s37, 9
    s_add_u32 s36, s36, s37
    s_add_u32 s36, s36, {WQ}
    v_lshrrev_b32 v6, 2, v4
    s_mov_b32 s38, 98304
    v_mul_lo_u32 v6, v6, s38
    s_mov_b32 s38, 3072
    v_mul_lo_u32 v7, v3, s38
    v_add_u32 v6, v6, v7
    v_and_b32 v7, 3, v4
    v_lshl_add_u32 v6, v7, 7, v6
    s_waitcnt vmcnt(0)
    """)
    transpose8x8(a, 16, 64, 40, 41)
    for i in range(8):
        a.I(f"buffer_store_dwordx4 v[{64+4*i}:{67+4*i}], v6, s[8:11], s36 offen offset:{16*i}")
    Pq = Prof(a, 6); Pq.n = 1; Pq.flush()
    a.I("s_endpgm")
    a.T("K0_WO:"); a.reset()
    srd(a, 12, 20, 512*1024)
    a.I("s_sub_u32 s33, s2, 304\ns_lshl_b32 s33, s33, 2\ns_add_u32 s33, s33, s3")
    chained_addr(a, 33, 16); chained_loads(a, 16, 12); chained_dst(a, 32, WO, 32768)
    a.I("s_waitcnt vmcnt(0)")
    transpose8x8(a, 16, 64, 40, 41)
    for i in range(8):
        a.I(f"buffer_store_dwordx4 v[{64+4*i}:{67+4*i}], v6, s[8:11], s36 offen offset:{16*i}")
    a.T("K0_END:")
    a.I("s_endpgm")

def wg_map(a, mode):
    if mode == "r4c2":
        a.I("""
        s_bfe_u32 s33, s2, 0x20001
        s_lshl_b32 s33, s33, 2
        s_bfe_u32 s34, s2, 0x20003
        s_add_u32 s33, s33, s34
        s_and_b32 s34, s2, 1
        s_lshl_b32 s34, s34, 3
        s_lshr_b32 s35, s2, 5
        s_add_u32 s34, s34, s35
        """)
    elif mode == "r2c4":
        a.I("""
        s_bfe_u32 s33, s2, 0x10002
        s_lshl_b32 s33, s33, 3
        s_bfe_u32 s34, s2, 0x30003
        s_add_u32 s33, s33, s34
        s_and_b32 s34, s2, 3
        s_lshl_b32 s34, s34, 2
        s_lshr_b32 s35, s2, 6
        s_add_u32 s34, s34, s35
        """)
    elif mode == "sq":
        a.I("""
        s_bfe_u32 s33, s2, 0x20001
        s_lshl_b32 s33, s33, 3
        s_bfe_u32 s34, s2, 0x30003
        s_add_u32 s33, s33, s34
        s_and_b32 s34, s2, 1
        s_lshl_b32 s34, s34, 2
        s_lshr_b32 s35, s2, 6
        s_add_u32 s34, s34, s35
        """)

def gen_k1(a):
    TAB, KT, VT, HP = 98304, 102400, 111616, 130048
    header(a, "k1_kernel")
    P = Prof(a, 1); P.stamp()
    a.I(f"""
    s_cmp_ge_u32 s2, 256
    s_cbranch_scc1 K1_END
    s_load_dwordx2 s[4:5], s[0:1], {A_WS}
    v_lshrrev_b32 v1, 6, v0
    v_and_b32 v2, 63, v0
    v_readfirstlane_b32 s3, v1
    """)
    wg_map(a, "r4c2")
    NB = 16
    XB, HB, ACC = 128, 100, 192
    a.I(f"""
    v_and_b32 v4, 15, v2
    v_lshrrev_b32 v5, 4, v2
    v_lshrrev_b32 v6, 1, v5
    v_and_b32 v7, 1, v5
    v_lshlrev_b32 v6, 10, v6
    v_lshl_add_u32 v6, v7, 9, v6
    v_lshl_add_u32 v6, v4, 4, v6
    v_add_u32 v6, 256, v6
    s_lshl_b32 s36, s33, 2
    s_sub_u32 s41, s36, 1
    s_max_i32 s41, s41, 0
    s_lshl_b32 s41, s41, 15
    s_lshl_b32 s38, s3, 13
    s_add_u32 s41, s41, s38
    s_add_u32 s41, s41, {XN}
    v_lshlrev_b32 v8, 4, v2
    s_add_u32 s36, s36, s3
    s_lshl_b32 s37, s36, 15
    s_add_u32 s37, s37, {XN}
    s_mul_i32 s39, s3, 3072
    s_mul_i32 s38, s34, 98304
    s_add_u32 s38, s38, {WQ}
    s_add_u32 s38, s38, s39
    s_mov_b32 s40, s39
    v_add_u32 v11, 65536, v8
    v_lshlrev_b32 v3, 3, v0
    s_waitcnt lgkmcnt(0)
    """)
    srd(a, 8, 4, WS_BYTES)
    a.I(f"""
    s_cmp_ge_u32 s2, 12
    s_cbranch_scc1 K1_NOFL
    v_lshlrev_b32 v4, 2, v0
    s_lshl_b32 s35, s2, 10
    buffer_load_dword v124, v4, s[8:11], s35 offen
    s_add_u32 s35, s35, 12288
    buffer_load_dword v125, v4, s[8:11], s35 offen
    s_add_u32 s35, s35, 12288
    buffer_load_dword v126, v4, s[8:11], s35 offen
    s_add_u32 s35, s35, 12288
    buffer_load_dword v127, v4, s[8:11], s35 offen
    """)
    a.T("K1_NOFL:")
    for ks in range(4):
        a.I(f"s_mov_b32 s35, {MODP + ks*12288}")
        a.VM(f"buffer_load_dwordx2 v[{16+2*ks}:{17+2*ks}], v3, s[8:11], s35 offen", 'm')
        a.VM(f"buffer_load_dwordx2 v[{24+2*ks}:{25+2*ks}], v3, s[8:11], s35 offen offset:2048", 'm')
    def issue_group(g):
        a.I("s_mov_b32 m0, s40")
        for i in range(3):
            a.VM(f"buffer_load_dwordx4 v8, s[8:11], s38 offen offset:{1024*i} lds", f"w{g}")
        a.I("s_add_u32 s38, s38, 12288\ns_add_u32 s40, s40, 12288")
        for i in range(4):
            t = 4*g+i
            a.VM(f"buffer_load_dwordx4 v[{XB+4*(t%NB)}:{XB+3+4*(t%NB)}], v8, s[8:11], s37 offen offset:{1024*i}", f"b{t}")
        a.I("s_add_u32 s37, s37, 4096")
    D = opt("d1", 2)
    for g in range(D): issue_group(g)
    a.I(f"""
    v_lshrrev_b32 v4, 6, v0
    v_bfe_u32 v5, v0, 2, 3
    v_lshl_add_u32 v4, v4, 3, v5
    v_bfe_u32 v5, v0, 5, 1
    v_lshl_add_u32 v4, v4, 1, v5
    v_and_b32 v5, 3, v0
    v_lshlrev_b32 v4, 5, v4
    v_lshl_add_u32 v4, v5, 3, v4
    v_add_u32 v4, {TAB}, v4
    v_lshrrev_b32 v5, 5, v2
    v_lshlrev_b32 v10, 5, v5
    v_add_u32 v10, {TAB}, v10
    """)
    a.WAIT(vm='m')
    for o in (16, 24):
        for e in range(2):
            r = o+e
            a.I(f"v_add_f32 v{r}, v{r}, v{r+2}\nv_add_f32 v{r+4}, v{r+4}, v{r+6}\nv_add_f32 v{r}, v{r}, v{r+4}")
            round_bf16(a, r, r)
    for e in range(2):
        a.I(f"v_add_f32 v{24+e}, 1.0, v{24+e}"); round_bf16(a, 24+e, 24+e)
    a.DS("ds_write_b64 v4, v[24:25]", "tw"); a.DS("ds_write_b64 v4, v[16:17] offset:2048", "tw")
    a.I(f"""
    s_cmp_ge_u32 s2, 12
    s_cbranch_scc1 K1_NOFIN
    v_add_f32 v124, v124, v125
    v_add_f32 v126, v126, v127
    v_add_f32 v124, v124, v126
    """)
    round_bf16(a, 124, 124)
    a.I("""
    s_lshr_b32 s35, s2, 1
    s_cmp_eq_u32 s35, 1
    s_cselect_b32 s42, 1, 0
    s_cmp_eq_u32 s35, 4
    s_cselect_b32 s42, 1, s42
    s_cmp_eq_u32 s42, 0
    s_cbranch_scc1 K1_FINST
    v_add_f32 v124, 1.0, v124
    """)
    round_bf16(a, 124, 124)
    a.T("K1_FINST:")
    a.I(f"v_lshlrev_b32 v4, 2, v0\ns_lshl_b32 s35, s2, 10\ns_add_u32 s35, s35, {MODF}\nbuffer_store_dword v124, v4, s[8:11], s35 offen")
    a.T("K1_NOFIN:")
    P.stamp()
    AF, TB, MT = 32, 68, 16
    def aread(t):
        st = AF + 12*(t % 3)
        for ty in range(3):
            off = (t*3+ty)*1024
            r, off = ("v8", off) if off < 65536 else ("v11", off-65536)
            a.DS(f"ds_read_b128 v[{st+4*ty}:{st+4*ty+3}], {r} offset:{off}", f"a{t}")
    def tread(t, addr="v10", stride=64, tb=None):
        tb = TB + 16*(t % 2) if tb is None else tb
        for q in range(4):
            a.DS(f"ds_read_b128 v[{tb+4*q}:{tb+4*q+3}], {addr} offset:{(q//2)*2048 + t*stride + (q%2)*16}", f"t{t}")
    def modulate(base, tb):
        ins = []
        for d in range(4): ins += [f"v_lshlrev_b32 v{MT+2*d}, 16, v{base+d}", f"v_and_b32 v{MT+2*d+1}, 0xffff0000, v{base+d}"]
        for d in range(4): ins.append(f"v_pk_fma_f32 v[{MT+2*d}:{MT+2*d+1}], v[{MT+2*d}:{MT+2*d+1}], v[{tb+2*d}:{tb+2*d+1}], v[{tb+8+2*d}:{tb+9+2*d}]")
        for d in range(4): ins.append(f"v_cvt_pk_bf16_f32 v{base+d}, v{MT+2*d}, v{MT+2*d+1}")
        return ins
    def sync_group(g):
        a.WAIT(vm=f"w{g}", ds="tw"); a.I("s_barrier")
    sync_group(0); P.stamp()
    tread(0); tread(1); aread(0); aread(1)
    a.WAIT(vm="b0", ds="t0")
    for x in modulate(XB, TB): a.I(x)
    for t in range(32):
        g = t // 4
        if t == 22:
            for i in range(4):
                a.VM(f"buffer_load_dwordx4 v[{HB+4*i}:{HB+3+4*i}], v6, s[8:11], s41 offen offset:{2048*(i%2)}", "h")
                if i == 1: a.I("s_add_u32 s41, s41, 4096")
        if t + 2 < 32:
            if (t + 2) % 4 == 0: sync_group((t+2)//4)
            tread(t+2); aread(t+2)
        fill = []
        if t + 1 < 32:
            a.WAIT(vm=f"b{t+1}", ds=[f"a{t}", f"t{t+1}"])
            fill = modulate(XB+4*((t+1) % NB), TB + 16*((t+1) % 2))
        else:
            a.WAIT(ds=f"a{t}")
        st = AF + 12*(t % 3)
        nf = (len(fill)+2)//3
        for ty in range(3):
            cin = "0" if t == 0 else f"v[{ACC+16*ty}:{ACC+16*ty+15}]"
            a.I(f"v_mfma_f32_32x32x16_bf16 v[{ACC+16*ty}:{ACC+16*ty+15}], v[{st+4*ty}:{st+4*ty+3}], v[{XB+4*(t%NB)}:{XB+4*(t%NB)+3}], {cin}")
            for x in fill[nf*ty:nf*ty+nf]: a.I(x)
        if t % 4 == 0 and g + D < 8: issue_group(g + D)
    P.stamp()
    a.I(f"""
    v_lshrrev_b32 v5, 4, v2
    v_lshrrev_b32 v6, 1, v5
    v_mul_u32_u24 v6, 3072, v6
    v_and_b32 v7, 1, v5
    v_lshl_add_u32 v6, v7, 9, v6
    v_and_b32 v4, 15, v2
    v_lshl_add_u32 v6, v4, 4, v6
    s_mul_i32 s35, s3, {8*3072}
    v_add_u32 v13, s35, v6
    v_lshlrev_b32 v12, 5, v5
    s_lshl_b32 s35, s3, 9
    v_add_u32 v12, s35, v12
    v_add_u32 v12, {TAB}, v12
    """)
    HA = 240
    for i in range(4): tread(i, "v12", 128, 32+16*i)
    for i in range(4):
        for nb in range(4):
            a.DS(f"ds_read_b128 v[{128+16*i+4*nb}:{128+16*i+4*nb+3}], v13 offset:{i*6144 + (1+(nb>>1))*1024 + (nb&1)*256}", f"ha{i}")
    QP, KP = 116, 120
    QP, KP = 116, 24
    for d in range(8): a.I(f"v_cvt_pk_bf16_f32 v{QP+d}, v{ACC+2*d}, v{ACC+1+2*d}")
    for d in range(8): a.I(f"v_cvt_pk_bf16_f32 v{KP+d}, v{ACC+16+2*d}, v{ACC+17+2*d}")
    for d in range(8):
        a.I(f"v_cvt_pk_bf16_f32 v9, v{ACC+32+2*d}, v{ACC+33+2*d}\nv_lshlrev_b32 v{ACC+32+2*d}, 16, v9\nv_and_b32 v{ACC+33+2*d}, 0xffff0000, v9")
    a.I(f"""
    v_and_b32 v3, 31, v2
    v_lshrrev_b32 v4, 5, v2
    s_lshl_b32 s35, s3, 5
    v_add_u32 v5, s35, v3
    v_add_u32 v5, 16, v5
    v_mul_u32_u24 v6, {144*16}, v4
    v_lshl_add_u32 v15, v5, 4, v6
    v_add_u32 v15, {KT}, v15
    v_mul_u32_u24 v6, {2*144*16}, v4
    v_lshl_add_u32 v7, v5, 4, v6
    v_add_u32 v7, {VT}, v7
    s_lshl_b32 s35, s3, 12
    v_add_u32 v14, s35, v8
    v_add_u32 v14, {HP}, v14
    """)
    V0 = ACC+32
    for x in [f"ds_write_b128 v15, v[{KP}:{KP+3}]", f"ds_write_b128 v15, v[{KP+4}:{KP+7}] offset:{2*144*16}",
              f"ds_write_b128 v7, v[{V0}:{V0+3}]", f"ds_write_b128 v7, v[{V0+4}:{V0+7}] offset:{144*16}",
              f"ds_write_b128 v7, v[{V0+8}:{V0+11}] offset:{4*144*16}", f"ds_write_b128 v7, v[{V0+12}:{V0+15}] offset:{5*144*16}"]:
        a.DS(x, "kvw")
    a.WAIT(vm="h")
    for i in range(4):
        a.WAIT(ds=f"t{i}")
        for x in modulate(HB+4*i, 32+16*i): a.I(x)
        a.WAIT(ds=f"ha{i}")
        for nb in range(4):
            cin = "0" if i == 0 else f"v[{HA+4*nb}:{HA+4*nb+3}]"
            a.I(f"v_mfma_f32_16x16x32_bf16 v[{HA+4*nb}:{HA+4*nb+3}], v[{128+16*i+4*nb}:{128+16*i+4*nb+3}], v[{HB+4*i}:{HB+4*i+3}], {cin}")
    for nb in range(4):
        a.I(f"ds_write_b128 v14, v[{HA+4*nb}:{HA+4*nb+3}] offset:{nb*1024}")
    a.I(f"""
    s_lshl_b32 s35, s3, 10
    v_add_u32 v14, s35, v8
    v_add_u32 v14, {HP}, v14
    v_and_b32 v3, 15, v2
    v_lshrrev_b32 v4, 4, v2
    v_and_b32 v5, 1, v4
    v_lshrrev_b32 v6, 1, v4
    s_and_b32 s35, s3, 1
    v_subrev_u32 v15, 224, v15
    v_subrev_u32 v7, 224, v7
    s_waitcnt lgkmcnt(0)
    s_barrier
    ds_read_b128 v[80:83], v14
    ds_read_b128 v[84:87], v14 offset:4096
    ds_read_b128 v[88:91], v14 offset:8192
    ds_read_b128 v[92:95], v14 offset:12288
    s_waitcnt lgkmcnt(0)
    """)
    a.dsq = []
    for r in range(4):
        a.I(f"v_add_f32 v{80+r}, v{80+r}, v{84+r}\nv_add_f32 v{88+r}, v{88+r}, v{92+r}\nv_add_f32 v{80+r}, v{80+r}, v{88+r}")
    a.I(f"""
    v_cvt_pk_bf16_f32 v84, v80, v81
    v_cvt_pk_bf16_f32 v85, v82, v83
    s_cmp_ge_u32 s3, 2
    s_cbranch_scc1 K1_HV
    s_mul_i32 s35, s35, {2*144*16}
    v_mul_u32_u24 v5, {144*16}, v5
    v_lshl_add_u32 v5, v3, 4, v5
    v_lshl_add_u32 v5, v6, 3, v5
    v_add_u32 v5, s35, v5
    v_add_u32 v5, {KT}, v5
    ds_write_b64 v5, v[84:85]
    s_branch K1_HD
    """)
    a.T("K1_HV:")
    a.I(f"""
    v_lshlrev_b32 v80, 16, v84
    v_and_b32 v81, 0xffff0000, v84
    v_lshlrev_b32 v82, 16, v85
    v_and_b32 v83, 0xffff0000, v85
    s_mul_i32 s35, s35, {4*144*16}
    v_lshl_add_u32 v5, v5, 1, v6
    v_mul_u32_u24 v5, {144*16}, v5
    v_lshl_add_u32 v5, v3, 4, v5
    v_add_u32 v5, s35, v5
    v_add_u32 v5, {VT}, v5
    ds_write_b128 v5, v[80:83]
    """)
    a.T("K1_HD:")
    a.I("s_waitcnt lgkmcnt(0)\ns_barrier")
    P.stamp()
    for e in range(2):
        for w in range(8):
            a.DS(f"ds_read_b128 v[{32+(e*8+w)*4}:{35+(e*8+w)*4}], v15 offset:{e*2*144*16 + (7-w)*32}", f"k{e}{w//4}")
    VB = 128
    def vread(e, w):
        for aa in range(2):
            r = VB + ((e*8+w)*2+aa)*4
            a.DS(f"ds_read_b128 v[{r}:{r+3}], v7 offset:{e*4*144*16 + aa*144*16 + (7-w)*32}", f"v{e}{w//2}")
    LG = 96
    for e in range(2):
        for w in range(8):
            if w % 4 == 0: a.WAIT(ds=f"k{e}{w//4}")
            kb = 32+(e*8+w)*4
            a.I(f"v_dot2_f32_bf16 v{LG+e*8+w}, v{QP+4*e}, v{kb}, 0")
            for d in range(1, 4):
                a.I(f"v_dot2_f32_bf16 v{LG+e*8+w}, v{QP+4*e+d}, v{kb+d}, v{LG+e*8+w}")
            vread(e, w)
    for w in range(8): a.I(f"v_permlane32_swap_b32 v{LG+w}, v{LG+8+w}")
    for w in range(8): a.I(f"v_add_f32 v{LG+w}, v{LG+w}, v{LG+8+w}")
    for w in range(0, 8, 2):
        a.I(f"v_cvt_pk_bf16_f32 v5, v{LG+w}, v{LG+w+1}\nv_lshlrev_b32 v{LG+w}, 16, v5\nv_and_b32 v{LG+w+1}, 0xffff0000, v5")
    a.I(f"s_mov_b32 s35, 0x3eb8aa3b\ns_cmp_lg_u32 s36, 0\ns_cbranch_scc1 K1_NOMASK\nv_and_b32 v3, 31, v2\nv_mov_b32 v4, 0xcf6e6b28")
    for w in range(1, 8):
        a.I(f"v_cmp_le_u32 vcc, {2*w}, v3\nv_cndmask_b32 v{LG+w}, v4, v{LG+w}, vcc")
    a.T("K1_NOMASK:")
    a.I(f"v_max3_f32 v5, v{LG}, v{LG+1}, v{LG+2}\nv_max3_f32 v6, v{LG+3}, v{LG+4}, v{LG+5}\nv_max3_f32 v5, v5, v{LG+6}, v{LG+7}\nv_max_f32 v5, v5, v6")
    for w in range(8): a.I(f"v_sub_f32 v{LG+w}, v{LG+w}, v5")
    for w in range(8): a.I(f"v_mul_f32 v{LG+w}, s35, v{LG+w}")
    for w in range(8): a.I(f"v_exp_f32 v{LG+w}, v{LG+w}")
    a.I(f"v_add_f32 v5, v{LG}, v{LG+1}\nv_add_f32 v6, v{LG+2}, v{LG+3}\nv_add_f32 v9, v{LG+4}, v{LG+5}\nv_add_f32 v10, v{LG+6}, v{LG+7}\nv_add_f32 v5, v5, v6\nv_add_f32 v9, v9, v10\nv_add_f32 v6, v5, v9\nv_rcp_f32 v6, v6")
    for w in range(8): a.I(f"v_mul_f32 v{LG+w}, v{LG+w}, v6")
    for w in range(0, 8, 2):
        a.I(f"v_cvt_pk_bf16_f32 v5, v{LG+w}, v{LG+w+1}\nv_lshlrev_b32 v{LG+w}, 16, v5\nv_and_b32 v{LG+w+1}, 0xffff0000, v5")
    for w in range(8): a.I(f"v_mov_b32 v{LG+8+w}, v{LG+w}")
    for w in range(8): a.I(f"v_permlane32_swap_b32 v{LG+w}, v{LG+8+w}")
    OA = 16
    for e in range(2):
        for w in range(8):
            if w % 2 == 0: a.WAIT(ds=f"v{e}{w//2}")
            p = LG + e*8 + w
            pe, sel = p - (p % 2), p % 2
            for q in range(4):
                r = VB + (e*8+w)*8 + 2*q
                o = OA+e*8+2*q
                if w == 0:
                    a.I(f"v_pk_mul_f32 v[{o}:{o+1}], v[{r}:{r+1}], v[{pe}:{pe+1}] op_sel:[0,{sel}] op_sel_hi:[1,{sel}]")
                else:
                    a.I(f"v_pk_fma_f32 v[{o}:{o+1}], v[{r}:{r+1}], v[{pe}:{pe+1}], v[{o}:{o+1}] op_sel:[0,{sel},0] op_sel_hi:[1,{sel},1]")
        for d in range(4): a.I(f"v_cvt_pk_bf16_f32 v{32+4*e+d}, v{OA+8*e+2*d}, v{OA+8*e+2*d+1}")
        if e == 0:
            a.I(f"s_lshl_b32 s37, s36, 15\ns_lshl_b32 s38, s34, 11\ns_add_u32 s37, s37, s38\ns_add_u32 s37, s37, {OO}")
        a.I(f"buffer_store_dwordx4 v[{32+4*e}:{35+4*e}], v8, s[8:11], s37 offen offset:{1024*e}")
    P.stamp(); P.flush()
    a.T("K1_END:")
    a.I("s_endpgm")

def gen_proj(a, name, nt, act_base, w_base, which):
    header(a, name)
    P = Prof(a, which); P.stamp()
    L = name.upper()
    NS = 5
    a.I(f"""
    s_cmp_ge_u32 s2, 256
    s_cbranch_scc1 {L}_X
    s_load_dwordx2 s[4:5], s[0:1], {A_WS}
    s_load_dwordx2 s[6:7], s[0:1], {A_X if which == 2 else A_OUT}
    s_load_dwordx4 s[24:27], s[0:1], {A_W1}
    s_load_dwordx2 s[28:29], s[0:1], {A_W2}
    v_lshrrev_b32 v1, 6, v0
    v_and_b32 v2, 63, v0
    v_readfirstlane_b32 s3, v1
    """)
    PR = 128
    if which == 2:
        a.I(f"""
        s_mov_b32 s52, 0
        s_waitcnt lgkmcnt(0)
        s_cmp_ge_u32 s2, 130
        s_cbranch_scc1 K2_PL_DONE
        s_cmp_ge_u32 s2, 86
        s_cbranch_scc1 K2_PL_W2
        s_mov_b32 s52, 1
        s_cmp_ge_u32 s2, 43
        s_cselect_b32 s53, 1, 0
        s_cselect_b32 s24, s26, s24
        s_cselect_b32 s25, s27, s25
        s_mul_i32 s54, s53, 43
        s_sub_u32 s54, s2, s54
        """)
        srd(a, 16, 24, 512*2752)
        srd(a, 8, 4, WS_BYTES)
        a.I(f"""
        v_lshrrev_b32 v14, 3, v2
        v_bfe_u32 v4, v2, 2, 1
        v_and_b32 v5, 3, v2
        s_lshl_b32 s42, s3, 3
        v_add_u32 v14, s42, v14
        v_lshlrev_b32 v15, 4, v14
        v_lshl_add_u32 v15, v4, 2, v15
        s_mov_b32 s42, 2752
        v_mul_lo_u32 v7, v15, s42
        v_lshl_add_u32 v7, v5, 4, v7
        s_lshl_b32 s42, s54, 6
        """)
        for j in range(8):
            row = (j % 4) + 8*(j // 4)
            a.I(f"v_add_u32 v9, {row*2752}, v7\nbuffer_load_dwordx4 v[{PR+4*j}:{PR+3+4*j}], v9, s[16:19], s42 offen")
        a.I(f"""
        v_lshlrev_b32 v9, 2, v15
        s_mov_b32 s42, {MODF + 3*2048}
        buffer_load_dwordx4 v[160:163], v9, s[8:11], s42 offen
        buffer_load_dwordx4 v[164:167], v9, s[8:11], s42 offen offset:32
        buffer_load_dwordx4 v[168:171], v9, s[8:11], s42 offen offset:2048
        buffer_load_dwordx4 v[172:175], v9, s[8:11], s42 offen offset:2080
        s_branch K2_PL_DONE
        """)
        a.T("K2_PL_W2:")
        a.I("s_mov_b32 s52, 2")
        srd(a, 16, 28, 1376*1024)
        a.I("s_sub_u32 s53, s2, 86\ns_lshl_b32 s53, s53, 2\ns_add_u32 s53, s53, s3")
        chained_addr(a, 53, PR)
        for j in range(8):
            a.I(f"buffer_load_dwordx4 v[{PR+4*j}:{PR+3+4*j}], v{5 if j < 4 else 9}, s[16:19], s36 offen offset:{1024*(j%4)}")
        a.T("K2_PL_DONE:")
    wg_map(a, "sq")
    sel = 2 if which == 2 else 5
    a.I(f"""
    v_lshlrev_b32 v8, 4, v2
    s_and_b32 s50, s3, 1            ; r
    s_lshr_b32 s51, s3, 1           ; c
    s_lshl_b32 s36, s33, 1
    s_add_u32 s37, s36, s50
    s_mul_i32 s37, s37, {nt*1024}
    s_add_u32 s37, s37, {act_base}
    s_lshl_b32 s38, s34, 1
    s_add_u32 s38, s38, s50
    s_mul_i32 s38, s38, {nt*1024}
    s_add_u32 s38, s38, {w_base}
    s_cmp_ge_u32 s3, 2
    s_cselect_b32 s38, s38, s37
    s_lshl_b32 s39, s3, 13
    s_mov_b32 s40, s39
    s_add_u32 s36, s36, s50
    s_lshl_b32 s35, s34, 1
    s_add_u32 s35, s35, s51
    v_and_b32 v3, 31, v2
    v_lshrrev_b32 v4, 5, v2
    v_lshlrev_b32 v5, 4, v4
    s_lshl_b32 s43, s35, 7
    s_add_u32 s43, s43, {MODF + sel*2048}
    s_lshl_b32 s41, s36, 15
    s_lshl_b32 s42, s35, 6
    s_add_u32 s41, s41, s42
    v_lshlrev_b32 v6, 10, v3
    v_lshl_add_u32 v6, v4, 3, v6
    s_lshl_b32 s42, s36, 15
    s_lshl_b32 s44, s35, 11
    s_add_u32 s42, s42, s44
    s_add_u32 s42, s42, {X1}
    s_lshl_b32 s44, s50, 13
    v_add_u32 v9, s44, v8
    s_lshl_b32 s44, s51, 13
    s_add_u32 s44, s44, 16384
    v_add_u32 v10, s44, v8
    v_add_u32 v11, 65536, v9
    v_add_u32 v12, 65536, v10
    v_add_u32 v13, 131072, v9
    v_add_u32 v14, 131072, v10
    s_waitcnt lgkmcnt(0)
    """)
    srd(a, 8, 4, WS_BYTES)
    srd(a, 12, 6, 2048*1024)
    ng = (nt + 7) // 8
    def issue_chunk(g):
        if g % NS == 0 and g: a.I("s_mov_b32 s40, s39")
        for hf in range(2):
            n = min(4, nt - 8*g - 4*hf)
            if n <= 0: continue
            a.I(f"s_add_u32 m0, s40, {4096*hf}")
            for i in range(n):
                a.VM(f"buffer_load_dwordx4 v8, s[8:11], s38 offen offset:{1024*i} lds", f"w{g}")
            a.I("s_add_u32 s38, s38, 4096")
        a.I("s_add_u32 s40, s40, 32768")
    npre = min(NS - 1, ng)
    for g in range(npre): issue_chunk(g)
    for i in range(16): a.I(f"v_mov_b32 v{48+i}, 0")
    P.stamp()
    FR = 64
    def fread(t):
        g, i = t // 8, t % 8
        off = (g % NS)*32768 + i*1024
        k = off // 65536; off %= 65536
        rb, ra = [("v9", "v10"), ("v11", "v12"), ("v13", "v14")][k]
        st = FR + 8*(t % 4)
        a.DS(f"ds_read_b128 v[{st}:{st+3}], {ra} offset:{off}", f"f{t}")
        a.DS(f"ds_read_b128 v[{st+4}:{st+7}], {rb} offset:{off}", f"f{t}")
    def sync_chunk(g):
        a.WAIT(vm=f"w{g}"); a.I("s_barrier")
    sync_chunk(0); P.stamp()
    for t in range(3): fread(t)
    nxt = npre
    for t in range(nt):
        g = t // 8
        if t == max(0, nt - 24):
            for aa in range(4):
                a.VM(f"buffer_load_dwordx4 v[{16+4*aa}:{19+4*aa}], v5, s[8:11], s43 offen offset:{32*aa}", "e")
            if which == 2:
                for aa in range(4):
                    a.VM(f"buffer_load_dwordx2 v[{32+2*aa}:{33+2*aa}], v6, s[12:15], s41 offen offset:{16*aa}", "e")
            else:
                a.VM(f"buffer_load_dwordx4 v[32:35], v8, s[8:11], s42 offen", "e")
                a.VM(f"buffer_load_dwordx4 v[36:39], v8, s[8:11], s42 offen offset:1024", "e")
        if t + 3 < nt:
            if (t+3) % 8 == 0:
                sync_chunk((t+3)//8)
                G = (t+3)//8
                while nxt < ng and nxt - NS <= G - 2:
                    issue_chunk(nxt); nxt += 1
            fread(t+3)
        a.WAIT(ds=f"f{t}")
        st = FR + 8*(t % 4)
        a.I(f"v_mfma_f32_32x32x16_bf16 v[48:63], v[{st}:{st+3}], v[{st+4}:{st+7}], v[48:63]")
    assert nxt == ng
    P.stamp()
    a.WAIT(vm="e")
    for d in range(8):
        a.I(f"v_lshlrev_b32 v{96+2*d}, 16, v{32+d}\nv_and_b32 v{97+2*d}, 0xffff0000, v{32+d}")
    for r in range(16): a.I(f"v_fmac_f32 v{96+r}, v{48+r}, v{16+r}")
    for d in range(8): a.I(f"v_cvt_pk_bf16_f32 v{84+d}, v{96+2*d}, v{97+2*d}")
    if which == 2:
        a.I(f"""
        buffer_store_dwordx4 v[84:87], v8, s[8:11], s42 offen
        buffer_store_dwordx4 v[88:91], v8, s[8:11], s42 offen offset:1024
        """)
        for d in range(8):
            a.I(f"v_lshlrev_b32 v{96+2*d}, 16, v{84+d}\nv_and_b32 v{97+2*d}, 0xffff0000, v{84+d}")
        a.I("v_add_f32 v92, v96, v97\nv_add_f32 v94, v98, v99\nv_mul_f32 v93, v96, v96\nv_mul_f32 v95, v97, v97\nv_fmac_f32 v93, v98, v98\nv_fmac_f32 v95, v99, v99")
        for r in range(4, 16, 2):
            a.I(f"v_add_f32 v92, v92, v{96+r}\nv_add_f32 v94, v94, v{97+r}\nv_fmac_f32 v93, v{96+r}, v{96+r}\nv_fmac_f32 v95, v{97+r}, v{97+r}")
        a.I(f"""
        v_add_f32 v92, v92, v94
        v_add_f32 v93, v93, v95
        v_mov_b32 v94, v92
        v_mov_b32 v95, v93
        v_permlane32_swap_b32 v92, v94
        v_permlane32_swap_b32 v93, v95
        v_add_f32 v92, v92, v94
        v_add_f32 v93, v93, v95
        v_lshlrev_b32 v7, 7, v3
        s_lshl_b32 s44, s36, 12
        s_lshl_b32 s43, s35, 3
        s_add_u32 s44, s44, s43
        s_add_u32 s44, s44, {ST}
        buffer_store_dwordx2 v[92:93], v7, s[8:11], s44 offen
        """)
        P.stamp()
        gen_prep_tail(a, PR)
    else:
        a.I("""
        v_permlane32_swap_b32 v84, v86
        v_permlane32_swap_b32 v85, v87
        v_permlane32_swap_b32 v88, v90
        v_permlane32_swap_b32 v89, v91
        v_lshlrev_b32 v6, 10, v3
        v_lshl_add_u32 v6, v4, 4, v6
        buffer_store_dwordx4 v[84:87], v6, s[12:15], s41 offen
        buffer_store_dwordx4 v[88:91], v6, s[12:15], s41 offen offset:32
        """)
    P.stamp(); P.flush()
    a.T(f"{L}_X:")
    a.I("s_endpgm")

def gen_prep_tail(a, PR):
    URED = 131072
    a.I("""
    s_cmp_eq_u32 s52, 0
    s_cbranch_scc1 K2_FIN
    s_cmp_eq_u32 s52, 1
    s_cbranch_scc1 K2_P13
    s_mov_b32 s40, 0x05040100
    s_mov_b32 s41, 0x07060302
    """)
    chained_addr(a, 53, PR); chained_dst(a, 86, W2, 88064)
    transpose8x8(a, PR, 64, 40, 41)
    for i in range(8):
        a.I(f"buffer_store_dwordx4 v[{64+4*i}:{67+4*i}], v6, s[8:11], s36 offen offset:{16*i}")
    a.I("s_branch K2_FIN")
    a.T("K2_P13:")
    W = 176
    for c in range(4):
        for j in range(8):
            a.I(f"v_lshlrev_b32 v{W+2*j}, 16, v{PR+4*j+c}\nv_and_b32 v{W+2*j+1}, 0xffff0000, v{PR+4*j+c}")
        for j in range(8):
            pe, sel = 160 + j - (j % 2), j % 2
            if j == 0: a.I(f"v_pk_mul_f32 v[{104+2*c}:{105+2*c}], v[{W}:{W+1}], v[{pe}:{pe+1}] op_sel:[0,{sel}] op_sel_hi:[1,{sel}]")
            else: a.I(f"v_pk_fma_f32 v[{104+2*c}:{105+2*c}], v[{W+2*j}:{W+2*j+1}], v[{pe}:{pe+1}], v[{104+2*c}:{105+2*c}] op_sel:[0,{sel},0] op_sel_hi:[1,{sel},1]")
        for j in range(8):
            pe, sel = 168 + j - (j % 2), j % 2
            a.I(f"v_pk_mul_f32 v[{W+2*j}:{W+2*j+1}], v[{W+2*j}:{W+2*j+1}], v[{pe}:{pe+1}] op_sel:[0,{sel}] op_sel_hi:[1,{sel}]")
        for e in range(2):
            for jj in range(4):
                a.I(f"v_cvt_pk_bf16_f32 v{64+4*(2*c+e)+jj}, v{W+4*jj+e}, v{W+4*jj+2+e}")
        a.I(f"v_pk_add_f32 v[{96+2*c}:{97+2*c}], v[{W}:{W+1}], v[{W+2}:{W+3}]")
        for j in range(2, 8):
            a.I(f"v_pk_add_f32 v[{96+2*c}:{97+2*c}], v[{96+2*c}:{97+2*c}], v[{W+2*j}:{W+2*j+1}]")
    a.I(f"""
    v_lshrrev_b32 v14, 3, v2
    v_bfe_u32 v4, v2, 2, 1
    v_and_b32 v5, 3, v2
    s_lshl_b32 s42, s3, 3
    v_add_u32 v14, s42, v14
    v_mul_u32_u24 v9, 6144, v14
    v_lshl_add_u32 v9, v4, 9, v9
    v_lshl_add_u32 v9, v5, 7, v9
    s_mul_i32 s38, s54, 43691
    s_lshr_b32 s38, s38, 17         ; nb/3
    s_mul_i32 s39, s38, 3
    s_sub_u32 s39, s54, s39
    s_lshl_b32 s39, s39, 1
    s_add_u32 s39, s39, s53
    s_lshl_b32 s39, s39, 10
    s_mul_i32 s38, s38, 196608
    s_add_u32 s38, s38, s39
    s_add_u32 s38, s38, {W13}
    """)
    for i in range(8):
        a.I(f"buffer_store_dwordx4 v[{64+4*i}:{67+4*i}], v9, s[8:11], s38 offen offset:{16*i}")
    a.I(f"""
    v_lshrrev_b32 v9, 2, v0
    v_lshlrev_b32 v9, 8, v9
    v_lshl_add_u32 v9, v5, 5, v9
    v_add_u32 v9, {URED}, v9
    ds_write_b128 v9, v[96:99]
    ds_write_b128 v9, v[100:103] offset:16
    ds_write_b128 v9, v[104:107] offset:128
    ds_write_b128 v9, v[108:111] offset:144
    v_lshlrev_b32 v9, 2, v2
    s_lshl_b32 s38, s3, 12
    v_add_u32 v9, s38, v9
    v_add_u32 v9, {URED}, v9
    s_waitcnt lgkmcnt(0)
    """)
    for i in range(16): a.I(f"ds_read_b32 v{16+i}, v9 offset:{i*256}")
    a.I("s_waitcnt lgkmcnt(0)")
    for st in (8, 4, 2, 1):
        for i in range(st): a.I(f"v_add_f32 v{16+i}, v{16+i}, v{16+i+st}")
    a.I(f"""
    v_lshlrev_b32 v9, 2, v0
    v_add_u32 v9, {URED+16384}, v9
    ds_write_b32 v9, v16
    s_waitcnt lgkmcnt(0)
    s_barrier
    s_cmp_lg_u32 s3, 0
    s_cbranch_scc1 K2_FIN
    ds_read_b32 v17, v9 offset:256
    ds_read_b32 v18, v9 offset:512
    ds_read_b32 v19, v9 offset:768
    v_lshrrev_b32 v4, 5, v2
    v_mul_u32_u24 v4, {1408*4}, v4
    v_and_b32 v3, 31, v2
    v_lshl_add_u32 v4, v3, 2, v4
    s_mul_i32 s38, s53, {2*1408*4}
    s_lshl_b32 s39, s54, 7
    s_add_u32 s38, s38, s39
    s_add_u32 s38, s38, {UT}
    s_waitcnt lgkmcnt(0)
    v_add_f32 v16, v16, v17
    v_add_f32 v18, v18, v19
    v_add_f32 v16, v16, v18
    buffer_store_dword v16, v4, s[8:11], s38 offen
    """)
    a.T("K2_FIN:")

def gen_k3(a):
    header(a, "k3_kernel")
    P = Prof(a, 3); P.stamp()
    a.I(f"""
    s_cmp_ge_u32 s2, 256
    s_cbranch_scc1 K3_END
    s_load_dwordx2 s[4:5], s[0:1], {A_WS}
    v_lshrrev_b32 v1, 6, v0
    v_and_b32 v2, 63, v0
    v_readfirstlane_b32 s3, v1
    """)
    wg_map(a, "r2c4")
    a.I(f"""
    s_cmp_ge_u32 s34, 15
    s_cbranch_scc1 K3_END
    v_lshlrev_b32 v8, 4, v2
    s_lshl_b32 s36, s33, 2
    s_add_u32 s36, s36, s3
    s_lshl_b32 s37, s36, 15
    s_add_u32 s37, s37, {X1}
    s_mul_i32 s38, s34, 196608
    s_add_u32 s38, s38, {W13}
    s_mul_i32 s39, s3, 6144
    s_add_u32 s38, s38, s39
    s_mov_b32 s40, s39
    v_and_b32 v3, 31, v2
    v_lshrrev_b32 v4, 5, v2
    v_add_u32 v9, 49152, v8
    v_add_u32 v10, 98304, v8
    v_lshlrev_b32 v5, 4, v4
    v_lshlrev_b32 v6, 7, v3
    v_lshl_add_u32 v6, v4, 6, v6
    s_lshl_b32 s41, s36, 12
    s_add_u32 s41, s41, {ST}
    s_mul_i32 s42, s34, 384
    s_add_u32 s42, s42, {UT}
    s_mul_i32 s44, s36, {86*1024}
    s_mul_i32 s43, s34, {6*1024}
    s_add_u32 s44, s44, s43
    s_add_u32 s44, s44, {HH}
    s_mov_b32 s45, {LOG2E}
    s_waitcnt lgkmcnt(0)
    """)
    srd(a, 8, 4, WS_BYTES)
    NS, NB = 6, 16
    BB, AF, ACC = 64, 16, 160
    def issue_chunk(g):
        if g % NS == 0 and g: a.I("s_mov_b32 s40, s39")
        a.I("s_mov_b32 m0, s40")
        for i in range(4): a.VM(f"buffer_load_dwordx4 v8, s[8:11], s38 offen offset:{1024*i} lds", f"w{g}")
        a.I("s_add_u32 m0, s40, 4096\ns_add_u32 s43, s38, 4096")
        for i in range(2): a.VM(f"buffer_load_dwordx4 v8, s[8:11], s43 offen offset:{1024*i} lds", f"w{g}")
        a.I("s_add_u32 s38, s38, 24576\ns_add_u32 s40, s40, 24576")
        for i in range(4):
            t = 4*g+i
            a.VM(f"buffer_load_dwordx4 v[{BB+4*(t%NB)}:{BB+4*(t%NB)+3}], v8, s[8:11], s37 offen offset:{1024*i}", f"b{t}")
        a.I("s_add_u32 s37, s37, 4096")
    D = opt("d3", 2)
    UTL = 147456
    a.I(f"""
    s_mul_i32 s43, s3, {1408*4}
    s_add_u32 s43, s43, s42
    s_mul_i32 s46, s3, 384
    s_add_u32 m0, s46, {UTL}
    s_mov_b64 exec, 0xffffff
    """)
    a.VM("buffer_load_dwordx4 v8, s[8:11], s43 offen lds", "w0")
    a.I(f"s_mov_b64 exec, -1\nv_add_u32 v5, {UTL}, v5")
    for g in range(D): issue_chunk(g)
    def aread(t, lo, hi):
        g, i = t // 4, t % 4
        off = (g % NS)*24576 + i*6144
        k = off // 49152; off %= 49152
        st = AF + 24*(t % 2)
        for f in range(lo, hi):
            a.DS(f"ds_read_b128 v[{st+4*f}:{st+4*f+3}], {['v8','v9','v10'][k]} offset:{off+1024*f}", f"a{t}_{f//3}")
    def sync_chunk(g):
        a.WAIT(vm=f"w{g}"); a.I("s_barrier")
    P.stamp()
    sync_chunk(0); P.stamp()
    aread(0, 0, 6)
    nxt = D
    for t in range(32):
        g = t // 4
        if t == 20:
            for q in range(4):
                a.VM(f"buffer_load_dwordx4 v[{128+4*q}:{131+4*q}], v6, s[8:11], s41 offen offset:{16*q}", "s")
        if t + 1 < 32 and (t+1) % 4 == 0: sync_chunk((t+1)//4)
        st = AF + 24*(t % 2)
        for hf in range(2):
            if t + 1 < 32: aread(t+1, 3*hf, 3*hf+3)
            a.WAIT(vm=f"b{t}", ds=f"a{t}_{hf}")
            for f in range(3*hf, 3*hf+3):
                cin = "0" if t == 0 else f"v[{ACC+16*f}:{ACC+16*f+15}]"
                a.I(f"v_mfma_f32_32x32x16_bf16 v[{ACC+16*f}:{ACC+16*f+15}], v[{st+4*f}:{st+4*f+3}], v[{BB+4*(t%NB)}:{BB+4*(t%NB)+3}], {cin}")
        if t % 4 == 0 and nxt < 8:
            assert nxt - NS <= g - 2 or nxt < NS
            issue_chunk(nxt); nxt += 1
    P.stamp()
    def ut_reads(p):
        for arr in range(4):
            for aa in range(4):
                r = 16 + arr*16 + 4*aa
                a.DS(f"ds_read_b128 v[{r}:{r+3}], v5 offset:{arr*384 + p*128 + aa*32}", f"u{p}_{arr//2}")
    ut_reads(0)
    a.WAIT(vm="s")
    for q in range(1, 8):
        a.I(f"v_pk_add_f32 v[128:129], v[128:129], v[{128+2*q}:{129+2*q}]")
    a.I("""
    v_mov_b32 v130, v128
    v_mov_b32 v131, v129
    v_permlane32_swap_b32 v128, v130
    v_permlane32_swap_b32 v129, v131
    v_add_f32 v128, v128, v130
    v_add_f32 v129, v129, v131
    v_mul_f32 v13, 0x3b000000, v128
    v_mul_f32 v12, 0x3b000000, v129
    v_fma_f32 v12, -v13, v13, v12
    v_max_f32 v12, 0, v12
    v_add_f32 v12, 0x3727c5ac, v12
    v_rsq_f32 v14, v12
    v_sub_f32 v15, 0, v13
    v_sub_f32 v12, 0, s45
    v_mov_b32 v13, 1.0
    """)
    U = 16; TMP = 80
    for p in range(3):
        if p == 1: a.I("s_cmp_eq_u32 s34, 14\ns_cbranch_scc1 K3_FIN")
        for mm in range(2):
            a.WAIT(ds=f"u{p}_{mm}")
            A = ACC + 32*p + 16*mm
            for d in range(8): a.I(f"v_pk_fma_f32 v[{A+2*d}:{A+2*d+1}], v[{U+32*mm+2*d}:{U+32*mm+2*d+1}], v[14:15], v[{A+2*d}:{A+2*d+1}] op_sel:[0,1,0] op_sel_hi:[1,1,1]")
            for d in range(8): a.I(f"v_pk_fma_f32 v[{A+2*d}:{A+2*d+1}], v[{A+2*d}:{A+2*d+1}], v[14:15], v[{U+32*mm+16+2*d}:{U+32*mm+17+2*d}] op_sel:[0,0,0] op_sel_hi:[1,0,1]")
        G = ACC + 32*p
        if p < 2: ut_reads(p+1)
        for d in range(8): a.I(f"v_pk_mul_f32 v[{TMP+2*d}:{TMP+2*d+1}], v[{G+2*d}:{G+2*d+1}], v[12:13] op_sel:[0,0] op_sel_hi:[1,0]")
        for r in range(16): a.I(f"v_exp_f32 v{TMP+r}, v{TMP+r}")
        for d in range(8): a.I(f"v_pk_mul_f32 v[{G+2*d}:{G+2*d+1}], v[{G+2*d}:{G+2*d+1}], v[{G+16+2*d}:{G+17+2*d}]")
        for d in range(8): a.I(f"v_pk_add_f32 v[{TMP+2*d}:{TMP+2*d+1}], v[{TMP+2*d}:{TMP+2*d+1}], v[12:13] op_sel:[0,1] op_sel_hi:[1,1]")
        for r in range(16): a.I(f"v_rcp_f32 v{TMP+r}, v{TMP+r}")
        for d in range(8): a.I(f"v_pk_mul_f32 v[{G+2*d}:{G+2*d+1}], v[{G+2*d}:{G+2*d+1}], v[{TMP+2*d}:{TMP+2*d+1}]")
        for d in range(8): a.I(f"v_cvt_pk_bf16_f32 v{96+8*p+d}, v{G+2*d}, v{G+2*d+1}")
        a.VM(f"buffer_store_dwordx4 v[{96+8*p}:{99+8*p}], v8, s[8:11], s44 offen offset:{(p*2048)%4096}", "st")
        a.VM(f"buffer_store_dwordx4 v[{100+8*p}:{103+8*p}], v8, s[8:11], s44 offen offset:{(p*2048)%4096+1024}", "st")
        if p == 1: a.I("s_add_u32 s44, s44, 4096")
    a.T("K3_FIN:")
    P.stamp(); P.flush()
    a.T("K3_END:")
    a.I("s_endpgm")

def main():
    a = Asm()
    gen_k0(a); gen_k1(a)
    gen_proj(a, "k2_kernel", 32, OO, WO, 2)
    gen_k3(a)
    gen_proj(a, "k4_kernel", 86, HH, W2, 4)
    head = """; generated by work/gen6.py
; @launch kernel=k0_kernel grid=(320,1,1) block=(256,1,1) lds=8192
; @launch kernel=k1_kernel grid=(256,1,1) block=(256,1,1) lds=147456
; @launch kernel=k2_kernel grid=(256,1,1) block=(256,1,1) lds=149504
; @launch kernel=k3_kernel grid=(256,1,1) block=(256,1,1) lds=149504
; @launch kernel=k4_kernel grid=(256,1,1) block=(256,1,1) lds=163840
.amdgcn_target "amdgcn-amd-amdhsa--gfx950"
.text
"""
    tail = '.section .rodata,"a"\n' + desc("k0_kernel", 128) + desc("k1_kernel", 256) + desc("k2_kernel", 192) + desc("k3_kernel", 256) + desc("k4_kernel", 128)
    out = head + a.render() + tail
    args = [x for x in sys.argv[1:] if not x.startswith("-")]
    path = args[0] if args else f"cdna_kernels/{NAME}.s"
    open(path, "w").write(out)
    print("wrote", path, len(out))
main()
```

```python
import sys
sys.path.insert(0, 'work')
from asmlib import Asm

NAME = "adaLN_cond__sliding_local_dilated__glu_gated_swiglu__prompt"
A_X, A_WQKV, A_WO, A_BX, A_W1, A_W3, A_W2, A_C, A_WMOD, A_OUT, A_DBG, A_WS = [8*i for i in range(12)]
MODP = 0
MODF = 0x10000
UT   = 0x14000
ST   = 0x40000
XN   = 0x100000
WQ   = 0x300000
OO   = 0x500000
WO   = 0x700000
X1   = 0x800000
W13  = 0xA00000
HH   = 0xD00000
W2   = 0x1300000
WS_BYTES = 0x2000000
LOG2E = 0x3fb8aa3b
PROF = "-p" in sys.argv
WT = " sc1" if "-wt" in sys.argv else (" nt" if "-nt" in sys.argv else "")
PROFB = 0x1800000
TIMER = "s_memtime" if "-c" in sys.argv else "s_memrealtime"
def opt(name, default):
    for x in sys.argv:
        if x.startswith(f"-{name}="): return int(x.split("=")[1])
    return default

class Prof:
    def __init__(self, a, kid): self.a, self.kid, self.n = a, kid, 0
    def stamp(self):
        if not PROF: return
        self.a.I(f"{TIMER} s[{60+2*self.n}:{61+2*self.n}]"); self.a.WAITALL(vm=False)
        self.n += 1
    def flush(self):
        if not PROF: return
        a = self.a
        a.WAITALL()
        a.I(f"{TIMER} s[{60+2*self.n}:{61+2*self.n}]\ns_waitcnt lgkmcnt(0)")
        a.I(f"s_lshl_b32 s58, s2, 3\ns_add_u32 s58, s58, s3\ns_lshl_b32 s58, s58, 7\ns_add_u32 s58, s58, {PROFB + self.kid*0x80000}\nv_mov_b32 v0, 0")
        for i in range(self.n+1):
            a.I(f"v_mov_b32 v2, s{60+2*i}\nv_mov_b32 v3, s{61+2*i}\nbuffer_store_dwordx2 v[2:3], v0, s[8:11], s58 offen offset:{8*i}")

def srd(a, d, b, nbytes):
    a.I(f"s_mov_b32 s{d}, s{b}\ns_and_b32 s{d+1}, s{b+1}, 0xffff\ns_mov_b32 s{d+2}, {nbytes}\ns_mov_b32 s{d+3}, 0x00020000")
def header(a, name):
    a.T(f".globl {name}\n.p2align 8\n.type {name},@function\n{name}:"); a.reset()
def desc(name, vgpr, agpr=0, sgpr=96):
    acc = (vgpr + 3) // 4 * 4
    return f""".p2align 6
.amdhsa_kernel {name}
  .amdhsa_next_free_vgpr {acc + agpr if agpr else vgpr}
  .amdhsa_next_free_sgpr {sgpr}
  .amdhsa_accum_offset {acc}
  .amdhsa_group_segment_fixed_size 0
  .amdhsa_kernarg_size 96
  .amdhsa_user_sgpr_count 2
  .amdhsa_user_sgpr_kernarg_segment_ptr 1
  .amdhsa_system_sgpr_workgroup_id_x 1
.end_amdhsa_kernel
"""
def round_bf16(a, dst, src):
    a.I(f"v_cvt_pk_bf16_f32 v{dst}, v{src}, v{src}\nv_lshlrev_b32 v{dst}, 16, v{dst}")
def transpose8x8(a, R, D, s_lo, s_hi):
    for c in range(4):
        for e in range(2):
            n = 2*c + e
            for jj in range(4):
                a.I(f"v_perm_b32 v{D+4*n+jj}, v{R+4*(2*jj+1)+c}, v{R+4*(2*jj)+c}, s{s_hi if e else s_lo}")

def chained_addr(a, unit_s, R):
    a.I(f"""
    s_and_b32 s35, s{unit_s}, 7
    s_lshr_b32 s34, s{unit_s}, 3
    v_lshrrev_b32 v3, 4, v2
    v_bfe_u32 v12, v2, 3, 1
    v_and_b32 v4, 7, v2
    v_lshlrev_b32 v5, 14, v3
    v_lshl_add_u32 v5, v12, 12, v5
    v_lshl_add_u32 v5, v4, 4, v5
    v_add_u32 v9, 8192, v5
    s_lshl_b32 s36, s34, 16
    s_lshl_b32 s37, s35, 7
    s_add_u32 s36, s36, s37
    """)
def chained_loads(a, R, sr, tag=None):
    for j in range(8):
        a.VM(f"buffer_load_dwordx4 v[{R+4*j}:{R+3+4*j}], v{5 if j < 4 else 9}, s[{sr}:{sr+3}], s36 offen offset:{1024*(j%4)}", tag)
def chained_dst(a, tmax, dst, ct_stride):
    a.I(f"""
    s_mul_i32 s36, s35, {2*ct_stride}
    s_lshl_b32 s37, s34, 12
    s_add_u32 s36, s36, s37
    s_add_u32 s36, s36, {dst}
    v_lshrrev_b32 v6, 2, v4
    s_mov_b32 s38, {ct_stride}
    v_mul_lo_u32 v6, v6, s38
    v_lshl_add_u32 v6, v3, 10, v6
    v_lshl_add_u32 v6, v12, 9, v6
    v_and_b32 v7, 3, v4
    v_lshl_add_u32 v6, v7, 7, v6
    s_lshl_b32 s37, s34, 2
    v_add_u32 v7, s37, v3
    v_cmp_gt_u32 vcc, {tmax}, v7
    v_mov_b32 v7, 0x7ff00000
    v_cndmask_b32 v6, v7, v6, vcc
    """)

def chained_store(a, R, D, dst, ct_stride, last_kb):
    a.I(f"""
    v_lshrrev_b32 v6, 2, v4
    v_lshl_add_u32 v6, v6, 2, v3
    v_lshlrev_b32 v6, 10, v6
    v_lshl_add_u32 v6, v12, 9, v6
    v_and_b32 v7, 3, v4
    v_lshl_add_u32 v6, v7, 7, v6
    s_lshl_b32 s42, s3, 13
    v_add_u32 v6, s42, v6
    v_add_u32 v7, s42, v8
    s_mul_i32 s36, s35, {2*ct_stride}
    s_lshl_b32 s37, s34, 12
    s_add_u32 s36, s36, s37
    s_add_u32 s36, s36, {dst}
    s_add_u32 s37, s36, {ct_stride}
    s_cmp_eq_u32 s34, {last_kb}
    s_cselect_b32 s42, 0x7ff00000, 0
    v_add_u32 v9, s42, v8
    s_waitcnt vmcnt(0)
    """)
    transpose8x8(a, R, D, 40, 41)
    for i in range(8): a.I(f"ds_write_b128 v6, v[{D+4*i}:{D+3+4*i}] offset:{16*i}")
    a.I("s_waitcnt lgkmcnt(0)")
    for f in range(8): a.I(f"ds_read_b128 v[{D+4*f}:{D+3+4*f}], v7 offset:{1024*f}")
    a.I("s_waitcnt lgkmcnt(0)")
    for f in range(8):
        a.I(f"buffer_store_dwordx4 v[{D+4*f}:{D+3+4*f}], {'v8' if f%4 < 2 else 'v9'}, s[8:11], {'s36' if f < 4 else 's37'} offen offset:{1024*(f%4)}")

def gen_k0(a):
    header(a, "k0_kernel")
    P = Prof(a, 0); P.stamp()
    a.I(f"""
    s_load_dwordx2 s[6:7], s[0:1], {A_WS}
    s_load_dwordx4 s[16:19], s[0:1], {A_X}
    s_load_dwordx2 s[20:21], s[0:1], {A_WO}
    s_load_dwordx4 s[28:31], s[0:1], {A_C}
    v_lshrrev_b32 v1, 6, v0
    v_and_b32 v2, 63, v0
    v_readfirstlane_b32 s3, v1
    s_mov_b32 s40, 0x05040100
    s_mov_b32 s41, 0x07060302
    s_waitcnt lgkmcnt(0)
    """)
    srd(a, 8, 6, WS_BYTES)
    a.I("""
    s_cmp_lt_u32 s2, 192
    s_cbranch_scc1 K0_MOD
    s_cmp_lt_u32 s2, 256
    s_cbranch_scc1 K0_XN
    s_cmp_lt_u32 s2, 304
    s_cbranch_scc1 K0_WQ
    s_cmp_lt_u32 s2, 320
    s_cbranch_scc1 K0_WO
    s_endpgm
    """)
    a.T("K0_MOD:"); a.reset()
    srd(a, 12, 30, 512*3072*2)
    srd(a, 52, 28, 1024)
    a.I(f"""
    s_mov_b32 s32, 0x5555556
    s_mul_hi_u32 s33, s2, s32
    s_mul_i32 s34, s33, 48
    s_sub_u32 s34, s2, s34
    v_lshrrev_b32 v3, 3, v0
    v_and_b32 v4, 7, v0
    s_lshl_b32 s35, s33, 8
    v_lshlrev_b32 v5, 3, v3
    buffer_load_dwordx2 v[6:7], v5, s[52:55], s35 offen
    s_mul_i32 s36, s33, {128*6144}
    s_lshl_b32 s37, s34, 7
    s_add_u32 s36, s36, s37
    s_mov_b32 s38, {4*6144}
    v_mul_lo_u32 v8, v3, s38
    v_lshl_add_u32 v8, v4, 4, v8
    v_add_u32 v9, 6144, v8
    v_add_u32 v10, {2*6144}, v8
    v_add_u32 v11, {3*6144}, v8
    buffer_load_dwordx4 v[16:19], v8, s[12:15], s36 offen
    buffer_load_dwordx4 v[20:23], v9, s[12:15], s36 offen
    buffer_load_dwordx4 v[24:27], v10, s[12:15], s36 offen
    buffer_load_dwordx4 v[28:31], v11, s[12:15], s36 offen
    s_mov_b32 s39, {LOG2E}
    s_waitcnt vmcnt(4)
    v_lshlrev_b32 v12, 16, v6
    v_and_b32 v13, 0xffff0000, v6
    v_lshlrev_b32 v14, 16, v7
    v_and_b32 v15, 0xffff0000, v7
    """)
    for i in range(4):
        r = 12 + i
        a.I(f"v_mul_f32 v32, s39, v{r}\nv_exp_f32 v32, -v32\nv_add_f32 v32, 1.0, v32\nv_rcp_f32 v32, v32\nv_mul_f32 v{r}, v{r}, v32")
        round_bf16(a, r, r)
    a.I("s_waitcnt vmcnt(0)")
    P.stamp()
    for i in range(4):
        for c in range(4):
            a.I(f"v_lshlrev_b32 v33, 16, v{16+4*i+c}\nv_and_b32 v34, 0xffff0000, v{16+4*i+c}")
            op = "v_mul_f32" if i == 0 else "v_fmac_f32"
            a.I(f"{op} v{40+2*c}, v{12+i}, v33\n{op} v{41+2*c}, v{12+i}, v34")
    a.I(f"""
    v_lshlrev_b32 v5, 5, v0
    ds_write_b128 v5, v[40:43]
    ds_write_b128 v5, v[44:47] offset:16
    s_waitcnt lgkmcnt(0)
    s_barrier
    s_cmp_lg_u32 s3, 0
    s_cbranch_scc1 K0_END
    v_lshlrev_b32 v5, 2, v0
    """)
    for kg in range(32):
        a.I(f"ds_read_b32 v{16+kg}, v5 offset:{kg*256}")
    a.I("s_waitcnt lgkmcnt(0)")
    for st in (16, 8, 4, 2, 1):
        for kg in range(st):
            a.I(f"v_add_f32 v{16+kg}, v{16+kg}, v{16+kg+st}")
    a.I(f"""
    s_mul_i32 s36, s33, {3072*4}
    s_lshl_b32 s37, s34, 8
    s_add_u32 s36, s36, s37
    buffer_store_dword v16, v5, s[8:11], s36 offen
    """)
    P.flush()
    a.I("s_endpgm")
    a.T("K0_XN:"); a.reset()
    Px = Prof(a, 5); Px.n = 1
    srd(a, 12, 16, 2048*1024)
    a.I(f"""
    s_sub_u32 s33, s2, 192
    v_and_b32 v3, 31, v2
    v_lshrrev_b32 v4, 5, v2
    v_lshlrev_b32 v5, 10, v3
    v_lshl_add_u32 v5, v4, 7, v5
    s_lshl_b32 s34, s33, 15
    s_lshl_b32 s35, s3, 8
    s_add_u32 s34, s34, s35
    """)
    for s in range(8):
        a.I(f"buffer_load_dwordx4 v[{16+4*s}:{19+4*s}], v5, s[12:15], s34 offen offset:{16*s}")
    a.I("s_waitcnt vmcnt(0)")
    Px.stamp()
    for d in range(32):
        a.I(f"v_lshlrev_b32 v{64+2*d}, 16, v{16+d}\nv_and_b32 v{65+2*d}, 0xffff0000, v{16+d}")
    def halfsum(src):
        a.I(f"v_mov_b32 v7, v{src}\nv_permlane32_swap_b32 v{src}, v7\nv_add_f32 v{src}, v{src}, v7")
    for c in range(4): a.I(f"v_add_f32 v{10+c}, v{64+c}, v{68+c}")
    for d in range(8, 64): a.I(f"v_add_f32 v{10+d%4}, v{10+d%4}, v{64+d}")
    a.I("v_add_f32 v10, v10, v11\nv_add_f32 v12, v12, v13\nv_add_f32 v6, v10, v12")
    halfsum(6)
    a.I(f"""
    v_lshlrev_b32 v8, 2, v3
    s_lshl_b32 s35, s3, 7
    v_add_u32 v9, s35, v8
    ds_write_b32 v9, v6
    s_waitcnt lgkmcnt(0)
    s_barrier
    ds_read_b32 v10, v8
    ds_read_b32 v11, v8 offset:128
    ds_read_b32 v12, v8 offset:256
    ds_read_b32 v13, v8 offset:384
    s_waitcnt lgkmcnt(0)
    v_add_f32 v10, v10, v11
    v_add_f32 v12, v12, v13
    v_add_f32 v10, v10, v12
    v_mul_f32 v14, 0x3b000000, v10
    """)
    for d in range(64):
        a.I(f"v_sub_f32 v7, v{64+d}, v14")
        a.I(f"v_mul_f32 v{10+d}, v7, v7" if d < 4 else f"v_fmac_f32 v{10+d%4}, v7, v7")
    a.I("v_add_f32 v10, v10, v11\nv_add_f32 v12, v12, v13\nv_add_f32 v6, v10, v12")
    halfsum(6)
    a.I(f"""
    ds_write_b32 v9, v6 offset:512
    s_waitcnt lgkmcnt(0)
    s_barrier
    ds_read_b32 v10, v8 offset:512
    ds_read_b32 v11, v8 offset:640
    ds_read_b32 v12, v8 offset:768
    ds_read_b32 v13, v8 offset:896
    s_waitcnt lgkmcnt(0)
    v_add_f32 v10, v10, v11
    v_add_f32 v12, v12, v13
    v_add_f32 v10, v10, v12
    v_mul_f32 v15, 0x3b000000, v10
    """)
    round_bf16(a, 14, 14); round_bf16(a, 15, 15)
    a.I("v_add_f32 v15, 0x3727c5ac, v15"); round_bf16(a, 15, 15)
    a.I("v_sqrt_f32 v15, v15"); round_bf16(a, 15, 15)
    a.I("v_rcp_f32 v15, v15")
    a.I(f"""
    v_lshlrev_b32 v8, 4, v2
    s_lshl_b32 s34, s33, 15
    s_lshl_b32 s35, s3, 13
    s_add_u32 s34, s34, s35
    s_add_u32 s34, s34, {XN}
    """)
    for d in range(32):
        lo, hi = 64+2*d, 65+2*d
        a.I(f"""
        v_sub_f32 v{lo}, v{lo}, v14
        v_sub_f32 v{hi}, v{hi}, v14
        v_cvt_pk_bf16_f32 v6, v{lo}, v{hi}
        v_lshlrev_b32 v{lo}, 16, v6
        v_and_b32 v{hi}, 0xffff0000, v6
        v_mul_f32 v{lo}, v{lo}, v15
        v_mul_f32 v{hi}, v{hi}, v15
        v_cvt_pk_bf16_f32 v{16+d}, v{lo}, v{hi}
        """)
        if d % 4 == 3:
            ss = d // 4
            if ss == 4: a.I("s_add_u32 s34, s34, 4096")
            a.I(f"buffer_store_dwordx4 v[{16+4*ss}:{19+4*ss}], v8, s[8:11], s34 offen offset:{1024*(ss%4)}{WT}")
    Px.flush()
    a.I("s_endpgm")
    a.T("K0_WQ:"); a.reset()
    srd(a, 12, 18, 512*3072)
    a.I(f"""
    s_sub_u32 s33, s2, 256
    s_lshl_b32 s33, s33, 2
    s_add_u32 s33, s33, s3
    s_mov_b32 s32, 0xaaaaaab
    s_mul_hi_u32 s34, s33, s32
    s_mul_i32 s35, s34, 24
    s_sub_u32 s35, s33, s35
    v_lshrrev_b32 v3, 3, v2
    v_and_b32 v4, 7, v2
    s_mov_b32 s38, {8*3072}
    v_mul_lo_u32 v5, v3, s38
    v_lshl_add_u32 v5, v4, 4, v5
    s_mul_i32 s36, s34, {64*3072}
    s_lshl_b32 s37, s35, 7
    s_add_u32 s36, s36, s37
    """)
    for j in range(8):
        a.I(f"buffer_load_dwordx4 v[{16+4*j}:{19+4*j}], v5, s[12:15], s36 offen")
        if j < 7: a.I("s_add_u32 s36, s36, 3072")
    a.I(f"""
    s_and_b32 s36, s35, 7
    s_mul_i32 s36, s36, {2*98304}
    s_lshr_b32 s37, s35, 3
    s_lshl_b32 s37, s37, 10
    s_add_u32 s36, s36, s37
    s_lshr_b32 s37, s34, 1
    s_mul_i32 s37, s37, {8*3072}
    s_add_u32 s36, s36, s37
    s_and_b32 s37, s34, 1
    s_lshl_b32 s37, s37, 9
    s_add_u32 s36, s36, s37
    s_add_u32 s36, s36, {WQ}
    v_lshrrev_b32 v6, 2, v4
    v_lshl_add_u32 v6, v6, 3, v3
    v_lshlrev_b32 v6, 9, v6
    v_and_b32 v7, 3, v4
    v_lshl_add_u32 v6, v7, 7, v6
    s_lshl_b32 s42, s3, 13
    v_add_u32 v6, s42, v6
    v_lshlrev_b32 v7, 4, v2
    v_add_u32 v7, s42, v7
    v_lshrrev_b32 v9, 5, v2
    v_mul_u32_u24 v9, 3072, v9
    v_and_b32 v10, 31, v2
    v_lshl_add_u32 v9, v10, 4, v9
    s_waitcnt vmcnt(0)
    """)
    transpose8x8(a, 16, 64, 40, 41)
    for i in range(8): a.I(f"ds_write_b128 v6, v[{64+4*i}:{67+4*i}] offset:{16*i}")
    a.I("s_waitcnt lgkmcnt(0)")
    for f in range(8): a.I(f"ds_read_b128 v[{64+4*f}:{67+4*f}], v7 offset:{1024*f}")
    a.I("s_waitcnt lgkmcnt(0)")
    for f in range(8):
        a.I(f"buffer_store_dwordx4 v[{64+4*f}:{67+4*f}], v9, s[8:11], s36 offen{WT}")
        a.I(f"s_add_u32 s36, s36, {6144 if f != 3 else 98304 - 3*6144}")
    Pq = Prof(a, 6); Pq.n = 1; Pq.flush()
    a.I("s_endpgm")
    a.T("K0_WO:"); a.reset()
    srd(a, 12, 20, 512*1024)
    a.I("s_sub_u32 s33, s2, 304\ns_lshl_b32 s33, s33, 2\ns_add_u32 s33, s33, s3")
    a.I("v_lshlrev_b32 v8, 4, v2")
    chained_addr(a, 33, 16); chained_loads(a, 16, 12)
    chained_store(a, 16, 64, WO, 32768, 999)
    a.T("K0_END:")
    a.I("s_endpgm")

def wg_map(a, mode):
    if mode == "r4c2":
        a.I("""
        s_bfe_u32 s33, s2, 0x20001
        s_lshl_b32 s33, s33, 2
        s_bfe_u32 s34, s2, 0x20003
        s_add_u32 s33, s33, s34
        s_and_b32 s34, s2, 1
        s_lshl_b32 s34, s34, 3
        s_lshr_b32 s35, s2, 5
        s_add_u32 s34, s34, s35
        """)
    elif mode == "r2c4":
        a.I("""
        s_bfe_u32 s33, s2, 0x10002
        s_lshl_b32 s33, s33, 3
        s_bfe_u32 s34, s2, 0x30003
        s_add_u32 s33, s33, s34
        s_and_b32 s34, s2, 3
        s_lshl_b32 s34, s34, 2
        s_lshr_b32 s35, s2, 6
        s_add_u32 s34, s34, s35
        """)
    elif mode == "sq":
        a.I("""
        s_bfe_u32 s33, s2, 0x20001
        s_lshl_b32 s33, s33, 3
        s_bfe_u32 s34, s2, 0x30003
        s_add_u32 s33, s33, s34
        s_and_b32 s34, s2, 1
        s_lshl_b32 s34, s34, 2
        s_lshr_b32 s35, s2, 6
        s_add_u32 s34, s34, s35
        """)

def gen_k1(a):
    NS, CH = 4, 28672
    TAB = NS*CH; BIAS = TAB + 4096; HC = BIAS + 3072
    KT, VT = 0, 9216
    header(a, "k1_kernel")
    P = Prof(a, 1); P.stamp()
    a.I(f"""
    s_cmp_ge_u32 s2, 256
    s_cbranch_scc1 K1_END
    s_load_dwordx2 s[4:5], s[0:1], {A_WS}
    s_load_dwordx4 s[24:27], s[0:1], {A_W1}
    v_lshrrev_b32 v1, 6, v0
    v_and_b32 v2, 63, v0
    v_readfirstlane_b32 s3, v1
    """)
    wg_map(a, "r4c2")
    a.I(f"""
    v_lshlrev_b32 v8, 4, v2
    s_and_b32 s50, s3, 3
    s_lshl_b32 s36, s33, 2
    s_add_u32 s36, s36, s50
    s_cmp_ge_u32 s3, 4
    s_cbranch_scc1 K1_LOADER
    v_lshlrev_b32 v3, 3, v0
    s_waitcnt lgkmcnt(0)
    """)
    srd(a, 8, 4, WS_BYTES)
    for ks in range(4):
        a.I(f"s_mov_b32 s35, {MODP + ks*12288}")
        a.VM(f"buffer_load_dwordx2 v[{16+2*ks}:{17+2*ks}], v3, s[8:11], s35 offen", 'm')
        a.VM(f"buffer_load_dwordx2 v[{24+2*ks}:{25+2*ks}], v3, s[8:11], s35 offen offset:2048", 'm')
    ACC, AF, XB = 112, 32, 80
    a.I(f"""
    v_lshrrev_b32 v4, 6, v0
    v_bfe_u32 v5, v0, 2, 3
    v_lshl_add_u32 v4, v4, 3, v5
    v_bfe_u32 v5, v0, 5, 1
    v_lshl_add_u32 v4, v4, 1, v5
    v_and_b32 v5, 3, v0
    v_lshlrev_b32 v4, 5, v4
    v_lshl_add_u32 v4, v5, 3, v4
    v_add_u32 v4, {TAB}, v4
    s_lshl_b32 s35, s3, 12
    s_add_u32 s35, s35, 12288
    v_mov_b32 v9, v8
    v_add_u32 v10, s35, v8
    v_add_u32 v11, {CH}, v9
    v_add_u32 v12, {CH}, v10
    v_add_u32 v13, {BIAS}, v8
    s_mov_b32 s40, {CH}
    s_mov_b32 s41, 0
    s_mov_b32 s43, {-CH & 0xffffffff}
    """)
    for i in range(48): a.I(f"v_mov_b32 v{ACC+i}, 0")
    for d in range(4): a.I(f"v_mov_b32 v{96+d}, 0x3f803f80")
    a.WAIT(vm='m')
    for o in (16, 24):
        for e in range(2):
            r = o+e
            a.I(f"v_add_f32 v{r}, v{r}, v{r+2}\nv_add_f32 v{r+4}, v{r+4}, v{r+6}\nv_add_f32 v{r}, v{r}, v{r+4}")
            round_bf16(a, r, r)
    for e in range(2):
        a.I(f"v_add_f32 v{24+e}, 1.0, v{24+e}"); round_bf16(a, 24+e, 24+e)
    a.I("ds_write_b64 v4, v[24:25]\nds_write_b64 v4, v[16:17] offset:2048\ns_waitcnt lgkmcnt(0)\ns_barrier")
    P.stamp()
    a.I("s_barrier"); P.stamp()
    def fread(i, nxt):
        ra, rb = ("v11", "v12") if nxt else ("v9", "v10")
        a.DS(f"ds_read_b128 v[{XB+4*i}:{XB+4*i+3}], {rb} offset:{i*1024}", f"a{i}")
        for ty in range(3):
            a.DS(f"ds_read_b128 v[{AF+12*i+4*ty}:{AF+12*i+4*ty+3}], {ra} offset:{i*3072 + ty*1024}", f"a{i}")
    fread(0, False); fread(1, False)
    a.T("K1_LOOP:")
    for i in range(4):
        if i == 2: a.I("s_barrier")
        fread((i+2) % 4, i >= 2)
        a.I("s_waitcnt lgkmcnt(8)")
        for ty in range(3):
            a.I(f"v_mfma_f32_32x32x16_bf16 v[{ACC+16*ty}:{ACC+16*ty+15}], v[{AF+12*i+4*ty}:{AF+12*i+4*ty+3}], v[{XB+4*i}:{XB+4*i+3}], v[{ACC+16*ty}:{ACC+16*ty+15}]")
    a.I(f"""
    v_mov_b32 v9, v11
    v_mov_b32 v10, v12
    s_add_u32 s40, s40, {CH}
    s_cmp_eq_u32 s40, {NS*CH}
    s_cselect_b32 s42, {(NS-1)*CH}, s43
    s_cselect_b32 s40, 0, s40
    v_subrev_u32 v11, s42, v11
    v_subrev_u32 v12, s42, v12
    s_add_u32 s41, s41, 1
    s_cmp_lt_u32 s41, 8
    s_cbranch_scc1 K1_LOOP
    """)
    a.dsq = []
    for ty in range(3): a.I(f"ds_read_b128 v[{AF+24+4*ty}:{AF+27+4*ty}], v13 offset:{ty*1024}")
    a.I("s_waitcnt lgkmcnt(0)")
    for ty in range(3):
        a.I(f"v_mfma_f32_32x32x16_bf16 v[{ACC+16*ty}:{ACC+16*ty+15}], v[{AF+24+4*ty}:{AF+27+4*ty}], v[96:99], v[{ACC+16*ty}:{ACC+16*ty+15}]")
    P.stamp()
    a.I("s_barrier")
    QP, KP = 96, 24
    QPX = QP
    a.I(f"""
    v_and_b32 v3, 31, v2
    v_lshrrev_b32 v4, 5, v2
    s_lshl_b32 s35, s3, 5
    v_add_u32 v5, s35, v3
    v_add_u32 v5, 16, v5
    v_mul_u32_u24 v6, {144*16}, v4
    v_lshl_add_u32 v15, v5, 4, v6
    v_add_u32 v15, {KT}, v15
    v_mul_u32_u24 v6, {2*144*16}, v4
    v_lshl_add_u32 v7, v5, 4, v6
    v_add_u32 v7, {VT}, v7
    """)
    for d in range(8): a.I(f"v_cvt_pk_bf16_f32 v{KP+d}, v{ACC+16+2*d}, v{ACC+17+2*d}")
    for d in range(8):
        a.I(f"v_cvt_pk_bf16_f32 v9, v{ACC+32+2*d}, v{ACC+33+2*d}\nv_lshlrev_b32 v{ACC+32+2*d}, 16, v9\nv_and_b32 v{ACC+33+2*d}, 0xffff0000, v9")
    V0 = ACC+32
    for x in [f"ds_write_b128 v15, v[{KP}:{KP+3}]", f"ds_write_b128 v15, v[{KP+4}:{KP+7}] offset:{2*144*16}",
              f"ds_write_b128 v7, v[{V0}:{V0+3}]", f"ds_write_b128 v7, v[{V0+4}:{V0+7}] offset:{144*16}",
              f"ds_write_b128 v7, v[{V0+8}:{V0+11}] offset:{4*144*16}", f"ds_write_b128 v7, v[{V0+12}:{V0+15}] offset:{5*144*16}"]:
        a.I(x)
    for d in range(8): a.I(f"v_cvt_pk_bf16_f32 v{QP+d}, v{ACC+2*d}, v{ACC+1+2*d}")
    a.I("v_subrev_u32 v15, 224, v15\nv_subrev_u32 v7, 224, v7\ns_waitcnt lgkmcnt(0)\ns_barrier")
    P.stamp()
    for e in range(2):
        for w in range(8):
            a.DS(f"ds_read_b128 v[{32+(e*8+w)*4}:{35+(e*8+w)*4}], v15 offset:{e*2*144*16 + (7-w)*32}", f"k{e}{w//4}")
    VBS = [104+8, 32]
    VBS = [104, 32]
    LG = 16
    def vread(e, w):
        for aa in range(2):
            r = VBS[e] + (w*2+aa)*4
            a.DS(f"ds_read_b128 v[{r}:{r+3}], v7 offset:{e*4*144*16 + aa*144*16 + (7-w)*32}", f"v{e}{w//2}")
    for e in range(2):
        for w in range(8):
            if w % 4 == 0: a.WAIT(ds=f"k{e}{w//4}")
            kb = 32+(e*8+w)*4
            a.I(f"v_dot2_f32_bf16 v{LG+e*8+w}, v{QPX+4*e}, v{kb}, 0")
            for d in range(1, 4):
                a.I(f"v_dot2_f32_bf16 v{LG+e*8+w}, v{QPX+4*e+d}, v{kb+d}, v{LG+e*8+w}")
            if e == 0: vread(0, w)
    for w in range(8): vread(1, w)
    for w in range(8): a.I(f"v_permlane32_swap_b32 v{LG+w}, v{LG+8+w}")
    for w in range(8): a.I(f"v_add_f32 v{LG+w}, v{LG+w}, v{LG+8+w}")
    for w in range(0, 8, 2):
        a.I(f"v_cvt_pk_bf16_f32 v5, v{LG+w}, v{LG+w+1}\nv_lshlrev_b32 v{LG+w}, 16, v5\nv_and_b32 v{LG+w+1}, 0xffff0000, v5")
    a.I(f"s_mov_b32 s35, 0x3eb8aa3b\ns_cmp_lg_u32 s36, 0\ns_cbranch_scc1 K1_NOMASK\nv_and_b32 v3, 31, v2\nv_mov_b32 v4, 0xcf6e6b28")
    for w in range(1, 8):
        a.I(f"v_cmp_le_u32 vcc, {2*w}, v3\nv_cndmask_b32 v{LG+w}, v4, v{LG+w}, vcc")
    a.T("K1_NOMASK:")
    a.I(f"v_max3_f32 v5, v{LG}, v{LG+1}, v{LG+2}\nv_max3_f32 v6, v{LG+3}, v{LG+4}, v{LG+5}\nv_max3_f32 v5, v5, v{LG+6}, v{LG+7}\nv_max_f32 v5, v5, v6")
    for w in range(8): a.I(f"v_sub_f32 v{LG+w}, v{LG+w}, v5")
    for w in range(8): a.I(f"v_mul_f32 v{LG+w}, s35, v{LG+w}")
    for w in range(8): a.I(f"v_exp_f32 v{LG+w}, v{LG+w}")
    a.I(f"v_add_f32 v5, v{LG}, v{LG+1}\nv_add_f32 v6, v{LG+2}, v{LG+3}\nv_add_f32 v9, v{LG+4}, v{LG+5}\nv_add_f32 v10, v{LG+6}, v{LG+7}\nv_add_f32 v5, v5, v6\nv_add_f32 v9, v9, v10\nv_add_f32 v6, v5, v9\nv_rcp_f32 v6, v6")
    for w in range(8): a.I(f"v_mul_f32 v{LG+w}, v{LG+w}, v6")
    for w in range(0, 8, 2):
        a.I(f"v_cvt_pk_bf16_f32 v5, v{LG+w}, v{LG+w+1}\nv_lshlrev_b32 v{LG+w}, 16, v5\nv_and_b32 v{LG+w+1}, 0xffff0000, v5")
    for w in range(8): a.I(f"v_mov_b32 v{LG+8+w}, v{LG+w}")
    for w in range(8): a.I(f"v_permlane32_swap_b32 v{LG+w}, v{LG+8+w}")
    OA = 96
    a.I(f"s_lshl_b32 s37, s36, 15\ns_lshl_b32 s38, s34, 11\ns_add_u32 s37, s37, s38\ns_add_u32 s37, s37, {OO}")
    for e in range(2):
        for w in range(8):
            if w % 2 == 0: a.WAIT(ds=f"v{e}{w//2}")
            for q in range(8):
                r = VBS[e] + w*8 + q
                a.I(f"v_mul_f32 v{OA+q}, v{LG+8*e+w}, v{r}" if w == 0 else f"v_fmac_f32 v{OA+q}, v{LG+8*e+w}, v{r}")
        for d in range(4): a.I(f"v_cvt_pk_bf16_f32 v{8+4*e+2+d}, v{OA+2*d}, v{OA+2*d+1}" if False else f"v_cvt_pk_bf16_f32 v{104+4*e+d}, v{OA+2*d}, v{OA+2*d+1}")
        a.I(f"buffer_store_dwordx4 v[{104+4*e}:{107+4*e}], v8, s[8:11], s37 offen offset:{1024*e}{WT}")
    P.stamp(); P.flush()
    a.I("s_endpgm")
    a.T("K1_LOADER:"); a.reset()
    WR, HB, HA, BA, TBL, MT = 64, 112, 144, 148, 32, 16
    a.I(f"""
    s_lshr_b32 s51, s3, 3            ; grp
    s_lshl_b32 s37, s36, 15
    s_lshl_b32 s43, s51, 12
    s_add_u32 s37, s37, s43
    s_add_u32 s37, s37, {XN}
    s_mul_i32 s39, s50, 3072
    s_mul_i32 s38, s34, 98304
    s_add_u32 s38, s38, {WQ}
    s_add_u32 s38, s38, s39
    s_mul_i32 s43, s51, 12288
    s_add_u32 s38, s38, s43          ; W src
    s_mul_i32 s44, s51, {CH}
    s_lshl_b32 s42, s50, 12
    s_add_u32 s42, s42, 12288
    s_add_u32 s42, s42, s44
    v_and_b32 v4, 15, v2
    v_lshrrev_b32 v5, 4, v2
    v_lshrrev_b32 v6, 1, v5
    v_and_b32 v7, 1, v5
    v_lshlrev_b32 v9, 10, v6
    v_lshl_add_u32 v9, v7, 9, v9
    v_lshl_add_u32 v9, v4, 4, v9
    v_add_u32 v9, 256, v9
    s_lshl_b32 s41, s33, 2
    s_sub_u32 s41, s41, 1
    s_max_i32 s41, s41, 0
    s_lshl_b32 s41, s41, 15
    s_lshl_b32 s43, s51, 12
    s_add_u32 s41, s41, s43
    s_add_u32 s41, s41, {XN}
    v_mul_u32_u24 v13, 3072, v6
    v_lshl_add_u32 v13, v7, 9, v13
    v_lshl_add_u32 v13, v4, 4, v13
    s_lshr_b32 s43, s50, 1
    s_add_u32 s43, s43, 1
    s_lshl_b32 s43, s43, 10
    s_and_b32 s45, s50, 1
    s_lshl_b32 s45, s45, 8
    s_add_u32 s43, s43, s45
    v_lshlrev_b32 v15, 9, v7
    v_lshl_add_u32 v15, v4, 4, v15
    v_add_u32 v15, s43, v15
    v_add_u32 v15, {BIAS}, v15
    s_add_u32 s43, s43, s44
    v_add_u32 v13, s43, v13
    v_add_u32 v14, {2*CH}, v13
    v_lshrrev_b32 v5, 5, v2
    v_lshlrev_b32 v10, 5, v5
    s_lshl_b32 s43, s50, 6
    s_lshl_b32 s45, s51, 8
    s_add_u32 s43, s43, s45
    v_add_u32 v10, s43, v10
    v_add_u32 v10, {TAB}, v10
    s_add_u32 s43, s39, s44
    v_add_u32 v11, s43, v8
    v_add_u32 v12, {2*CH}, v11
    s_waitcnt lgkmcnt(0)
    """)
    srd(a, 8, 4, WS_BYTES)
    def issue_w(i):
        for ty in range(3):
            r = WR + 12*i + 4*ty
            a.VM(f"buffer_load_dwordx4 v[{r}:{r+3}], v8, s[8:11], s38 offen offset:{1024*ty}", f"w{i}")
        a.I("s_add_u32 s38, s38, 24576")
    def issue_b(i):
        a.I(f"s_add_u32 m0, s42, {(i%2)*2*CH}")
        for q in range(4): a.VM(f"buffer_load_dwordx4 v8, s[8:11], s37 offen offset:{1024*q} lds", f"b{i}")
        a.I("s_add_u32 s37, s37, 8192")
    def issue_h(i):
        for q in range(2):
            a.VM(f"buffer_load_dwordx4 v[{HB+8*i+4*q}:{HB+8*i+4*q+3}], v9, s[8:11], s41 offen offset:{2048*q}", f"h{i}")
        a.I("s_add_u32 s41, s41, 8192")
    issue_w(0); issue_b(0); issue_w(1)
    a.I(f"""
    v_and_b32 v3, 255, v0
    v_lshlrev_b32 v3, 2, v3
    s_lshl_b32 s35, s2, 10
    s_cmp_ge_u32 s2, 12
    s_cbranch_scc1 K1_NOFL
    buffer_load_dword v154, v3, s[8:11], s35 offen
    s_add_u32 s43, s35, 12288
    buffer_load_dword v155, v3, s[8:11], s43 offen
    s_add_u32 s43, s35, 24576
    buffer_load_dword v156, v3, s[8:11], s43 offen
    s_add_u32 s43, s35, 36864
    buffer_load_dword v157, v3, s[8:11], s43 offen
    """)
    a.T("K1_NOFL:")
    a.I("s_barrier")
    def prep(i, mid=None):
        for q in range(4):
            a.DS(f"ds_read_b128 v[{TBL+4*q}:{TBL+4*q+3}], v10 offset:{(q//2)*2048 + i*512 + (q%2)*16}", "tb")
        a.WAIT(vm=f"w{i}", ds="tb")
        for ty in range(3):
            if mid == ty: a.I("s_barrier")
            W = WR + 12*i + 4*ty
            M = MT + 8*(ty % 2)
            for d in range(4): a.I(f"v_lshlrev_b32 v{M+2*d}, 16, v{W+d}\nv_and_b32 v{M+2*d+1}, 0xffff0000, v{W+d}")
            for j in range(8):
                if i == 0 and j < 2: a.I(f"v_mul_f32 v{BA+2*ty+j%2}, v{M+j}, v{TBL+8+j}")
                else: a.I(f"v_fmac_f32 v{BA+2*ty+j%2}, v{M+j}, v{TBL+8+j}")
            for j in range(8): a.I(f"v_mul_f32 v{M+j}, v{M+j}, v{TBL+j}")
            for d in range(4): a.I(f"v_cvt_pk_bf16_f32 v{W+d}, v{M+2*d}, v{M+2*d+1}")
            a.DS(f"ds_write_b128 {'v11' if i%2 == 0 else 'v12'}, v[{W}:{W+3}] offset:{ty*1024}", f"ww{i}")
    def halo(i):
        for q in range(2):
            a.DS(f"ds_read_b128 v[{48+4*q}:{51+4*q}], {'v13' if i%2 == 0 else 'v14'} offset:{q*6144}", f"hh{i}")
        a.WAIT(vm=f"h{i}", ds=f"hh{i}")
        for q in range(2):
            cin = "0" if (i == 0 and q == 0) else f"v[{HA}:{HA+3}]"
            a.I(f"v_mfma_f32_16x16x32_bf16 v[{HA}:{HA+3}], v[{48+4*q}:{51+4*q}], v[{HB+8*i+4*q}:{HB+8*i+4*q+3}], {cin}")
    prep(0)
    issue_b(1); issue_h(0)
    a.I("s_cmp_eq_u32 s51, 0\ns_cbranch_scc1 K1_LB0\ns_barrier")
    a.T("K1_LB0:")
    a.WAIT(vm="b0", ds="ww0"); a.I("s_barrier")
    for i in range(1, 4):
        if i >= 2: issue_b(i)
        if i + 1 < 4: issue_w(i+1)
        issue_h(i)
        halo(i-1)
        prep(i, mid=1)
        a.WAIT(vm=f"b{i}", ds=f"ww{i}"); a.I("s_barrier")
    halo(3)
    srd(a, 16, 24, 512*2752); srd(a, 20, 26, 512*2752)
    a.I("""
    s_lshl_b32 s43, s2, 3
    s_sub_u32 s45, s3, 4
    s_add_u32 s43, s43, s45
    s_lshl_b32 s43, s43, 10
    buffer_load_dwordx4 v[64:67], v8, s[16:19], s43 offen
    buffer_load_dwordx4 v[64:67], v8, s[20:23], s43 offen
    s_cmp_eq_u32 s51, 1
    s_cbranch_scc1 K1_LB7
    s_barrier
    """)
    a.T("K1_LB7:")
    a.I(f"""
    v_and_b32 v4, 31, v2
    v_lshlrev_b32 v4, 4, v4
    s_lshl_b32 s43, s51, 9
    s_lshl_b32 s45, s50, 2
    s_add_u32 s43, s43, s45
    v_add_u32 v4, s43, v4
    v_add_u32 v4, {BIAS}, v4
    """)
    for ty in range(3):
        a.I(f"""
        v_add_f32 v16, v{BA+2*ty}, v{BA+2*ty+1}
        v_mov_b32 v19, v16
        v_permlane32_swap_b32 v16, v19
        v_add_f32 v16, v16, v19
        v_cvt_pk_bf16_f32 v17, v16, v16
        v_lshlrev_b32 v18, 16, v17
        v_sub_f32 v18, v16, v18
        v_cvt_pk_bf16_f32 v17, v16, v18
        ds_write_b32 v4, v17 offset:{ty*1024}
        """)
    a.I(f"""
    s_lshl_b32 s43, s50, 10
    v_add_u32 v4, s43, v8
    v_add_u32 v4, {HC}, v4
    s_cmp_eq_u32 s51, 0
    s_cbranch_scc1 K1_LA
    ds_write_b128 v4, v[{HA}:{HA+3}]
    s_waitcnt lgkmcnt(0)
    s_barrier
    """)
    a.I(f"""
    s_cmp_ge_u32 s2, 12
    s_cbranch_scc1 K1_END
    v_add_f32 v16, v154, v155
    v_add_f32 v18, v156, v157
    v_add_f32 v16, v16, v18
    """)
    round_bf16(a, 16, 16)
    a.I("""
    s_lshr_b32 s43, s2, 1
    s_cmp_eq_u32 s43, 1
    s_cselect_b32 s45, 1, 0
    s_cmp_eq_u32 s43, 4
    s_cselect_b32 s45, 1, s45
    s_cmp_eq_u32 s45, 0
    s_cbranch_scc1 K1_FINST
    v_add_f32 v16, 1.0, v16
    """)
    round_bf16(a, 16, 16)
    a.T("K1_FINST:")
    a.I(f"s_add_u32 s35, s35, {MODF}\nbuffer_store_dword v16, v3, s[8:11], s35 offen\ns_endpgm")
    a.T("K1_LA:")
    a.I(f"""
    v_cmp_gt_u32 vcc, 32, v2
    v_mov_b32 v16, 0x3f803f80
    v_cndmask_b32 v16, 0, v16, vcc
    v_mov_b32 v17, v16
    v_mov_b32 v18, v16
    v_mov_b32 v19, v16
    s_waitcnt lgkmcnt(0)
    s_barrier
    ds_read_b128 v[48:51], v15
    ds_read_b128 v[52:55], v4
    v_and_b32 v3, 15, v2
    v_lshrrev_b32 v4, 4, v2
    v_and_b32 v5, 1, v4
    v_lshrrev_b32 v6, 1, v4
    s_and_b32 s35, s3, 1
    s_waitcnt lgkmcnt(0)
    v_mfma_f32_16x16x32_bf16 v[{HA}:{HA+3}], v[48:51], v[16:19], v[{HA}:{HA+3}]
    """)
    for r in range(4): a.I(f"v_add_f32 v{HA+r}, v{HA+r}, v{52+r}")
    a.I(f"""
    v_cvt_pk_bf16_f32 v84, v{HA}, v{HA+1}
    v_cvt_pk_bf16_f32 v85, v{HA+2}, v{HA+3}
    s_barrier
    s_cmp_ge_u32 s50, 2
    s_cbranch_scc1 K1_HV
    s_mul_i32 s35, s35, {2*144*16}
    v_mul_u32_u24 v5, {144*16}, v5
    v_lshl_add_u32 v5, v3, 4, v5
    v_lshl_add_u32 v5, v6, 3, v5
    v_add_u32 v5, s35, v5
    v_add_u32 v5, {KT}, v5
    ds_write_b64 v5, v[84:85]
    s_branch K1_HD
    """)
    a.T("K1_HV:")
    a.I(f"""
    v_lshlrev_b32 v80, 16, v84
    v_and_b32 v81, 0xffff0000, v84
    v_lshlrev_b32 v82, 16, v85
    v_and_b32 v83, 0xffff0000, v85
    s_mul_i32 s35, s35, {4*144*16}
    v_lshl_add_u32 v5, v5, 1, v6
    v_mul_u32_u24 v5, {144*16}, v5
    v_lshl_add_u32 v5, v3, 4, v5
    v_add_u32 v5, s35, v5
    v_add_u32 v5, {VT}, v5
    ds_write_b128 v5, v[80:83]
    """)
    a.T("K1_HD:")
    a.I("s_waitcnt lgkmcnt(0)\ns_barrier")
    a.T("K1_END:")
    a.I("s_endpgm")

def gen_proj(a, name, nt, act_base, w_base, which):
    header(a, name)
    P = Prof(a, which); P.stamp()
    L = name.upper()
    CS = opt("cs4", 8) if which == 4 else 4
    NS = (40 // CS) if which == 4 else 4
    SH = 13 if CS == 8 else 12
    ng = (nt + CS - 1) // CS
    a.I(f"""
    s_load_dwordx2 s[4:5], s[0:1], {A_WS}
    s_load_dwordx2 s[6:7], s[0:1], {A_X if which == 2 else A_OUT}
    s_load_dwordx4 s[24:27], s[0:1], {A_W1}
    v_lshrrev_b32 v1, 6, v0
    v_and_b32 v2, 63, v0
    v_readfirstlane_b32 s3, v1
    s_cmp_ge_u32 s2, 256
    s_cbranch_scc1 {L}_X
    """)
    wg_map(a, "sq")
    a.I(f"""
    v_lshlrev_b32 v8, 4, v2
    s_and_b32 s50, s3, 1
    s_bfe_u32 s51, s3, 0x10001
    s_cmp_ge_u32 s3, 4
    s_cbranch_scc1 {L}_LOADER
    """)
    sel = 2 if which == 2 else 5
    a.I(f"""
    s_lshl_b32 s36, s33, 1
    s_add_u32 s36, s36, s50         ; mb
    s_lshl_b32 s35, s34, 1
    s_add_u32 s35, s35, s51         ; ct
    v_and_b32 v3, 31, v2
    v_lshrrev_b32 v4, 5, v2
    v_lshlrev_b32 v5, 4, v4
    s_lshl_b32 s43, s35, 7
    s_add_u32 s43, s43, {MODF + sel*2048}
    s_lshl_b32 s41, s36, 15
    s_lshl_b32 s42, s35, 6
    s_add_u32 s41, s41, s42
    v_lshlrev_b32 v6, 10, v3
    v_lshl_add_u32 v6, v4, 3, v6
    s_lshl_b32 s42, s36, 15
    s_lshl_b32 s44, s35, 11
    s_add_u32 s42, s42, s44
    s_add_u32 s42, s42, {X1}
    s_lshl_b32 s44, s50, {SH}
    v_add_u32 v9, s44, v8
    s_lshl_b32 s44, s51, {SH}
    s_add_u32 s44, s44, {2*CS*1024}
    v_add_u32 v10, s44, v8
    v_add_u32 v11, 65536, v9
    v_add_u32 v12, 65536, v10
    v_add_u32 v13, 131072, v9
    v_add_u32 v14, 131072, v10
    s_waitcnt lgkmcnt(0)
    """)
    srd(a, 8, 4, WS_BYTES)
    srd(a, 12, 6, 2048*1024)
    for aa in range(4):
        a.VM(f"buffer_load_dwordx4 v[{16+4*aa}:{19+4*aa}], v5, s[8:11], s43 offen offset:{32*aa}", "e")
    if which == 2:
        for aa in range(4):
            a.VM(f"buffer_load_dwordx2 v[{32+2*aa}:{33+2*aa}], v6, s[12:15], s41 offen offset:{16*aa}", "e")
    else:
        a.VM(f"buffer_load_dwordx4 v[32:35], v8, s[8:11], s42 offen", "e")
        a.VM(f"buffer_load_dwordx4 v[36:39], v8, s[8:11], s42 offen offset:1024", "e")
    P.stamp()
    FR = 64
    def fread(t):
        g, i = t // CS, t % CS
        off = (g % NS)*CS*4096 + i*1024
        k = off // 65536; off %= 65536
        rb, ra = [("v9", "v10"), ("v11", "v12"), ("v13", "v14")][k]
        st = FR + 8*(t % 4)
        a.DS(f"ds_read_b128 v[{st}:{st+3}], {ra} offset:{off}", f"f{t}")
        a.DS(f"ds_read_b128 v[{st+4}:{st+7}], {rb} offset:{off}", f"f{t}")
    a.I("s_barrier"); P.stamp()
    for t in range(3): fread(t)
    for t in range(nt):
        if t + 3 < nt:
            if (t+3) % CS == 0: a.I("s_barrier")
            fread(t+3)
        a.WAIT(ds=f"f{t}")
        st = FR + 8*(t % 4)
        cin = "0" if t == 0 else "v[48:63]"
        a.I(f"v_mfma_f32_32x32x16_bf16 v[48:63], v[{st}:{st+3}], v[{st+4}:{st+7}], {cin}")
        if t == nt - 6:
            a.WAIT(vm="e")
            for d in range(8):
                a.I(f"v_lshlrev_b32 v{96+2*d}, 16, v{32+d}\nv_and_b32 v{97+2*d}, 0xffff0000, v{32+d}")
    P.stamp()
    for d in range(8): a.I(f"v_pk_fma_f32 v[{96+2*d}:{97+2*d}], v[{48+2*d}:{49+2*d}], v[{16+2*d}:{17+2*d}], v[{96+2*d}:{97+2*d}]")
    for d in range(8): a.I(f"v_cvt_pk_bf16_f32 v{84+d}, v{96+2*d}, v{97+2*d}")
    if which == 2:
        a.I(f"""
        buffer_store_dwordx4 v[84:87], v8, s[8:11], s42 offen{WT}
        buffer_store_dwordx4 v[88:91], v8, s[8:11], s42 offen offset:1024{WT}
        """)
        for d in range(8):
            a.I(f"v_lshlrev_b32 v{96+2*d}, 16, v{84+d}\nv_and_b32 v{97+2*d}, 0xffff0000, v{84+d}")
        a.I("v_pk_add_f32 v[92:93], v[96:97], v[98:99]\nv_pk_mul_f32 v[94:95], v[96:97], v[96:97]\nv_pk_fma_f32 v[94:95], v[98:99], v[98:99], v[94:95]")
        for r in range(4, 16, 2):
            a.I(f"v_pk_add_f32 v[92:93], v[92:93], v[{96+r}:{97+r}]\nv_pk_fma_f32 v[94:95], v[{96+r}:{97+r}], v[{96+r}:{97+r}], v[94:95]")
        a.I(f"""
        v_add_f32 v92, v92, v93
        v_add_f32 v93, v94, v95
        v_mov_b32 v94, v92
        v_mov_b32 v95, v93
        v_permlane32_swap_b32 v92, v94
        v_permlane32_swap_b32 v93, v95
        v_add_f32 v92, v92, v94
        v_add_f32 v93, v93, v95
        v_lshlrev_b32 v7, 7, v3
        s_lshl_b32 s44, s36, 12
        s_lshl_b32 s43, s35, 3
        s_add_u32 s44, s44, s43
        s_add_u32 s44, s44, {ST}
        buffer_store_dwordx2 v[92:93], v7, s[8:11], s44 offen
        """)
    else:
        a.I("""
        v_permlane32_swap_b32 v84, v86
        v_permlane32_swap_b32 v85, v87
        v_permlane32_swap_b32 v88, v90
        v_permlane32_swap_b32 v89, v91
        v_lshlrev_b32 v6, 10, v3
        v_lshl_add_u32 v6, v4, 4, v6
        buffer_store_dwordx4 v[84:87], v6, s[12:15], s41 offen
        buffer_store_dwordx4 v[88:91], v6, s[12:15], s41 offen offset:32
        """)
    P.stamp(); P.flush()
    a.I("s_endpgm")
    a.T(f"{L}_LOADER:"); a.reset()
    a.I(f"""
    s_lshl_b32 s36, s33, 1
    s_add_u32 s37, s36, s50
    s_mul_i32 s37, s37, {nt*1024}
    s_add_u32 s37, s37, {act_base}
    s_lshl_b32 s38, s34, 1
    s_add_u32 s38, s38, s50
    s_mul_i32 s38, s38, {nt*1024}
    s_add_u32 s38, s38, {w_base}
    s_cmp_eq_u32 s51, 1
    s_cselect_b32 s38, s38, s37
    s_and_b32 s3, s3, 3
    s_lshl_b32 s39, s3, {SH}
    s_mov_b32 s40, s39
    v_and_b32 v0, 255, v0
    s_waitcnt lgkmcnt(0)
    """)
    srd(a, 8, 4, WS_BYTES)
    def issue(g):
        if g % NS == 0 and g: a.I("s_mov_b32 s40, s39")
        for hf in range(CS // 4):
            n = min(4, nt - CS*g - 4*hf)
            if n <= 0: continue
            a.I(f"s_add_u32 m0, s40, {4096*hf}")
            for i in range(n):
                a.VM(f"buffer_load_dwordx4 v8, s[8:11], s38 offen offset:{1024*i} lds", f"w{g}")
            a.I("s_add_u32 s38, s38, 4096")
        a.I(f"s_add_u32 s40, s40, {CS*4096}")
    npre = opt("np2", 4) if which == 2 else opt("np4", NS)
    for g in range(npre): issue(g)
    nxt = npre
    for g in range(ng):
        a.WAIT(vm=f"w{g}"); a.I("s_barrier")
        cnt = 0
        while nxt < ng and nxt - NS <= g - 2 and cnt < opt("c4", 3):
            issue(nxt); nxt += 1; cnt += 1
    assert nxt == ng
    a.I("s_endpgm")
    a.T(f"{L}_X:")
    if which == 2: gen_prep13(a)
    a.I("s_endpgm")

def gen_prep13(a):
    a.reset()
    PL = Prof(a, 7); PL.n = 1
    PR, D = 16, 64
    a.I(f"""
    s_cmp_ge_u32 s2, 342
    s_cbranch_scc1 P13_FIN
    s_cmp_ge_u32 s3, 4
    s_cbranch_scc1 P13_FIN
    s_sub_u32 s54, s2, 256
    s_and_b32 s53, s54, 1
    s_lshr_b32 s54, s54, 1
    s_and_b32 s50, s3, 3
    v_lshlrev_b32 v8, 4, v2
    v_lshrrev_b32 v14, 3, v2
    v_bfe_u32 v4, v2, 2, 1
    v_and_b32 v5, 3, v2
    s_lshl_b32 s42, s50, 3
    v_add_u32 v13, s42, v14
    v_lshlrev_b32 v15, 4, v13
    v_lshl_add_u32 v15, v4, 2, v15
    s_mov_b32 s42, 2752
    v_mul_lo_u32 v7, v15, s42
    v_lshl_add_u32 v7, v5, 4, v7
    s_lshl_b32 s42, s54, 6
    s_waitcnt lgkmcnt(0)
    s_cmp_eq_u32 s53, 1
    s_cselect_b32 s24, s26, s24
    s_cselect_b32 s25, s27, s25
    """)
    srd(a, 8, 4, WS_BYTES); srd(a, 16, 24, 512*2752)
    for j in range(8):
        row = (j % 4) + 8*(j // 4)
        a.I(f"v_add_u32 v9, {row*2752}, v7\nbuffer_load_dwordx4 v[{PR+4*j}:{PR+3+4*j}], v9, s[16:19], s42 offen")
    SB, C1, W = 48, 56, 112
    a.I(f"""
    v_lshlrev_b32 v9, 2, v15
    s_mov_b32 s42, {MODF + 3*2048}
    buffer_load_dwordx4 v[48:51], v9, s[8:11], s42 offen
    buffer_load_dwordx4 v[52:55], v9, s[8:11], s42 offen offset:32
    buffer_load_dwordx4 v[56:59], v9, s[8:11], s42 offen offset:2048
    buffer_load_dwordx4 v[60:63], v9, s[8:11], s42 offen offset:2080
    v_lshlrev_b32 v6, 10, v14
    v_lshl_add_u32 v6, v4, 9, v6
    v_lshl_add_u32 v6, v5, 7, v6
    s_lshl_b32 s42, s3, 13
    v_add_u32 v6, s42, v6
    v_add_u32 v7, s42, v8
    s_mul_i32 s38, s54, 43691
    s_lshr_b32 s38, s38, 17
    s_mul_i32 s39, s38, 3
    s_sub_u32 s39, s54, s39
    s_lshl_b32 s39, s39, 1
    s_add_u32 s39, s39, s53
    s_lshl_b32 s39, s39, 10
    s_mul_i32 s38, s38, 196608
    s_add_u32 s38, s38, s39
    s_mul_i32 s39, s50, {8*6144}
    s_add_u32 s38, s38, s39
    s_add_u32 s38, s38, {W13}
    """)
    PL.stamp()
    a.I("s_waitcnt vmcnt(0)")
    PL.stamp()
    for c in range(4):
        for j in range(8):
            a.I(f"v_lshlrev_b32 v{W+2*j}, 16, v{PR+4*j+c}\nv_and_b32 v{W+2*j+1}, 0xffff0000, v{PR+4*j+c}")
        for j in range(8):
            for e in range(2):
                a.I(f"v_mul_f32 v{104+2*c+e}, v{W+2*j+e}, v{SB+j}" if j == 0 else f"v_fmac_f32 v{104+2*c+e}, v{W+2*j+e}, v{SB+j}")
        for j in range(8):
            for e in range(2): a.I(f"v_mul_f32 v{W+2*j+e}, v{W+2*j+e}, v{C1+j}")
        for e in range(2):
            for jj in range(4):
                a.I(f"v_cvt_pk_bf16_f32 v{D+4*(2*c+e)+jj}, v{W+4*jj+e}, v{W+4*jj+2+e}")
            a.I(f"ds_write_b128 v6, v[{D+4*(2*c+e)}:{D+3+4*(2*c+e)}] offset:{16*(2*c+e)}")
        for e in range(2): a.I(f"v_add_f32 v{96+2*c+e}, v{W+e}, v{W+2+e}")
        for j in range(2, 8):
            for e in range(2): a.I(f"v_add_f32 v{96+2*c+e}, v{96+2*c+e}, v{W+2*j+e}")
    a.I("s_waitcnt lgkmcnt(0)")
    for f in range(8): a.I(f"ds_read_b128 v[{D+4*f}:{D+3+4*f}], v7 offset:{1024*f}")
    a.I(f"""
    v_lshrrev_b32 v9, 2, v2
    v_lshlrev_b32 v9, 8, v9
    v_lshl_add_u32 v9, v5, 5, v9
    v_add_u32 v9, s42, v9
    v_lshlrev_b32 v10, 2, v2
    v_add_u32 v10, s42, v10
    s_waitcnt lgkmcnt(0)
    """)
    PL.stamp()
    for f in range(8):
        a.I(f"buffer_store_dwordx4 v[{D+4*f}:{D+3+4*f}], v8, s[8:11], s38 offen\ns_add_u32 s38, s38, 6144")
    PL.stamp()
    a.I("""
    ds_write_b128 v9, v[96:99]
    ds_write_b128 v9, v[100:103] offset:16
    ds_write_b128 v9, v[104:107] offset:128
    ds_write_b128 v9, v[108:111] offset:144
    s_waitcnt lgkmcnt(0)
    """)
    for i in range(16): a.I(f"ds_read_b32 v{16+i}, v10 offset:{i*256}")
    a.I("s_waitcnt lgkmcnt(0)")
    for st in (8, 4, 2, 1):
        for i in range(st): a.I(f"v_add_f32 v{16+i}, v{16+i}, v{16+i+st}")
    a.I(f"""
    ds_write_b32 v10, v16 offset:4096
    s_waitcnt lgkmcnt(0)
    s_barrier
    s_cmp_lg_u32 s50, 0
    s_cbranch_scc1 P13_FIN
    ds_read_b32 v17, v10 offset:{4096+8192}
    ds_read_b32 v18, v10 offset:{4096+16384}
    ds_read_b32 v19, v10 offset:{4096+24576}
    v_lshrrev_b32 v4, 5, v2
    v_mul_u32_u24 v4, {1408*4}, v4
    v_and_b32 v3, 31, v2
    v_lshl_add_u32 v4, v3, 2, v4
    s_mul_i32 s38, s53, {2*1408*4}
    s_lshl_b32 s39, s54, 7
    s_add_u32 s38, s38, s39
    s_add_u32 s38, s38, {UT}
    s_waitcnt lgkmcnt(0)
    v_add_f32 v16, v16, v17
    v_add_f32 v18, v18, v19
    v_add_f32 v16, v16, v18
    buffer_store_dword v16, v4, s[8:11], s38 offen
    """)
    PL.stamp(); PL.flush()
    a.T("P13_FIN:")

def prep_loads(a, L, PR, tables, pad=0):
    a.I(f"""
    s_mov_b32 s52, 0
    s_cmp_ge_u32 s2, 130
    s_cbranch_scc1 {L}_NONE
    s_cmp_ge_u32 s2, 86
    s_cbranch_scc1 {L}_W2
    s_mov_b32 s52, 1
    s_cmp_ge_u32 s2, 43
    s_cselect_b32 s53, 1, 0
    s_cselect_b32 s24, s26, s24
    s_cselect_b32 s25, s27, s25
    s_mul_i32 s54, s53, 43
    s_sub_u32 s54, s2, s54
    """)
    srd(a, 16, 24, 512*2752)
    a.I(f"""
    v_lshrrev_b32 v14, 3, v2
    v_bfe_u32 v4, v2, 2, 1
    v_and_b32 v5, 3, v2
    s_lshl_b32 s42, s3, 3
    v_add_u32 v14, s42, v14
    v_lshlrev_b32 v15, 4, v14
    v_lshl_add_u32 v15, v4, 2, v15
    s_mov_b32 s42, 2752
    v_mul_lo_u32 v7, v15, s42
    v_lshl_add_u32 v7, v5, 4, v7
    s_lshl_b32 s42, s54, 6
    """)
    for j in range(8):
        row = (j % 4) + 8*(j // 4)
        a.I(f"v_add_u32 v9, {row*2752}, v7\nbuffer_load_dwordx4 v[{PR+4*j}:{PR+3+4*j}], v9, s[16:19], s42 offen")
    if tables == "partials":
        a.I("v_lshlrev_b32 v9, 2, v15")
        for ks in range(4):
            a.I(f"""
            s_mov_b32 s42, {MODP + ks*12288 + 3*2048}
            buffer_load_dwordx4 v[{176+16*ks}:{179+16*ks}], v9, s[8:11], s42 offen
            buffer_load_dwordx4 v[{180+16*ks}:{183+16*ks}], v9, s[8:11], s42 offen offset:32
            buffer_load_dwordx4 v[{184+16*ks}:{187+16*ks}], v9, s[8:11], s42 offen offset:2048
            buffer_load_dwordx4 v[{188+16*ks}:{191+16*ks}], v9, s[8:11], s42 offen offset:2080
            """)
    elif tables:
        a.I(f"""
        v_lshlrev_b32 v9, 2, v15
        s_mov_b32 s42, {MODF + 3*2048}
        buffer_load_dwordx4 v[160:163], v9, s[8:11], s42 offen
        buffer_load_dwordx4 v[164:167], v9, s[8:11], s42 offen offset:32
        buffer_load_dwordx4 v[168:171], v9, s[8:11], s42 offen offset:2048
        buffer_load_dwordx4 v[172:175], v9, s[8:11], s42 offen offset:2080
        """)
    a.I(f"s_branch {L}_DONE")
    a.T(f"{L}_W2:")
    a.I("s_mov_b32 s52, 2")
    srd(a, 16, 28, 1376*1024)
    a.I("s_sub_u32 s53, s2, 86\ns_lshl_b32 s53, s53, 2\ns_add_u32 s53, s53, s3")
    chained_addr(a, 53, PR)
    for j in range(8):
        a.I(f"buffer_load_dwordx4 v[{PR+4*j}:{PR+3+4*j}], v{5 if j < 4 else 9}, s[16:19], s36 offen offset:{1024*(j%4)}")
    a.I("s_mov_b64 exec, 1")
    for j in range(pad - 8): a.I("buffer_load_dword v176, v8, s[8:11], 0 offen")
    a.I(f"s_mov_b64 exec, -1\ns_branch {L}_DONE")
    a.T(f"{L}_NONE:")
    a.I("s_mov_b64 exec, 1")
    for j in range(pad): a.I("buffer_load_dword v176, v8, s[8:11], 0 offen")
    a.I("s_mov_b64 exec, -1")
    a.T(f"{L}_DONE:")

def gen_prep_paths(a, PR):
    STG = 32768
    URED = STG
    D = 64
    a.T("K2_PW2:")
    a.reset()
    a.I(f"""
    s_mov_b32 s40, 0x05040100
    s_mov_b32 s41, 0x07060302
    v_lshrrev_b32 v3, 4, v2
    v_bfe_u32 v12, v2, 3, 1
    v_and_b32 v4, 7, v2
    v_lshrrev_b32 v6, 2, v4
    v_lshl_add_u32 v6, v6, 2, v3
    v_lshlrev_b32 v6, 10, v6
    v_lshl_add_u32 v6, v12, 9, v6
    v_and_b32 v7, 3, v4
    v_lshl_add_u32 v6, v7, 7, v6
    s_lshl_b32 s42, s3, 13
    s_add_u32 s42, s42, {STG}
    v_add_u32 v6, s42, v6
    v_add_u32 v7, s42, v8
    s_and_b32 s35, s53, 7
    s_lshr_b32 s34, s53, 3
    s_mul_i32 s36, s35, {2*88064}
    s_lshl_b32 s37, s34, 12
    s_add_u32 s36, s36, s37
    s_add_u32 s36, s36, {W2}
    s_add_u32 s37, s36, 88064
    s_waitcnt vmcnt(0)
    """)
    transpose8x8(a, PR, D, 40, 41)
    for i in range(8): a.I(f"ds_write_b128 v6, v[{D+4*i}:{D+3+4*i}] offset:{16*i}")
    a.I("s_waitcnt lgkmcnt(0)")
    for f in range(8): a.I(f"ds_read_b128 v[{D+4*f}:{D+3+4*f}], v7 offset:{1024*f}")
    a.I("s_cmp_eq_u32 s34, 21\ns_cselect_b32 s42, 0x7ff00000, 0\nv_add_u32 v9, s42, v8\ns_waitcnt lgkmcnt(0)")
    for f in range(8):
        a.VM(f"buffer_store_dwordx4 v[{D+4*f}:{D+3+4*f}], {'v8' if f%4 < 2 else 'v9'}, s[8:11], {'s36' if f < 4 else 's37'} offen offset:{1024*(f%4)}", "st")
    a.I("s_endpgm")
    a.T("K2_P13:")
    a.reset()
    a.I(f"""
    v_lshrrev_b32 v14, 3, v2
    v_bfe_u32 v4, v2, 2, 1
    v_and_b32 v5, 3, v2
    v_lshlrev_b32 v6, 10, v14
    v_lshl_add_u32 v6, v4, 9, v6
    v_lshl_add_u32 v6, v5, 7, v6
    s_lshl_b32 s42, s3, 13
    s_add_u32 s42, s42, {STG}
    v_add_u32 v6, s42, v6
    v_add_u32 v7, s42, v8
    s_mul_i32 s38, s54, 43691
    s_lshr_b32 s38, s38, 17
    s_mul_i32 s39, s38, 3
    s_sub_u32 s39, s54, s39
    s_lshl_b32 s39, s39, 1
    s_add_u32 s39, s39, s53
    s_lshl_b32 s39, s39, 10
    s_mul_i32 s38, s38, 196608
    s_add_u32 s38, s38, s39
    s_mul_i32 s39, s3, {8*6144}
    s_add_u32 s38, s38, s39
    s_add_u32 s38, s38, {W13}
    s_waitcnt vmcnt(0)
    """)
    SB, C1 = 176, 184
    for r in range(16):
        a.I(f"v_add_f32 v{176+r}, v{176+r}, v{192+r}\nv_add_f32 v{208+r}, v{208+r}, v{224+r}\nv_add_f32 v{176+r}, v{176+r}, v{208+r}")
    for r in range(0, 16, 2):
        a.I(f"v_cvt_pk_bf16_f32 v9, v{176+r}, v{177+r}\nv_lshlrev_b32 v{176+r}, 16, v9\nv_and_b32 v{177+r}, 0xffff0000, v9")
    for r in range(8): a.I(f"v_add_f32 v{C1+r}, 1.0, v{C1+r}")
    for r in range(0, 8, 2):
        a.I(f"v_cvt_pk_bf16_f32 v9, v{C1+r}, v{C1+1+r}\nv_lshlrev_b32 v{C1+r}, 16, v9\nv_and_b32 v{C1+1+r}, 0xffff0000, v9")
    W = 192
    for c in range(4):
        for j in range(8):
            a.I(f"v_lshlrev_b32 v{W+2*j}, 16, v{PR+4*j+c}\nv_and_b32 v{W+2*j+1}, 0xffff0000, v{PR+4*j+c}")
        for j in range(8):
            for e in range(2):
                a.I(f"v_mul_f32 v{104+2*c+e}, v{W+2*j+e}, v{SB+j}" if j == 0 else f"v_fmac_f32 v{104+2*c+e}, v{W+2*j+e}, v{SB+j}")
        for j in range(8):
            for e in range(2): a.I(f"v_mul_f32 v{W+2*j+e}, v{W+2*j+e}, v{C1+j}")
        for e in range(2):
            for jj in range(4):
                a.I(f"v_cvt_pk_bf16_f32 v{D+4*(2*c+e)+jj}, v{W+4*jj+e}, v{W+4*jj+2+e}")
            a.I(f"ds_write_b128 v6, v[{D+4*(2*c+e)}:{D+3+4*(2*c+e)}] offset:{16*(2*c+e)}")
        for e in range(2): a.I(f"v_add_f32 v{96+2*c+e}, v{W+e}, v{W+2+e}")
        for j in range(2, 8):
            for e in range(2): a.I(f"v_add_f32 v{96+2*c+e}, v{96+2*c+e}, v{W+2*j+e}")
    a.I("s_waitcnt lgkmcnt(0)")
    for f in range(8): a.I(f"ds_read_b128 v[{D+4*f}:{D+3+4*f}], v7 offset:{1024*f}")
    a.I(f"""
    v_lshrrev_b32 v9, 2, v2
    v_lshlrev_b32 v9, 8, v9
    v_lshl_add_u32 v9, v5, 5, v9
    v_add_u32 v9, s42, v9
    v_lshlrev_b32 v10, 2, v2
    v_add_u32 v10, s42, v10
    s_waitcnt lgkmcnt(0)
    """)
    for f in range(8):
        a.VM(f"buffer_store_dwordx4 v[{D+4*f}:{D+3+4*f}], v8, s[8:11], s38 offen", "st")
        a.I("s_add_u32 s38, s38, 6144")
    a.I("""
    ds_write_b128 v9, v[96:99]
    ds_write_b128 v9, v[100:103] offset:16
    ds_write_b128 v9, v[104:107] offset:128
    ds_write_b128 v9, v[108:111] offset:144
    s_waitcnt lgkmcnt(0)
    """)
    for i in range(16): a.I(f"ds_read_b32 v{16+i}, v10 offset:{i*256}")
    a.I("s_waitcnt lgkmcnt(0)")
    for st in (8, 4, 2, 1):
        for i in range(st): a.I(f"v_add_f32 v{16+i}, v{16+i}, v{16+i+st}")
    a.I(f"ds_write_b32 v10, v16 offset:4096\ns_waitcnt lgkmcnt(0)\ns_barrier")
    a.I(f"""
    s_cmp_lg_u32 s3, 0
    s_cbranch_scc1 K2_FIN
    ds_read_b32 v17, v10 offset:{4096+8192}
    ds_read_b32 v18, v10 offset:{4096+16384}
    ds_read_b32 v19, v10 offset:{4096+24576}
    v_lshrrev_b32 v4, 5, v2
    v_mul_u32_u24 v4, {1408*4}, v4
    v_and_b32 v3, 31, v2
    v_lshl_add_u32 v4, v3, 2, v4
    s_mul_i32 s38, s53, {2*1408*4}
    s_lshl_b32 s39, s54, 7
    s_add_u32 s38, s38, s39
    s_add_u32 s38, s38, {UT}
    s_waitcnt lgkmcnt(0)
    v_add_f32 v16, v16, v17
    v_add_f32 v18, v18, v19
    v_add_f32 v16, v16, v18
    buffer_store_dword v16, v4, s[8:11], s38 offen
    """)
    a.T("K2_FIN:")

def gen_k3(a):
    NS, CH = 4, 40960
    UTL = 0
    header(a, "k3_kernel")
    P = Prof(a, 3); P.stamp()
    a.I(f"""
    s_cmp_ge_u32 s2, 256
    s_cbranch_scc1 K3_END
    s_load_dwordx2 s[4:5], s[0:1], {A_WS}
    s_load_dwordx2 s[28:29], s[0:1], {A_W2}
    v_lshrrev_b32 v1, 6, v0
    v_and_b32 v2, 63, v0
    v_readfirstlane_b32 s3, v1
    """)
    wg_map(a, "r2c4")
    a.I(f"""
    v_lshlrev_b32 v8, 4, v2
    s_cmp_ge_u32 s34, 15
    s_cbranch_scc1 K3_W2
    s_and_b32 s50, s3, 3
    s_lshl_b32 s36, s33, 2
    s_add_u32 s36, s36, s50
    s_mul_i32 s42, s34, 384
    s_add_u32 s42, s42, {UT}
    s_cmp_ge_u32 s3, 4
    s_cbranch_scc1 K3_LOADER
    v_and_b32 v3, 31, v2
    v_lshrrev_b32 v4, 5, v2
    v_mov_b32 v9, v8
    v_add_u32 v11, 49152, v9
    v_lshlrev_b32 v5, 4, v4
    v_lshlrev_b32 v6, 7, v3
    v_lshl_add_u32 v6, v4, 6, v6
    s_lshl_b32 s41, s36, 12
    s_add_u32 s41, s41, {ST}
    s_lshl_b32 s37, s36, 15
    s_add_u32 s37, s37, {X1}
    s_mul_i32 s44, s36, {86*1024}
    s_mul_i32 s43, s34, {6*1024}
    s_add_u32 s44, s44, s43
    s_add_u32 s44, s44, {HH}
    s_mov_b32 s45, {LOG2E}
    s_mov_b32 s46, 49152
    s_mov_b32 s47, 0
    s_mov_b32 s48, {-49152 & 0xffffffff}
    s_waitcnt lgkmcnt(0)
    """)
    srd(a, 8, 4, WS_BYTES)
    AF, BB, ACC = 16, 112, 160
    for q in range(4):
        a.I(f"buffer_load_dwordx4 v[{144+4*q}:{147+4*q}], v6, s[8:11], s41 offen offset:{16*q}")
    def bload(i):
        a.I(f"buffer_load_dwordx4 v[{BB+4*i}:{BB+4*i+3}], v8, s[8:11], s37 offen offset:{1024*(i%4)}")
        if i % 4 == 3: a.I("s_add_u32 s37, s37, 4096")
    for i in range(8): bload(i)
    for i in range(96): a.I(f"v_mov_b32 v{ACC+i}, 0")
    def fread(i, lo, hi):
        ra = "v11" if i >= 8 else "v9"
        for f in range(lo, hi):
            a.I(f"ds_read_b128 v[{AF+24*(i%4)+4*f}:{AF+24*(i%4)+4*f+3}], {ra} offset:{(i%8)*6144 + 1024*f}")
    P.stamp()
    a.I("s_barrier"); P.stamp()
    fread(0, 0, 6); fread(1, 0, 6)
    a.T("K3_LOOP:")
    for i in range(8):
        if i % 2 == 0: a.I("s_barrier")
        for hf in range(2):
            fread(i+2, 3*hf, 3*hf+3)
            a.I("s_waitcnt vmcnt(7) lgkmcnt(12)" if hf == 0 else "s_waitcnt lgkmcnt(12)")
            for f in range(3*hf, 3*hf+3):
                a.I(f"v_mfma_f32_32x32x16_bf16 v[{ACC+16*f}:{ACC+16*f+15}], v[{AF+24*(i%4)+4*f}:{AF+24*(i%4)+4*f+3}], v[{BB+4*i}:{BB+4*i+3}], v[{ACC+16*f}:{ACC+16*f+15}]")
        bload(i)
    a.I(f"""
    v_mov_b32 v9, v11
    s_add_u32 s46, s46, 49152
    s_cmp_eq_u32 s46, 147456
    s_cselect_b32 s49, 98304, s48
    s_cselect_b32 s46, 0, s46
    v_subrev_u32 v11, s49, v11
    s_add_u32 s47, s47, 1
    s_cmp_lt_u32 s47, 4
    s_cbranch_scc1 K3_LOOP
    s_waitcnt lgkmcnt(0)
    """)
    a.reset()
    for q in range(1, 8): a.I(f"v_add_f32 v144, v144, v{144+2*q}\nv_add_f32 v145, v145, v{145+2*q}")
    a.I("""
    v_mov_b32 v146, v144
    v_mov_b32 v147, v145
    v_permlane32_swap_b32 v144, v146
    v_permlane32_swap_b32 v145, v147
    v_add_f32 v144, v144, v146
    v_add_f32 v145, v145, v147
    v_mul_f32 v13, 0x3b000000, v144
    v_mul_f32 v12, 0x3b000000, v145
    v_fma_f32 v12, -v13, v13, v12
    v_max_f32 v12, 0, v12
    v_add_f32 v12, 0x3727c5ac, v12
    v_rsq_f32 v14, v12
    v_sub_f32 v15, 0, v13
    v_sub_f32 v12, 0, s45
    v_mov_b32 v13, 1.0
    v_add_u32 v5, 147456, v5
    """)
    P.stamp()
    def ut_reads(p):
        for arr in range(4):
            for aa in range(4):
                r = 16 + arr*16 + 4*aa
                a.DS(f"ds_read_b128 v[{r}:{r+3}], v5 offset:{arr*384 + p*128 + aa*32}", f"u{p}_{arr//2}")
    ut_reads(0)
    a.I("s_waitcnt vmcnt(0)")
    U = 16; TMP = 80
    for p in range(3):
        if p == 1: a.I("s_cmp_eq_u32 s34, 14\ns_cbranch_scc1 K3_FIN")
        for mm in range(2):
            a.WAIT(ds=f"u{p}_{mm}")
            A = ACC + 32*p + 16*mm
            for d in range(8): a.I(f"v_pk_fma_f32 v[{A+2*d}:{A+2*d+1}], v[{U+32*mm+2*d}:{U+32*mm+2*d+1}], v[14:15], v[{A+2*d}:{A+2*d+1}] op_sel:[0,1,0] op_sel_hi:[1,1,1]")
            for d in range(8): a.I(f"v_pk_fma_f32 v[{A+2*d}:{A+2*d+1}], v[{A+2*d}:{A+2*d+1}], v[14:15], v[{U+32*mm+16+2*d}:{U+32*mm+17+2*d}] op_sel:[0,0,0] op_sel_hi:[1,0,1]")
        G = ACC + 32*p
        if p < 2: ut_reads(p+1)
        for d in range(8): a.I(f"v_pk_mul_f32 v[{TMP+2*d}:{TMP+2*d+1}], v[{G+2*d}:{G+2*d+1}], v[12:13] op_sel:[0,0] op_sel_hi:[1,0]")
        for r in range(16): a.I(f"v_exp_f32 v{TMP+r}, v{TMP+r}")
        for d in range(8): a.I(f"v_pk_mul_f32 v[{G+2*d}:{G+2*d+1}], v[{G+2*d}:{G+2*d+1}], v[{G+16+2*d}:{G+17+2*d}]")
        for d in range(8): a.I(f"v_pk_add_f32 v[{TMP+2*d}:{TMP+2*d+1}], v[{TMP+2*d}:{TMP+2*d+1}], v[12:13] op_sel:[0,1] op_sel_hi:[1,1]")
        for r in range(16): a.I(f"v_rcp_f32 v{TMP+r}, v{TMP+r}")
        for d in range(8): a.I(f"v_pk_mul_f32 v[{G+2*d}:{G+2*d+1}], v[{G+2*d}:{G+2*d+1}], v[{TMP+2*d}:{TMP+2*d+1}]")
        for d in range(8): a.I(f"v_cvt_pk_bf16_f32 v{96+8*p+d}, v{G+2*d}, v{G+2*d+1}")
        a.VM(f"buffer_store_dwordx4 v[{96+8*p}:{99+8*p}], v8, s[8:11], s44 offen offset:{(p*2048)%4096}{WT}", "st")
        a.VM(f"buffer_store_dwordx4 v[{100+8*p}:{103+8*p}], v8, s[8:11], s44 offen offset:{(p*2048)%4096+1024}{WT}", "st")
        if p == 1: a.I("s_add_u32 s44, s44, 4096")
    a.T("K3_FIN:")
    P.stamp(); P.flush()
    a.I("s_endpgm")
    a.T("K3_LOADER:"); a.reset()
    a.I(f"""
    s_lshl_b32 s37, s36, 15
    s_add_u32 s37, s37, {X1}
    s_mul_i32 s38, s34, 196608
    s_add_u32 s38, s38, {W13}
    s_mul_i32 s39, s50, 3072
    s_add_u32 s38, s38, s39
    s_mov_b32 s40, s39
    s_waitcnt lgkmcnt(0)
    """)
    srd(a, 8, 4, WS_BYTES)
    NS = 12
    a.I(f"""
    s_mul_i32 s43, s50, {1408*4}
    s_add_u32 s43, s43, s42
    s_mul_i32 s44, s50, 384
    """)
    def issue(g):
        if g % NS == 0 and g: a.I("s_mov_b32 s40, s39")
        a.I("s_mov_b32 m0, s40")
        for i in range(3): a.VM(f"buffer_load_dwordx4 v8, s[8:11], s38 offen offset:{1024*i} lds", f"w{g}")
        a.I(f"s_add_u32 s38, s38, 12288\ns_add_u32 s40, s40, 12288")
    npre = opt("np3", 4)
    for g in range(npre): issue(g)
    nxt = npre
    for g in range(16):
        a.WAIT(vm=f"w{g}"); a.I("s_barrier")
        cnt = 0
        while nxt < 16 and nxt - NS <= g - 2 and cnt < opt("c3", 2):
            issue(nxt); nxt += 1; cnt += 1
        if g == 8:
            a.I("s_add_u32 m0, s44, 147456\ns_mov_b64 exec, 0xffffff")
            a.VM("buffer_load_dwordx4 v8, s[8:11], s43 offen lds", "ut")
            a.I("s_mov_b64 exec, -1")
    assert nxt == 16
    a.WAIT(vm="ut"); a.I("s_barrier")
    a.I("s_endpgm")
    a.T("K3_W2:"); a.reset()
    a.I("""
    s_lshl_b32 s53, s33, 3
    s_add_u32 s53, s53, s3
    s_mov_b32 s40, 0x05040100
    s_mov_b32 s41, 0x07060302
    s_waitcnt lgkmcnt(0)
    """)
    srd(a, 8, 4, WS_BYTES); srd(a, 16, 28, 1376*1024)
    a.I("s_add_u32 s54, s53, 128\ns_min_u32 s54, s54, 175")
    chained_addr(a, 54, 96)
    for j in range(8):
        a.I(f"buffer_load_dwordx4 v[{96+4*j}:{99+4*j}], v{5 if j < 4 else 9}, s[16:19], s36 offen offset:{1024*(j%4)}")
    chained_addr(a, 53, 16)
    for j in range(8):
        a.I(f"buffer_load_dwordx4 v[{16+4*j}:{19+4*j}], v{5 if j < 4 else 9}, s[16:19], s36 offen offset:{1024*(j%4)}")
    chained_store(a, 16, 64, W2, 88064, 21)
    a.I("s_cmp_ge_u32 s53, 48\ns_cbranch_scc1 K3_END")
    chained_addr(a, 54, 96)
    chained_store(a, 96, 64, W2, 88064, 21)
    a.T("K3_END:")
    a.I("s_endpgm")

def main():
    a = Asm()
    gen_k0(a); gen_k1(a)
    gen_proj(a, "k2_kernel", 32, OO, WO, 2)
    gen_k3(a)
    gen_proj(a, "k4_kernel", 86, HH, W2, 4)
    head = """; generated by work/gen17.py
; @launch kernel=k0_kernel grid=(320,1,1) block=(256,1,1) lds=32768
; @launch kernel=k1_kernel grid=(256,1,1) block=(768,1,1) lds=125952
; @launch kernel=k2_kernel grid=(342,1,1) block=(512,1,1) lds=65536
; @launch kernel=k3_kernel grid=(256,1,1) block=(512,1,1) lds=163840
; @launch kernel=k4_kernel grid=(256,1,1) block=(512,1,1) lds=163840
.amdgcn_target "amdgcn-amd-amdhsa--gfx950"
.text
"""
    tail = '.section .rodata,"a"\n' + desc("k0_kernel", 128) + desc("k1_kernel", 168) + desc("k2_kernel", 128) + desc("k3_kernel", 256) + desc("k4_kernel", 128)
    out = head + a.render() + tail
    args = [x for x in sys.argv[1:] if not x.startswith("-")]
    path = args[0] if args else f"cdna_kernels/{NAME}.s"
    open(path, "w").write(out)
    print("wrote", path, len(out))
main()
```

```python
import sys
sys.path.insert(0, 'work')
from asmlib import Asm

NAME = "adaLN_cond__sliding_local_dilated__glu_gated_swiglu__prompt"
A_X, A_WQKV, A_WO, A_BX, A_W1, A_W3, A_W2, A_C, A_WMOD, A_OUT, A_DBG, A_WS = [8*i for i in range(12)]
MODP = 0
MODF = 0x10000
UT   = 0x14000
ST   = 0x40000
XN   = 0x100000
WQ   = 0x300000
OO   = 0x500000
WO   = 0x700000
X1   = 0x800000
W13  = 0xA00000
HH   = 0xD00000
W2   = 0x1300000
YY   = 0x1500000
CNT  = 0x30000
CNTU = 0x3E000
WS_BYTES = 0x2000000
LOG2E = 0x3fb8aa3b
PROF = "-p" in sys.argv
PROFB = 0x1800000
TIMER = "s_memtime" if "-c" in sys.argv else "s_memrealtime"
def opt(name, default):
    for x in sys.argv:
        if x.startswith(f"-{name}="): return int(x.split("=")[1])
    return default

class Prof:
    def __init__(self, a, kid): self.a, self.kid, self.n = a, kid, 0
    def stamp(self):
        if not PROF: return
        self.a.I(f"{TIMER} s[{60+2*self.n}:{61+2*self.n}]"); self.a.WAITALL(vm=False)
        self.n += 1
    def flush(self):
        if not PROF: return
        a = self.a
        a.WAITALL()
        a.I(f"{TIMER} s[{60+2*self.n}:{61+2*self.n}]\ns_waitcnt lgkmcnt(0)")
        a.I(f"s_lshl_b32 s58, s2, 3\ns_add_u32 s58, s58, s3\ns_lshl_b32 s58, s58, 7\ns_add_u32 s58, s58, {PROFB + self.kid*0x80000}\nv_mov_b32 v0, 0")
        for i in range(self.n+1):
            a.I(f"v_mov_b32 v2, s{60+2*i}\nv_mov_b32 v3, s{61+2*i}\nbuffer_store_dwordx2 v[2:3], v0, s[8:11], s58 offen offset:{8*i}")

def srd(a, d, b, nbytes):
    a.I(f"s_mov_b32 s{d}, s{b}\ns_and_b32 s{d+1}, s{b+1}, 0xffff\ns_mov_b32 s{d+2}, {nbytes}\ns_mov_b32 s{d+3}, 0x00020000")
def header(a, name):
    a.T(f".globl {name}\n.p2align 8\n.type {name},@function\n{name}:"); a.reset()
def desc(name, vgpr, agpr=0, sgpr=96):
    acc = (vgpr + 3) // 4 * 4
    return f""".p2align 6
.amdhsa_kernel {name}
  .amdhsa_next_free_vgpr {acc + agpr if agpr else vgpr}
  .amdhsa_next_free_sgpr {sgpr}
  .amdhsa_accum_offset {acc}
  .amdhsa_group_segment_fixed_size 0
  .amdhsa_kernarg_size 96
  .amdhsa_user_sgpr_count 2
  .amdhsa_user_sgpr_kernarg_segment_ptr 1
  .amdhsa_system_sgpr_workgroup_id_x 1
.end_amdhsa_kernel
"""
def round_bf16(a, dst, src):
    a.I(f"v_cvt_pk_bf16_f32 v{dst}, v{src}, v{src}\nv_lshlrev_b32 v{dst}, 16, v{dst}")
def transpose8x8(a, R, D, s_lo, s_hi):
    for c in range(4):
        for e in range(2):
            n = 2*c + e
            for jj in range(4):
                a.I(f"v_perm_b32 v{D+4*n+jj}, v{R+4*(2*jj+1)+c}, v{R+4*(2*jj)+c}, s{s_hi if e else s_lo}")

def chained_addr(a, unit_s, R):
    a.I(f"""
    s_and_b32 s35, s{unit_s}, 7
    s_lshr_b32 s34, s{unit_s}, 3
    v_lshrrev_b32 v3, 4, v2
    v_bfe_u32 v12, v2, 3, 1
    v_and_b32 v4, 7, v2
    v_lshlrev_b32 v5, 14, v3
    v_lshl_add_u32 v5, v12, 12, v5
    v_lshl_add_u32 v5, v4, 4, v5
    v_add_u32 v9, 8192, v5
    s_lshl_b32 s36, s34, 16
    s_lshl_b32 s37, s35, 7
    s_add_u32 s36, s36, s37
    """)
def chained_loads(a, R, sr, tag=None):
    for j in range(8):
        a.VM(f"buffer_load_dwordx4 v[{R+4*j}:{R+3+4*j}], v{5 if j < 4 else 9}, s[{sr}:{sr+3}], s36 offen offset:{1024*(j%4)}", tag)
def chained_dst(a, tmax, dst, ct_stride):
    a.I(f"""
    s_mul_i32 s36, s35, {2*ct_stride}
    s_lshl_b32 s37, s34, 12
    s_add_u32 s36, s36, s37
    s_add_u32 s36, s36, {dst}
    v_lshrrev_b32 v6, 2, v4
    s_mov_b32 s38, {ct_stride}
    v_mul_lo_u32 v6, v6, s38
    v_lshl_add_u32 v6, v3, 10, v6
    v_lshl_add_u32 v6, v12, 9, v6
    v_and_b32 v7, 3, v4
    v_lshl_add_u32 v6, v7, 7, v6
    s_lshl_b32 s37, s34, 2
    v_add_u32 v7, s37, v3
    v_cmp_gt_u32 vcc, {tmax}, v7
    v_mov_b32 v7, 0x7ff00000
    v_cndmask_b32 v6, v7, v6, vcc
    """)

def chained_store(a, R, D, dst, ct_stride, last_kb):
    a.I(f"""
    v_lshrrev_b32 v6, 2, v4
    v_lshl_add_u32 v6, v6, 2, v3
    v_lshlrev_b32 v6, 10, v6
    v_lshl_add_u32 v6, v12, 9, v6
    v_and_b32 v7, 3, v4
    v_lshl_add_u32 v6, v7, 7, v6
    s_lshl_b32 s42, s3, 13
    v_add_u32 v6, s42, v6
    v_add_u32 v7, s42, v8
    s_mul_i32 s36, s35, {2*ct_stride}
    s_lshl_b32 s37, s34, 12
    s_add_u32 s36, s36, s37
    s_add_u32 s36, s36, {dst}
    s_add_u32 s37, s36, {ct_stride}
    s_cmp_eq_u32 s34, {last_kb}
    s_cselect_b32 s42, 0x7ff00000, 0
    v_add_u32 v9, s42, v8
    s_waitcnt vmcnt(0)
    """)
    transpose8x8(a, R, D, 40, 41)
    for i in range(8): a.I(f"ds_write_b128 v6, v[{D+4*i}:{D+3+4*i}] offset:{16*i}")
    a.I("s_waitcnt lgkmcnt(0)")
    for f in range(8): a.I(f"ds_read_b128 v[{D+4*f}:{D+3+4*f}], v7 offset:{1024*f}")
    a.I("s_waitcnt lgkmcnt(0)")
    for f in range(8):
        a.I(f"buffer_store_dwordx4 v[{D+4*f}:{D+3+4*f}], {'v8' if f%4 < 2 else 'v9'}, s[8:11], {'s36' if f < 4 else 's37'} offen offset:{1024*(f%4)}")

def gen_k0(a):
    header(a, "k0_kernel")
    P = Prof(a, 0); P.stamp()
    a.I(f"""
    s_load_dwordx2 s[6:7], s[0:1], {A_WS}
    s_load_dwordx4 s[16:19], s[0:1], {A_X}
    s_load_dwordx2 s[20:21], s[0:1], {A_WO}
    s_load_dwordx4 s[28:31], s[0:1], {A_C}
    s_load_dwordx4 s[24:27], s[0:1], {A_W1}
    s_load_dwordx2 s[22:23], s[0:1], {A_W2}
    v_lshrrev_b32 v1, 6, v0
    v_and_b32 v2, 63, v0
    v_readfirstlane_b32 s3, v1
    s_mov_b32 s40, 0x05040100
    s_mov_b32 s41, 0x07060302
    s_waitcnt lgkmcnt(0)
    """)
    srd(a, 8, 6, WS_BYTES)
    a.I("""
    s_cmp_lt_u32 s2, 192
    s_cbranch_scc1 K0_MOD
    s_cmp_lt_u32 s2, 256
    s_cbranch_scc1 K0_XN
    s_cmp_lt_u32 s2, 304
    s_cbranch_scc1 K0_WQ
    s_cmp_lt_u32 s2, 320
    s_cbranch_scc1 K0_WO
    s_cmp_lt_u32 s2, 406
    s_cbranch_scc1 K0_W13
    s_cmp_lt_u32 s2, 450
    s_cbranch_scc1 K0_W2
    s_endpgm
    """)
    a.T("K0_MOD:"); a.reset()
    srd(a, 12, 30, 512*3072*2)
    srd(a, 52, 28, 1024)
    a.I(f"""
    s_mov_b32 s32, 0x5555556
    s_mul_hi_u32 s33, s2, s32
    s_mul_i32 s34, s33, 48
    s_sub_u32 s34, s2, s34
    v_lshrrev_b32 v3, 3, v0
    v_and_b32 v4, 7, v0
    s_lshl_b32 s35, s33, 8
    v_lshlrev_b32 v5, 3, v3
    buffer_load_dwordx2 v[6:7], v5, s[52:55], s35 offen
    s_mul_i32 s36, s33, {128*6144}
    s_lshl_b32 s37, s34, 7
    s_add_u32 s36, s36, s37
    s_mov_b32 s38, {4*6144}
    v_mul_lo_u32 v8, v3, s38
    v_lshl_add_u32 v8, v4, 4, v8
    v_add_u32 v9, 6144, v8
    v_add_u32 v10, {2*6144}, v8
    v_add_u32 v11, {3*6144}, v8
    buffer_load_dwordx4 v[16:19], v8, s[12:15], s36 offen
    buffer_load_dwordx4 v[20:23], v9, s[12:15], s36 offen
    buffer_load_dwordx4 v[24:27], v10, s[12:15], s36 offen
    buffer_load_dwordx4 v[28:31], v11, s[12:15], s36 offen
    s_mov_b32 s39, {LOG2E}
    s_waitcnt vmcnt(4)
    v_lshlrev_b32 v12, 16, v6
    v_and_b32 v13, 0xffff0000, v6
    v_lshlrev_b32 v14, 16, v7
    v_and_b32 v15, 0xffff0000, v7
    """)
    for i in range(4):
        r = 12 + i
        a.I(f"v_mul_f32 v32, s39, v{r}\nv_exp_f32 v32, -v32\nv_add_f32 v32, 1.0, v32\nv_rcp_f32 v32, v32\nv_mul_f32 v{r}, v{r}, v32")
        round_bf16(a, r, r)
    a.I("s_waitcnt vmcnt(0)")
    P.stamp()
    for i in range(4):
        for c in range(4):
            a.I(f"v_lshlrev_b32 v33, 16, v{16+4*i+c}\nv_and_b32 v34, 0xffff0000, v{16+4*i+c}")
            op = "v_mul_f32" if i == 0 else "v_fmac_f32"
            a.I(f"{op} v{40+2*c}, v{12+i}, v33\n{op} v{41+2*c}, v{12+i}, v34")
    a.I(f"""
    v_lshlrev_b32 v5, 5, v0
    ds_write_b128 v5, v[40:43]
    ds_write_b128 v5, v[44:47] offset:16
    s_waitcnt lgkmcnt(0)
    s_barrier
    s_cmp_lg_u32 s3, 0
    s_cbranch_scc1 K0_END
    v_lshlrev_b32 v5, 2, v0
    """)
    for kg in range(32):
        a.I(f"ds_read_b32 v{16+kg}, v5 offset:{kg*256}")
    a.I("s_waitcnt lgkmcnt(0)")
    for st in (16, 8, 4, 2, 1):
        for kg in range(st):
            a.I(f"v_add_f32 v{16+kg}, v{16+kg}, v{16+kg+st}")
    a.I(f"""
    s_mul_i32 s36, s33, {3072*4}
    s_lshl_b32 s37, s34, 8
    s_add_u32 s36, s36, s37
    buffer_store_dword v16, v5, s[8:11], s36 offen
    """)
    P.flush()
    a.I("s_endpgm")
    a.T("K0_XN:"); a.reset()
    Px = Prof(a, 5); Px.n = 1
    srd(a, 12, 16, 2048*1024)
    a.I(f"""
    s_sub_u32 s33, s2, 192
    v_lshlrev_b32 v3, 2, v0
    v_mov_b32 v4, 0
    s_lshl_b32 s34, s33, 10
    s_add_u32 s34, s34, {CNT}
    buffer_store_dword v4, v3, s[8:11], s34 offen
    v_and_b32 v3, 31, v2
    v_lshrrev_b32 v4, 5, v2
    v_lshlrev_b32 v5, 10, v3
    v_lshl_add_u32 v5, v4, 7, v5
    s_lshl_b32 s34, s33, 15
    s_lshl_b32 s35, s3, 8
    s_add_u32 s34, s34, s35
    """)
    for s in range(8):
        a.I(f"buffer_load_dwordx4 v[{16+4*s}:{19+4*s}], v5, s[12:15], s34 offen offset:{16*s}")
    a.I("s_waitcnt vmcnt(0)")
    Px.stamp()
    for d in range(32):
        a.I(f"v_lshlrev_b32 v{64+2*d}, 16, v{16+d}\nv_and_b32 v{65+2*d}, 0xffff0000, v{16+d}")
    def halfsum(src):
        a.I(f"v_mov_b32 v7, v{src}\nv_permlane32_swap_b32 v{src}, v7\nv_add_f32 v{src}, v{src}, v7")
    for c in range(4): a.I(f"v_add_f32 v{10+c}, v{64+c}, v{68+c}")
    for d in range(8, 64): a.I(f"v_add_f32 v{10+d%4}, v{10+d%4}, v{64+d}")
    a.I("v_add_f32 v10, v10, v11\nv_add_f32 v12, v12, v13\nv_add_f32 v6, v10, v12")
    halfsum(6)
    a.I(f"""
    v_lshlrev_b32 v8, 2, v3
    s_lshl_b32 s35, s3, 7
    v_add_u32 v9, s35, v8
    ds_write_b32 v9, v6
    s_waitcnt lgkmcnt(0)
    s_barrier
    ds_read_b32 v10, v8
    ds_read_b32 v11, v8 offset:128
    ds_read_b32 v12, v8 offset:256
    ds_read_b32 v13, v8 offset:384
    s_waitcnt lgkmcnt(0)
    v_add_f32 v10, v10, v11
    v_add_f32 v12, v12, v13
    v_add_f32 v10, v10, v12
    v_mul_f32 v14, 0x3b000000, v10
    """)
    for d in range(64):
        a.I(f"v_sub_f32 v7, v{64+d}, v14")
        a.I(f"v_mul_f32 v{10+d}, v7, v7" if d < 4 else f"v_fmac_f32 v{10+d%4}, v7, v7")
    a.I("v_add_f32 v10, v10, v11\nv_add_f32 v12, v12, v13\nv_add_f32 v6, v10, v12")
    halfsum(6)
    a.I(f"""
    ds_write_b32 v9, v6 offset:512
    s_waitcnt lgkmcnt(0)
    s_barrier
    ds_read_b32 v10, v8 offset:512
    ds_read_b32 v11, v8 offset:640
    ds_read_b32 v12, v8 offset:768
    ds_read_b32 v13, v8 offset:896
    s_waitcnt lgkmcnt(0)
    v_add_f32 v10, v10, v11
    v_add_f32 v12, v12, v13
    v_add_f32 v10, v10, v12
    v_mul_f32 v15, 0x3b000000, v10
    """)
    round_bf16(a, 14, 14); round_bf16(a, 15, 15)
    a.I("v_add_f32 v15, 0x3727c5ac, v15"); round_bf16(a, 15, 15)
    a.I("v_sqrt_f32 v15, v15"); round_bf16(a, 15, 15)
    a.I("v_rcp_f32 v15, v15")
    a.I(f"""
    v_lshlrev_b32 v8, 4, v2
    s_lshl_b32 s34, s33, 15
    s_lshl_b32 s35, s3, 13
    s_add_u32 s34, s34, s35
    s_add_u32 s34, s34, {XN}
    """)
    for d in range(32):
        lo, hi = 64+2*d, 65+2*d
        a.I(f"""
        v_sub_f32 v{lo}, v{lo}, v14
        v_sub_f32 v{hi}, v{hi}, v14
        v_cvt_pk_bf16_f32 v6, v{lo}, v{hi}
        v_lshlrev_b32 v{lo}, 16, v6
        v_and_b32 v{hi}, 0xffff0000, v6
        v_mul_f32 v{lo}, v{lo}, v15
        v_mul_f32 v{hi}, v{hi}, v15
        v_cvt_pk_bf16_f32 v{16+d}, v{lo}, v{hi}
        """)
        if d % 4 == 3:
            ss = d // 4
            if ss == 4: a.I("s_add_u32 s34, s34, 4096")
            a.I(f"buffer_store_dwordx4 v[{16+4*ss}:{19+4*ss}], v8, s[8:11], s34 offen offset:{1024*(ss%4)}")
    Px.flush()
    a.I("s_endpgm")
    a.T("K0_WQ:"); a.reset()
    srd(a, 12, 18, 512*3072)
    a.I(f"""
    s_sub_u32 s33, s2, 256
    s_lshl_b32 s33, s33, 2
    s_add_u32 s33, s33, s3
    s_mov_b32 s32, 0xaaaaaab
    s_mul_hi_u32 s34, s33, s32
    s_mul_i32 s35, s34, 24
    s_sub_u32 s35, s33, s35
    v_lshrrev_b32 v3, 3, v2
    v_and_b32 v4, 7, v2
    s_mov_b32 s38, {8*3072}
    v_mul_lo_u32 v5, v3, s38
    v_lshl_add_u32 v5, v4, 4, v5
    s_mul_i32 s36, s34, {64*3072}
    s_lshl_b32 s37, s35, 7
    s_add_u32 s36, s36, s37
    """)
    for j in range(8):
        a.I(f"buffer_load_dwordx4 v[{16+4*j}:{19+4*j}], v5, s[12:15], s36 offen")
        if j < 7: a.I("s_add_u32 s36, s36, 3072")
    a.I(f"""
    s_and_b32 s36, s35, 7
    s_mul_i32 s36, s36, {2*98304}
    s_lshr_b32 s37, s35, 3
    s_lshl_b32 s37, s37, 10
    s_add_u32 s36, s36, s37
    s_lshr_b32 s37, s34, 1
    s_mul_i32 s37, s37, {8*3072}
    s_add_u32 s36, s36, s37
    s_and_b32 s37, s34, 1
    s_lshl_b32 s37, s37, 9
    s_add_u32 s36, s36, s37
    s_add_u32 s36, s36, {WQ}
    v_lshrrev_b32 v6, 2, v4
    v_lshl_add_u32 v6, v6, 3, v3
    v_lshlrev_b32 v6, 9, v6
    v_and_b32 v7, 3, v4
    v_lshl_add_u32 v6, v7, 7, v6
    s_lshl_b32 s42, s3, 13
    v_add_u32 v6, s42, v6
    v_lshlrev_b32 v7, 4, v2
    v_add_u32 v7, s42, v7
    v_lshrrev_b32 v9, 5, v2
    v_mul_u32_u24 v9, 3072, v9
    v_and_b32 v10, 31, v2
    v_lshl_add_u32 v9, v10, 4, v9
    s_waitcnt vmcnt(0)
    """)
    transpose8x8(a, 16, 64, 40, 41)
    for i in range(8): a.I(f"ds_write_b128 v6, v[{64+4*i}:{67+4*i}] offset:{16*i}")
    a.I("s_waitcnt lgkmcnt(0)")
    for f in range(8): a.I(f"ds_read_b128 v[{64+4*f}:{67+4*f}], v7 offset:{1024*f}")
    a.I("s_waitcnt lgkmcnt(0)")
    for f in range(8):
        a.I(f"buffer_store_dwordx4 v[{64+4*f}:{67+4*f}], v9, s[8:11], s36 offen")
        a.I(f"s_add_u32 s36, s36, {6144 if f != 3 else 98304 - 3*6144}")
    Pq = Prof(a, 6); Pq.n = 1; Pq.flush()
    a.I("s_endpgm")
    a.T("K0_WO:"); a.reset()
    srd(a, 12, 20, 512*1024)
    a.I("s_sub_u32 s33, s2, 304\ns_lshl_b32 s33, s33, 2\ns_add_u32 s33, s33, s3")
    a.I("v_lshlrev_b32 v8, 4, v2")
    chained_addr(a, 33, 16); chained_loads(a, 16, 12)
    chained_store(a, 16, 64, WO, 32768, 999)
    a.I("s_endpgm")
    a.T("K0_W2:"); a.reset()
    srd(a, 12, 22, 1376*1024)
    a.I("s_sub_u32 s33, s2, 406\ns_lshl_b32 s33, s33, 2\ns_add_u32 s33, s33, s3\nv_lshlrev_b32 v8, 4, v2")
    chained_addr(a, 33, 16); chained_loads(a, 16, 12)
    chained_store(a, 16, 64, W2, 88064, 21)
    a.I("s_endpgm")
    a.T("K0_W13:"); a.reset()
    a.I(f"""
    s_sub_u32 s54, s2, 320
    s_and_b32 s53, s54, 1
    s_lshr_b32 s54, s54, 1
    v_lshlrev_b32 v8, 4, v2
    v_lshrrev_b32 v14, 3, v2
    v_bfe_u32 v4, v2, 2, 1
    v_and_b32 v5, 3, v2
    s_lshl_b32 s42, s3, 3
    v_add_u32 v13, s42, v14
    v_lshlrev_b32 v15, 4, v13
    v_lshl_add_u32 v15, v4, 2, v15
    s_mov_b32 s42, 2752
    v_mul_lo_u32 v7, v15, s42
    v_lshl_add_u32 v7, v5, 4, v7
    s_lshl_b32 s42, s54, 6
    s_cmp_eq_u32 s53, 1
    s_cselect_b32 s24, s26, s24
    s_cselect_b32 s25, s27, s25
    """)
    srd(a, 16, 24, 512*2752)
    for j in range(8):
        row = (j % 4) + 8*(j // 4)
        a.I(f"v_add_u32 v9, {row*2752}, v7\nbuffer_load_dwordx4 v[{16+4*j}:{19+4*j}], v9, s[16:19], s42 offen")
    a.I(f"""
    v_lshlrev_b32 v6, 10, v14
    v_lshl_add_u32 v6, v4, 9, v6
    v_lshl_add_u32 v6, v5, 7, v6
    s_lshl_b32 s42, s3, 13
    v_add_u32 v6, s42, v6
    v_add_u32 v7, s42, v8
    s_mul_i32 s38, s54, 43691
    s_lshr_b32 s38, s38, 17
    s_mul_i32 s39, s38, 3
    s_sub_u32 s39, s54, s39
    s_lshl_b32 s39, s39, 1
    s_add_u32 s39, s39, s53
    s_lshl_b32 s39, s39, 10
    s_mul_i32 s38, s38, 196608
    s_add_u32 s38, s38, s39
    s_mul_i32 s39, s3, {8*6144}
    s_add_u32 s38, s38, s39
    s_add_u32 s38, s38, {W13}
    s_waitcnt vmcnt(0)
    """)
    transpose8x8(a, 16, 64, 40, 41)
    for i in range(8): a.I(f"ds_write_b128 v6, v[{64+4*i}:{67+4*i}] offset:{16*i}")
    a.I("s_waitcnt lgkmcnt(0)")
    for f in range(8): a.I(f"ds_read_b128 v[{64+4*f}:{67+4*f}], v7 offset:{1024*f}")
    a.I("s_waitcnt lgkmcnt(0)")
    for f in range(8):
        a.I(f"buffer_store_dwordx4 v[{64+4*f}:{67+4*f}], v8, s[8:11], s38 offen\ns_add_u32 s38, s38, 6144")
    a.T("K0_END:")
    a.I("s_endpgm")

def wg_map(a, mode):
    if mode == "r4c2":
        a.I("""
        s_bfe_u32 s33, s2, 0x20001
        s_lshl_b32 s33, s33, 2
        s_bfe_u32 s34, s2, 0x20003
        s_add_u32 s33, s33, s34
        s_and_b32 s34, s2, 1
        s_lshl_b32 s34, s34, 3
        s_lshr_b32 s35, s2, 5
        s_add_u32 s34, s34, s35
        """)
    elif mode == "r2c4":
        a.I("""
        s_bfe_u32 s33, s2, 0x10002
        s_lshl_b32 s33, s33, 3
        s_bfe_u32 s34, s2, 0x30003
        s_add_u32 s33, s33, s34
        s_and_b32 s34, s2, 3
        s_lshl_b32 s34, s34, 2
        s_lshr_b32 s35, s2, 6
        s_add_u32 s34, s34, s35
        """)
    elif mode == "sq":
        a.I("""
        s_bfe_u32 s33, s2, 0x20001
        s_lshl_b32 s33, s33, 3
        s_bfe_u32 s34, s2, 0x30003
        s_add_u32 s33, s33, s34
        s_and_b32 s34, s2, 1
        s_lshl_b32 s34, s34, 2
        s_lshr_b32 s35, s2, 6
        s_add_u32 s34, s34, s35
        """)

SC = " sc1"
def signal(a, soff):
    a.I(f"""
    s_waitcnt vmcnt(0)
    v_mov_b32 v0, 0
    v_mov_b32 v1, 1
    s_mov_b64 exec, 1
    buffer_atomic_add v1, v0, s[8:11], {soff} offen sc1
    s_mov_b64 exec, -1
    """)
    a.vmq = []
def poll(a, label, soff, target):
    a.I("v_mov_b32 v0, 0\ns_mov_b32 s31, 0")
    a.T(f"{label}:")
    a.I(f"""
    buffer_load_dword v1, v0, s[8:11], {soff} offen sc1
    s_waitcnt vmcnt(0)
    v_readfirstlane_b32 s30, v1
    s_add_u32 s31, s31, 1
    s_cmp_ge_u32 s30, {target}
    s_cbranch_scc1 {label}_OK
    s_cmp_ge_u32 s31, 0x100000
    s_cbranch_scc1 {label}_OK
    s_sleep 1
    s_branch {label}
    """)
    a.T(f"{label}_OK:")
    a.vmq = []
def modvec_loads(a, row, base, soff_tmp, ct_s, vaddr):
    for ks in range(4):
        a.I(f"s_lshl_b32 {soff_tmp}, {ct_s}, 7\ns_add_u32 {soff_tmp}, {soff_tmp}, {MODP + ks*12288 + row*2048}")
        for aa in range(4):
            a.VM(f"buffer_load_dwordx4 v[{base+16*ks+4*aa}:{base+16*ks+4*aa+3}], {vaddr}, s[8:11], {soff_tmp} offen offset:{32*aa}", "mv")
def modvec_sum(a, base, dst, plus1):
    for r in range(16):
        a.I(f"v_add_f32 v{base+r}, v{base+r}, v{base+16+r}\nv_add_f32 v{base+32+r}, v{base+32+r}, v{base+48+r}\nv_add_f32 v{dst+r}, v{base+r}, v{base+32+r}")
    for r in range(0, 16, 2):
        a.I(f"v_cvt_pk_bf16_f32 v1, v{dst+r}, v{dst+r+1}\nv_lshlrev_b32 v{dst+r}, 16, v1\nv_and_b32 v{dst+r+1}, 0xffff0000, v1")
    if plus1:
        for r in range(16): a.I(f"v_add_f32 v{dst+r}, 1.0, v{dst+r}")
        for r in range(0, 16, 2):
            a.I(f"v_cvt_pk_bf16_f32 v1, v{dst+r}, v{dst+r+1}\nv_lshlrev_b32 v{dst+r}, 16, v1\nv_and_b32 v{dst+r+1}, 0xffff0000, v1")

def gen_main(a):
    TAB, HBL, KT, VT = 98304, 102400, 131072, 140288
    UTT, UTZ = 158720, 162816
    header(a, "km_kernel")
    P = Prof(a, 1); P.stamp()
    a.I(f"""
    s_cmp_ge_u32 s2, 256
    s_cbranch_scc1 KM_END
    s_load_dwordx2 s[4:5], s[0:1], {A_WS}
    s_load_dwordx2 s[6:7], s[0:1], {A_X}
    s_load_dwordx2 s[20:21], s[0:1], {A_OUT}
    v_lshrrev_b32 v1, 6, v0
    v_and_b32 v2, 63, v0
    v_readfirstlane_b32 s3, v1
    v_lshlrev_b32 v8, 4, v2
    """)
    wg_map(a, "r4c2")
    a.I(f"""
    s_and_b32 s50, s3, 3
    s_lshl_b32 s36, s33, 2
    s_add_u32 s36, s36, s50
    s_waitcnt lgkmcnt(0)
    """)
    srd(a, 8, 4, WS_BYTES); srd(a, 12, 6, 2048*1024); srd(a, 16, 20, 2048*1024)
    a.I("s_cmp_ge_u32 s3, 4\ns_cbranch_scc1 KM_LOADER")
    MT = 16
    def modulate(base, tb):
        ins = []
        for d in range(4): ins += [f"v_lshlrev_b32 v{MT+2*d}, 16, v{base+d}", f"v_and_b32 v{MT+2*d+1}, 0xffff0000, v{base+d}"]
        for j in range(8): ins.append(f"v_fma_f32 v{MT+j}, v{MT+j}, v{tb+j}, v{tb+8+j}")
        for d in range(4): ins.append(f"v_cvt_pk_bf16_f32 v{base+d}, v{MT+2*d}, v{MT+2*d+1}")
        return ins
    AF, TB, XB, ACC = 32, 80, 112, 144
    a.I("v_lshlrev_b32 v3, 3, v0")
    for ks in range(4):
        a.I(f"s_mov_b32 s35, {MODP + ks*12288}")
        a.I(f"buffer_load_dwordx2 v[{16+2*ks}:{17+2*ks}], v3, s[8:11], s35 offen")
        a.I(f"buffer_load_dwordx2 v[{24+2*ks}:{25+2*ks}], v3, s[8:11], s35 offen offset:2048")
    a.I(f"s_lshl_b32 s37, s36, 15\ns_add_u32 s37, s37, {XN}")
    def bload(i):
        a.I(f"buffer_load_dwordx4 v[{XB+4*i}:{XB+4*i+3}], v8, s[8:11], s37 offen offset:{1024*(i%4)}")
        if i % 4 == 3: a.I("s_add_u32 s37, s37, 4096")
    for i in range(8): bload(i)
    a.I(f"""
    v_lshrrev_b32 v4, 6, v0
    v_bfe_u32 v5, v0, 2, 3
    v_lshl_add_u32 v4, v4, 3, v5
    v_bfe_u32 v5, v0, 5, 1
    v_lshl_add_u32 v4, v4, 1, v5
    v_and_b32 v5, 3, v0
    v_lshlrev_b32 v4, 5, v4
    v_lshl_add_u32 v4, v5, 3, v4
    v_add_u32 v4, {TAB}, v4
    v_lshrrev_b32 v5, 5, v2
    v_lshlrev_b32 v10, 5, v5
    v_add_u32 v10, {TAB}, v10
    v_mov_b32 v9, v8
    s_mov_b32 s41, 0
    """)
    for i in range(48): a.I(f"v_mov_b32 v{ACC+i}, 0")
    a.I("s_waitcnt vmcnt(8)")
    for o in (16, 24):
        for e in range(2):
            r = o+e
            a.I(f"v_add_f32 v{r}, v{r}, v{r+2}\nv_add_f32 v{r+4}, v{r+4}, v{r+6}\nv_add_f32 v{r}, v{r}, v{r+4}")
            round_bf16(a, r, r)
    for e in range(2):
        a.I(f"v_add_f32 v{24+e}, 1.0, v{24+e}"); round_bf16(a, 24+e, 24+e)
    a.I("ds_write_b64 v4, v[24:25]\nds_write_b64 v4, v[16:17] offset:2048\ns_waitcnt lgkmcnt(0)\ns_barrier")
    P.stamp()
    def reads(i):
        tb = TB + 16*(i % 2)
        for q in range(4): a.I(f"ds_read_b128 v[{tb+4*q}:{tb+4*q+3}], v10 offset:{(q//2)*2048 + i*64 + (q%2)*16}")
        for ty in range(3): a.I(f"ds_read_b128 v[{AF+12*(i%4)+4*ty}:{AF+12*(i%4)+4*ty+3}], v9 offset:{i*3072 + ty*1024}")
    reads(0); reads(1)
    a.I("s_waitcnt vmcnt(7) lgkmcnt(10)")
    for x in modulate(XB, TB): a.I(x)
    def loop(tag, pos):
        a.T(f"P1_LOOP{tag}:")
        for i in range(8):
            if (i + 2) % 4 == 0: a.I("s_barrier")
            if pos < 0:
                reads(i+2); a.I("s_waitcnt vmcnt(6) lgkmcnt(10)")
            else:
                a.I("s_waitcnt vmcnt(6) lgkmcnt(3)")
            fill = modulate(XB+4*((i+1) % 8), TB + 16*((i+1) % 2))
            nf = (len(fill)+2)//3
            for ty in range(3):
                a.I(f"v_mfma_f32_32x32x16_bf16 v[{ACC+16*ty}:{ACC+16*ty+15}], v[{AF+12*(i%4)+4*ty}:{AF+12*(i%4)+4*ty+3}], v[{XB+4*i}:{XB+4*i+3}], v[{ACC+16*ty}:{ACC+16*ty+15}]")
                for x in fill[nf*ty:nf*ty+nf]: a.I(x)
                if pos == ty: reads(i+2)
            bload(i)
        a.I(f"""
        v_add_u32 v9, 24576, v9
        v_add_u32 v10, 512, v10
        s_add_u32 s41, s41, 1
        s_cmp_eq_u32 s41, 3
        s_cselect_b32 s37, 0x7ff00000, s37
        s_cmp_lt_u32 s41, 4
        s_cbranch_scc1 P1_LOOP{tag}
        """)
    a.I("s_and_b32 s35, s3, 1\ns_cmp_lg_u32 s35, 0\ns_cbranch_scc1 P1_LOOPB")
    loop("A", -1)
    a.I("s_branch P1_LOOPE")
    loop("B", 1)
    a.T("P1_LOOPE:")
    a.I("s_waitcnt vmcnt(0) lgkmcnt(0)\ns_nop 7")
    P.stamp()
    a.I("s_barrier")
    QP, KP = 116, 24
    a.I(f"""
    v_and_b32 v3, 31, v2
    v_lshrrev_b32 v4, 5, v2
    s_lshl_b32 s35, s3, 5
    v_add_u32 v5, s35, v3
    v_add_u32 v5, 16, v5
    v_mul_u32_u24 v6, {144*16}, v4
    v_lshl_add_u32 v15, v5, 4, v6
    v_add_u32 v15, {KT}, v15
    v_mul_u32_u24 v6, {2*144*16}, v4
    v_lshl_add_u32 v7, v5, 4, v6
    v_add_u32 v7, {VT}, v7
    """)
    for d in range(8): a.I(f"v_cvt_pk_bf16_f32 v{KP+d}, v{ACC+16+2*d}, v{ACC+17+2*d}")
    for d in range(8):
        a.I(f"v_cvt_pk_bf16_f32 v9, v{ACC+32+2*d}, v{ACC+33+2*d}\nv_lshlrev_b32 v{ACC+32+2*d}, 16, v9\nv_and_b32 v{ACC+33+2*d}, 0xffff0000, v9")
    V0 = ACC+32
    for x in [f"ds_write_b128 v15, v[{KP}:{KP+3}]", f"ds_write_b128 v15, v[{KP+4}:{KP+7}] offset:{2*144*16}",
              f"ds_write_b128 v7, v[{V0}:{V0+3}]", f"ds_write_b128 v7, v[{V0+4}:{V0+7}] offset:{144*16}",
              f"ds_write_b128 v7, v[{V0+8}:{V0+11}] offset:{4*144*16}", f"ds_write_b128 v7, v[{V0+12}:{V0+15}] offset:{5*144*16}"]:
        a.I(x)
    for d in range(8): a.I(f"v_cvt_pk_bf16_f32 v{QP+d}, v{ACC+2*d}, v{ACC+1+2*d}")
    a.I("v_subrev_u32 v15, 224, v15\nv_subrev_u32 v7, 224, v7\ns_waitcnt lgkmcnt(0)\ns_barrier")
    a.reset()
    for e in range(2):
        for w in range(8):
            a.DS(f"ds_read_b128 v[{32+(e*8+w)*4}:{35+(e*8+w)*4}], v15 offset:{e*2*144*16 + (7-w)*32}", f"k{e}{w//4}")
    VB, LG = 128, 96
    def vread(e, w):
        for aa in range(2):
            r = VB + ((e*8+w)*2+aa)*4
            a.DS(f"ds_read_b128 v[{r}:{r+3}], v7 offset:{e*4*144*16 + aa*144*16 + (7-w)*32}", f"v{e}{w//2}")
    for e in range(2):
        for w in range(8):
            if w % 4 == 0: a.WAIT(ds=f"k{e}{w//4}")
            kb = 32+(e*8+w)*4
            a.I(f"v_dot2_f32_bf16 v{LG+e*8+w}, v{QP+4*e}, v{kb}, 0")
            for d in range(1, 4):
                a.I(f"v_dot2_f32_bf16 v{LG+e*8+w}, v{QP+4*e+d}, v{kb+d}, v{LG+e*8+w}")
            vread(e, w)
    for w in range(8): a.I(f"v_permlane32_swap_b32 v{LG+w}, v{LG+8+w}")
    for w in range(8): a.I(f"v_add_f32 v{LG+w}, v{LG+w}, v{LG+8+w}")
    for w in range(0, 8, 2):
        a.I(f"v_cvt_pk_bf16_f32 v5, v{LG+w}, v{LG+w+1}\nv_lshlrev_b32 v{LG+w}, 16, v5\nv_and_b32 v{LG+w+1}, 0xffff0000, v5")
    a.I(f"s_mov_b32 s35, 0x3eb8aa3b\ns_cmp_lg_u32 s36, 0\ns_cbranch_scc1 P1_NOMASK\nv_and_b32 v3, 31, v2\nv_mov_b32 v4, 0xcf6e6b28")
    for w in range(1, 8):
        a.I(f"v_cmp_le_u32 vcc, {2*w}, v3\nv_cndmask_b32 v{LG+w}, v4, v{LG+w}, vcc")
    a.T("P1_NOMASK:")
    a.I(f"v_max3_f32 v5, v{LG}, v{LG+1}, v{LG+2}\nv_max3_f32 v6, v{LG+3}, v{LG+4}, v{LG+5}\nv_max3_f32 v5, v5, v{LG+6}, v{LG+7}\nv_max_f32 v5, v5, v6")
    for w in range(8): a.I(f"v_sub_f32 v{LG+w}, v{LG+w}, v5")
    for w in range(8): a.I(f"v_mul_f32 v{LG+w}, s35, v{LG+w}")
    for w in range(8): a.I(f"v_exp_f32 v{LG+w}, v{LG+w}")
    a.I(f"v_add_f32 v5, v{LG}, v{LG+1}\nv_add_f32 v6, v{LG+2}, v{LG+3}\nv_add_f32 v9, v{LG+4}, v{LG+5}\nv_add_f32 v10, v{LG+6}, v{LG+7}\nv_add_f32 v5, v5, v6\nv_add_f32 v9, v9, v10\nv_add_f32 v6, v5, v9\nv_rcp_f32 v6, v6")
    for w in range(8): a.I(f"v_mul_f32 v{LG+w}, v{LG+w}, v6")
    for w in range(0, 8, 2):
        a.I(f"v_cvt_pk_bf16_f32 v5, v{LG+w}, v{LG+w+1}\nv_lshlrev_b32 v{LG+w}, 16, v5\nv_and_b32 v{LG+w+1}, 0xffff0000, v5")
    for w in range(8): a.I(f"v_mov_b32 v{LG+8+w}, v{LG+w}")
    for w in range(8): a.I(f"v_permlane32_swap_b32 v{LG+w}, v{LG+8+w}")
    OA = 16
    a.I(f"s_lshl_b32 s37, s36, 15\ns_lshl_b32 s38, s34, 11\ns_add_u32 s37, s37, s38\ns_add_u32 s37, s37, {OO}")
    for e in range(2):
        for w in range(8):
            if w % 2 == 0: a.WAIT(ds=f"v{e}{w//2}")
            for q in range(8):
                r = VB + (e*8+w)*8 + q
                a.I(f"v_mul_f32 v{OA+q}, v{LG+8*e+w}, v{r}" if w == 0 else f"v_fmac_f32 v{OA+q}, v{LG+8*e+w}, v{r}")
        for d in range(4): a.I(f"v_cvt_pk_bf16_f32 v{32+4*e+d}, v{OA+2*d}, v{OA+2*d+1}")
        a.I(f"buffer_store_dwordx4 v[{32+4*e}:{35+4*e}], v8, s[8:11], s37 offen offset:{1024*e}{SC}")
    a.I(f"s_lshl_b32 s38, s36, 8\ns_add_u32 s38, s38, {CNT}")
    signal(a, "s38")
    P.stamp()
    def proj_compute(which):
        nt = 32 if which == 2 else 86
        wg_map(a, "sq")
        a.I(f"""
        s_and_b32 s51, s3, 1
        s_lshr_b32 s52, s3, 1
        s_lshl_b32 s36, s33, 1
        s_add_u32 s36, s36, s51         ; mb
        s_lshl_b32 s35, s34, 1
        s_add_u32 s35, s35, s52         ; ct
        v_and_b32 v3, 31, v2
        v_lshrrev_b32 v4, 5, v2
        v_lshlrev_b32 v5, 4, v4
        s_lshl_b32 s41, s36, 15
        s_lshl_b32 s42, s35, 6
        s_add_u32 s41, s41, s42
        v_lshlrev_b32 v6, 10, v3
        v_lshl_add_u32 v6, v4, 3, v6
        s_lshl_b32 s42, s36, 15
        s_lshl_b32 s44, s35, 11
        s_add_u32 s42, s42, s44
        s_add_u32 s42, s42, {X1}
        """)
        a.reset()
        modvec_loads(a, 2 if which == 2 else 5, 128, "s43", "s35", "v5")
        if which == 2:
            modvec_loads(a, 4, 192, "s43", "s35", "v5")
            for aa in range(4):
                a.VM(f"buffer_load_dwordx2 v[{32+2*aa}:{33+2*aa}], v6, s[12:15], s41 offen offset:{16*aa}", "mv")
            a.I("""
            s_lshl_b32 s44, s52, 15
            v_add_u32 v10, s44, v8
            s_lshl_b32 s44, s51, 15
            s_add_u32 s44, s44, 65536
            v_add_u32 v9, s44, v8
            """)
        else:
            a.I("""
            s_lshl_b32 s44, s51, 13
            v_add_u32 v9, s44, v8
            s_lshl_b32 s44, s52, 13
            s_add_u32 s44, s44, 16384
            v_add_u32 v10, s44, v8
            v_add_u32 v11, 65536, v9
            v_add_u32 v12, 65536, v10
            """)
        a.WAIT(vm="mv")
        modvec_sum(a, 128, 16, False)
        if which == 2: modvec_sum(a, 192, 112, True)
        FR = 64
        def fread(t):
            if which == 2:
                rb, ra, off = "v9", "v10", t*1024
            else:
                off = ((t//8) % 4)*32768 + (t % 8)*1024
                rb, ra = [("v9", "v10"), ("v11", "v12")][off // 65536]; off %= 65536
            st = FR + 8*(t % 4)
            a.DS(f"ds_read_b128 v[{st}:{st+3}], {ra} offset:{off}", f"f{t}")
            a.DS(f"ds_read_b128 v[{st+4}:{st+7}], {rb} offset:{off}", f"f{t}")
        a.I("s_barrier")
        P.stamp()
        if which == 4:
            a.VM(f"buffer_load_dwordx4 v[32:35], v8, s[8:11], s42 offen{SC}", "e")
            a.VM(f"buffer_load_dwordx4 v[36:39], v8, s[8:11], s42 offen offset:1024{SC}", "e")
        for t in range(3): fread(t)
        for t in range(nt):
            if t + 3 < nt:
                if (t+3) % 8 == 0: a.I("s_barrier")
                fread(t+3)
            a.WAIT(ds=f"f{t}")
            st = FR + 8*(t % 4)
            cin = "0" if t == 0 else "v[48:63]"
            a.I(f"v_mfma_f32_32x32x16_bf16 v[48:63], v[{st}:{st+3}], v[{st+4}:{st+7}], {cin}")
            if t == nt - 6:
                a.WAIT(vm="e")
                for d in range(8):
                    a.I(f"v_lshlrev_b32 v{96+2*d}, 16, v{32+d}\nv_and_b32 v{97+2*d}, 0xffff0000, v{32+d}")
        if which == 2: a.I("s_barrier")
        P.stamp()
        for r in range(16): a.I(f"v_fmac_f32 v{96+r}, v{48+r}, v{16+r}")
        for d in range(8): a.I(f"v_cvt_pk_bf16_f32 v{84+d}, v{96+2*d}, v{97+2*d}")
        if which == 2:
            for d in range(8):
                a.I(f"v_lshlrev_b32 v{96+2*d}, 16, v{84+d}\nv_and_b32 v{97+2*d}, 0xffff0000, v{84+d}")
            for r in range(16): a.I(f"v_mul_f32 v{112+r}, v{112+r}, v{96+r}")
            for d in range(8): a.I(f"v_cvt_pk_bf16_f32 v{64+d}, v{112+2*d}, v{113+2*d}")
            a.I(f"""
            s_add_u32 s43, s42, {YY - X1}
            buffer_store_dwordx4 v[64:67], v8, s[8:11], s43 offen{SC}
            buffer_store_dwordx4 v[68:71], v8, s[8:11], s43 offen offset:1024{SC}
            v_add_f32 v92, v96, v97
            v_add_f32 v94, v98, v99
            v_mul_f32 v93, v96, v96
            v_mul_f32 v95, v97, v97
            v_fmac_f32 v93, v98, v98
            v_fmac_f32 v95, v99, v99
            """)
            for r in range(4, 16, 2):
                a.I(f"v_add_f32 v92, v92, v{96+r}\nv_add_f32 v94, v94, v{97+r}\nv_fmac_f32 v93, v{96+r}, v{96+r}\nv_fmac_f32 v95, v{97+r}, v{97+r}")
            a.I(f"""
            v_add_f32 v92, v92, v94
            v_add_f32 v93, v93, v95
            v_mov_b32 v94, v92
            v_mov_b32 v95, v93
            v_permlane32_swap_b32 v92, v94
            v_permlane32_swap_b32 v93, v95
            v_add_f32 v92, v92, v94
            v_add_f32 v93, v93, v95
            v_lshlrev_b32 v7, 7, v3
            s_lshl_b32 s44, s36, 12
            s_lshl_b32 s43, s35, 3
            s_add_u32 s44, s44, s43
            s_add_u32 s44, s44, {ST}
            buffer_store_dwordx2 v[92:93], v7, s[8:11], s44 offen{SC}
            buffer_store_dwordx4 v[84:87], v8, s[8:11], s42 offen{SC}
            buffer_store_dwordx4 v[88:91], v8, s[8:11], s42 offen offset:1024{SC}
            s_lshl_b32 s38, s36, 8
            s_add_u32 s38, s38, {CNT + 0x4000}
            """)
            signal(a, "s38")
        else:
            a.I("""
            v_permlane32_swap_b32 v84, v86
            v_permlane32_swap_b32 v85, v87
            v_permlane32_swap_b32 v88, v90
            v_permlane32_swap_b32 v89, v91
            v_lshlrev_b32 v6, 10, v3
            v_lshl_add_u32 v6, v4, 4, v6
            buffer_store_dwordx4 v[84:87], v6, s[16:19], s41 offen
            buffer_store_dwordx4 v[88:91], v6, s[16:19], s41 offen offset:32
            """)
        P.stamp()
    proj_compute(2)
    wg_map(a, "r2c4")
    a.I(f"""
    s_cmp_ge_u32 s34, 15
    s_cbranch_scc1 C_P4
    s_lshl_b32 s36, s33, 2
    s_add_u32 s36, s36, s50
    v_and_b32 v3, 31, v2
    v_lshrrev_b32 v4, 5, v2
    v_mov_b32 v9, v8
    v_add_u32 v11, 49152, v9
    v_lshlrev_b32 v5, 4, v4
    v_add_u32 v5, 147456, v5
    v_lshlrev_b32 v6, 7, v3
    v_lshl_add_u32 v6, v4, 6, v6
    s_lshl_b32 s41, s36, 12
    s_add_u32 s41, s41, {ST}
    s_lshl_b32 s37, s36, 15
    s_add_u32 s37, s37, {YY}
    s_mul_i32 s44, s36, {86*1024}
    s_mul_i32 s43, s34, {6*1024}
    s_add_u32 s44, s44, s43
    s_add_u32 s44, s44, {HH}
    s_mov_b32 s45, {LOG2E}
    s_mov_b32 s46, 49152
    s_mov_b32 s47, 0
    s_mov_b32 s48, {-49152 & 0xffffffff}
    s_lshl_b32 s38, s36, 8
    s_add_u32 s38, s38, {CNT + 0x4000}
    """)
    AF3, BB, AC3 = 16, 112, 160
    for i in range(96): a.I(f"v_mov_b32 v{AC3+i}, 0")
    poll(a, "C_PL3", "s38", 16)
    P.stamp()
    for q in range(4):
        a.I(f"buffer_load_dwordx4 v[{144+4*q}:{147+4*q}], v6, s[8:11], s41 offen offset:{16*q}{SC}")
    def bload3(i):
        a.I(f"buffer_load_dwordx4 v[{BB+4*i}:{BB+4*i+3}], v8, s[8:11], s37 offen offset:{1024*(i%4)}{SC}")
        if i % 4 == 3: a.I("s_add_u32 s37, s37, 4096")
    for i in range(8): bload3(i)
    def fread3(i, lo, hi):
        ra = "v11" if i >= 8 else "v9"
        for f in range(lo, hi):
            a.I(f"ds_read_b128 v[{AF3+24*(i%4)+4*f}:{AF3+24*(i%4)+4*f+3}], {ra} offset:{(i%8)*6144 + 1024*f}")
    a.I("s_barrier")
    fread3(0, 0, 6); fread3(1, 0, 6)
    a.T("P3_LOOP:")
    for i in range(8):
        if i % 2 == 0: a.I("s_barrier")
        for hf in range(2):
            fread3(i+2, 3*hf, 3*hf+3)
            a.I("s_waitcnt vmcnt(7) lgkmcnt(12)" if hf == 0 else "s_waitcnt lgkmcnt(12)")
            for f in range(3*hf, 3*hf+3):
                a.I(f"v_mfma_f32_32x32x16_bf16 v[{AC3+16*f}:{AC3+16*f+15}], v[{AF3+24*(i%4)+4*f}:{AF3+24*(i%4)+4*f+3}], v[{BB+4*i}:{BB+4*i+3}], v[{AC3+16*f}:{AC3+16*f+15}]")
        bload3(i)
    a.I(f"""
    v_mov_b32 v9, v11
    s_add_u32 s46, s46, 49152
    s_cmp_eq_u32 s46, 147456
    s_cselect_b32 s49, 98304, s48
    s_cselect_b32 s46, 0, s46
    v_subrev_u32 v11, s49, v11
    s_add_u32 s47, s47, 1
    s_cmp_eq_u32 s47, 3
    s_cselect_b32 s37, 0x7ff00000, s37
    s_cmp_lt_u32 s47, 4
    s_cbranch_scc1 P3_LOOP
    s_waitcnt vmcnt(0) lgkmcnt(0)
    s_barrier
    """)
    P.stamp()
    a.reset()
    def ut_reads(p):
        for arr in range(4):
            for aa in range(4):
                r = 16 + arr*16 + 4*aa
                a.DS(f"ds_read_b128 v[{r}:{r+3}], v5 offset:{arr*384 + p*128 + aa*32}", f"u{p}_{arr//2}")
    ut_reads(0)
    for q in range(1, 8): a.I(f"v_add_f32 v144, v144, v{144+2*q}\nv_add_f32 v145, v145, v{145+2*q}")
    a.I("""
    v_mov_b32 v146, v144
    v_mov_b32 v147, v145
    v_permlane32_swap_b32 v144, v146
    v_permlane32_swap_b32 v145, v147
    v_add_f32 v144, v144, v146
    v_add_f32 v145, v145, v147
    v_mul_f32 v13, 0x3b000000, v144
    v_mul_f32 v12, 0x3b000000, v145
    v_fma_f32 v12, -v13, v13, v12
    v_max_f32 v12, 0, v12
    v_add_f32 v12, 0x3727c5ac, v12
    v_rsq_f32 v14, v12
    v_sub_f32 v15, 0, v13
    """)
    U = 16; TMP = 80
    for p in range(3):
        if p == 1: a.I("s_cmp_eq_u32 s34, 14\ns_cbranch_scc1 P3_FIN")
        for mm in range(2):
            a.WAIT(ds=f"u{p}_{mm}")
            A = AC3 + 32*p + 16*mm
            for r in range(16): a.I(f"v_fmac_f32 v{A+r}, v{U+32*mm+r}, v15")
            for r in range(16): a.I(f"v_fma_f32 v{A+r}, v{A+r}, v14, v{U+32*mm+16+r}")
        G = AC3 + 32*p
        if p < 2: ut_reads(p+1)
        for r in range(16): a.I(f"v_mul_f32 v{TMP+r}, s45, v{G+r}")
        for r in range(16): a.I(f"v_exp_f32 v{TMP+r}, -v{TMP+r}")
        for r in range(16): a.I(f"v_mul_f32 v{G+r}, v{G+r}, v{G+16+r}")
        for r in range(16): a.I(f"v_add_f32 v{TMP+r}, 1.0, v{TMP+r}")
        for r in range(16): a.I(f"v_rcp_f32 v{TMP+r}, v{TMP+r}")
        for r in range(16): a.I(f"v_mul_f32 v{G+r}, v{G+r}, v{TMP+r}")
        for d in range(8): a.I(f"v_cvt_pk_bf16_f32 v{96+8*p+d}, v{G+2*d}, v{G+2*d+1}")
        a.I(f"buffer_store_dwordx4 v[{96+8*p}:{99+8*p}], v8, s[8:11], s44 offen offset:{(p*2048)%4096}{SC}")
        a.I(f"buffer_store_dwordx4 v[{100+8*p}:{103+8*p}], v8, s[8:11], s44 offen offset:{(p*2048)%4096+1024}{SC}")
        if p == 1: a.I("s_add_u32 s44, s44, 4096")
    a.T("P3_FIN:")
    a.I(f"s_waitcnt lgkmcnt(0)\ns_lshl_b32 s38, s36, 8\ns_add_u32 s38, s38, {CNT + 0x8000}")
    signal(a, "s38")
    if PROF: a.I("s_branch C_P4X")
    a.T("C_P4:")
    if PROF:
        n = P.n; P.n = n - 2; P.stamp(); P.stamp()
        a.T("C_P4X:")
    P.stamp()
    proj_compute(4)
    P.flush()
    a.I("s_endpgm")
    a.T("KM_LOADER:"); a.reset()
    HB, HA = 100, 116
    a.I(f"""
    s_mul_i32 s39, s50, 3072
    s_mul_i32 s38, s34, 98304
    s_add_u32 s38, s38, {WQ}
    s_add_u32 s38, s38, s39
    s_mov_b32 s40, s39
    v_and_b32 v4, 15, v2
    v_lshrrev_b32 v5, 4, v2
    v_lshrrev_b32 v6, 1, v5
    v_and_b32 v7, 1, v5
    v_lshlrev_b32 v9, 10, v6
    v_lshl_add_u32 v9, v7, 9, v9
    v_lshl_add_u32 v9, v4, 4, v9
    v_add_u32 v9, 256, v9
    s_lshl_b32 s41, s33, 2
    s_sub_u32 s41, s41, 1
    s_max_i32 s41, s41, 0
    s_lshl_b32 s41, s41, 15
    s_lshl_b32 s43, s50, 11
    s_add_u32 s41, s41, s43
    s_add_u32 s41, s41, {XN}
    v_mul_u32_u24 v13, 3072, v6
    v_lshl_add_u32 v13, v7, 9, v13
    v_lshl_add_u32 v13, v4, 4, v13
    s_lshr_b32 s43, s50, 1
    s_add_u32 s43, s43, 1
    s_lshl_b32 s43, s43, 10
    s_and_b32 s44, s50, 1
    s_lshl_b32 s44, s44, 8
    s_add_u32 s43, s43, s44
    v_add_u32 v13, s43, v13
    v_add_u32 v14, 49152, v13
    v_lshlrev_b32 v12, 5, v5
    s_lshl_b32 s43, s50, 7
    v_add_u32 v12, s43, v12
    v_add_u32 v12, {TAB}, v12
    v_add_u32 v10, {HBL}, v8
    s_lshl_b32 s43, s50, 10
    v_add_u32 v11, s43, v10
    """)
    def issue1(g):
        a.I("s_mov_b32 m0, s40")
        for i in range(3): a.VM(f"buffer_load_dwordx4 v8, s[8:11], s38 offen offset:{1024*i} lds", f"w{g}")
        a.I("s_add_u32 s38, s38, 12288\ns_add_u32 s40, s40, 12288")
    issue1(0); issue1(1)
    for i in range(4):
        a.VM(f"buffer_load_dwordx4 v[{HB+4*i}:{HB+3+4*i}], v9, s[8:11], s41 offen", "h")
        a.I("s_add_u32 s41, s41, 8192")
    issue1(2); issue1(3)
    def halo(g):
        for i in range(2):
            a.DS(f"ds_read_b128 v[{64+8*i}:{67+8*i}], {'v13' if g < 4 else 'v14'} offset:{(g%4)*12288 + i*6144}", f"hh{g}")
            a.DS(f"ds_read_b128 v[{68+8*i}:{71+8*i}], v10 offset:{(2*g+i)*1024}", f"hh{g}")
        a.WAIT(ds=f"hh{g}")
        for i in range(2):
            cin = "0" if (g == 0 and i == 0) else f"v[{HA}:{HA+3}]"
            a.I(f"v_mfma_f32_16x16x32_bf16 v[{HA}:{HA+3}], v[{64+8*i}:{67+8*i}], v[{68+8*i}:{71+8*i}], {cin}")
    for g in range(8):
        a.WAIT(vm=f"w{g}", ds="hw"); a.I("s_barrier")
        if g + 4 < 8: issue1(g+4)
        if g < 4:
            for q in range(4):
                a.DS(f"ds_read_b128 v[{32+4*q}:{35+4*q}], v12 offset:{(q//2)*2048 + g*512 + (q%2)*16}", f"ht{g}")
        if g > 0: halo(g-1)
        if g < 4:
            a.WAIT(vm="h", ds=f"ht{g}")
            for x in modulate(HB+4*g, 32): a.I(x)
            a.DS(f"ds_write_b128 v11, v[{HB+4*g}:{HB+4*g+3}] offset:{g*4096}", "hw")
    a.I("s_barrier")
    halo(7)
    a.I(f"""
    v_and_b32 v3, 15, v2
    v_lshrrev_b32 v4, 4, v2
    v_and_b32 v5, 1, v4
    v_lshrrev_b32 v6, 1, v4
    s_and_b32 s35, s3, 1
    s_nop 7
    v_cvt_pk_bf16_f32 v84, v{HA}, v{HA+1}
    v_cvt_pk_bf16_f32 v85, v{HA+2}, v{HA+3}
    s_cmp_ge_u32 s50, 2
    s_cbranch_scc1 L_HV
    s_mul_i32 s35, s35, {2*144*16}
    v_mul_u32_u24 v5, {144*16}, v5
    v_lshl_add_u32 v5, v3, 4, v5
    v_lshl_add_u32 v5, v6, 3, v5
    v_add_u32 v5, s35, v5
    v_add_u32 v5, {KT}, v5
    ds_write_b64 v5, v[84:85]
    s_branch L_HD
    """)
    a.T("L_HV:")
    a.I(f"""
    v_lshlrev_b32 v80, 16, v84
    v_and_b32 v81, 0xffff0000, v84
    v_lshlrev_b32 v82, 16, v85
    v_and_b32 v83, 0xffff0000, v85
    s_mul_i32 s35, s35, {4*144*16}
    v_lshl_add_u32 v5, v5, 1, v6
    v_mul_u32_u24 v5, {144*16}, v5
    v_lshl_add_u32 v5, v3, 4, v5
    v_add_u32 v5, s35, v5
    v_add_u32 v5, {VT}, v5
    ds_write_b128 v5, v[80:83]
    """)
    a.T("L_HD:")
    a.I("s_waitcnt lgkmcnt(0)\ns_barrier\ns_barrier")
    a.reset()
    wg_map(a, "sq")
    a.I(f"""
    s_and_b32 s51, s3, 1
    s_cmp_ge_u32 s50, 2
    s_cbranch_scc1 L2_A
    s_lshl_b32 s36, s33, 1
    s_add_u32 s36, s36, s51
    s_lshl_b32 s38, s36, 15
    s_add_u32 s38, s38, {OO}
    s_lshl_b32 s40, s51, 15
    s_add_u32 s40, s40, 65536
    s_lshl_b32 s43, s36, 8
    s_add_u32 s43, s43, {CNT}
    """)
    poll(a, "L_PL2", "s43", 16)
    def stream(n4, sc, tag):
        for q in range(n4):
            a.I("s_mov_b32 m0, s40")
            for i in range(4): a.VM(f"buffer_load_dwordx4 v8, s[8:11], s38 offen offset:{1024*i}{sc} lds", f"{tag}{q//2}")
            a.I("s_add_u32 s38, s38, 4096\ns_add_u32 s40, s40, 4096")
    stream(8, SC, "c")
    for g in range(4):
        a.WAIT(vm=f"c{g}"); a.I("s_barrier")
    a.I("s_branch L2_E")
    a.T("L2_A:"); a.reset()
    a.I(f"""
    s_lshl_b32 s38, s34, 1
    s_add_u32 s38, s38, s51
    s_lshl_b32 s38, s38, 15
    s_add_u32 s38, s38, {WO}
    s_lshl_b32 s40, s51, 15
    """)
    stream(8, "", "c")
    a.I(f"""
    s_cmp_ge_u32 s2, 43
    s_cbranch_scc1 L2_NOUT
    v_lshlrev_b32 v3, 5, v2
    s_mul_i32 s38, s2, 43691
    s_lshr_b32 s38, s38, 17
    s_mul_i32 s39, s38, 3
    s_sub_u32 s39, s2, s39
    s_lshl_b32 s39, s39, 1
    s_add_u32 s39, s39, s51
    s_lshl_b32 s39, s39, 10
    s_mul_i32 s38, s38, 196608
    s_add_u32 s38, s38, s39
    s_add_u32 s38, s38, {W13}
    """)
    for ks in range(4):
        a.I(f"s_mov_b32 s43, {MODP + ks*12288 + 3*2048}")
        for q in range(4):
            a.I(f"buffer_load_dwordx4 v[{16+16*ks+4*q}:{19+16*ks+4*q}], v3, s[8:11], s43 offen offset:{(q//2)*2048 + (q%2)*16}")
    for t in range(32):
        a.I(f"buffer_load_dwordx4 v[{128+4*t}:{131+4*t}], v8, s[8:11], s38 offen\ns_add_u32 s38, s38, 6144")
    a.I(f"""
    s_lshl_b32 s43, s51, 11
    s_add_u32 s43, s43, {UTT}
    v_add_u32 v4, s43, v8
    v_mov_b32 v80, 0
    v_mov_b32 v81, 0
    v_mov_b32 v82, 0
    v_mov_b32 v83, 0
    v_add_u32 v5, {UTZ}, v8
    ds_write_b128 v5, v[80:83]
    s_waitcnt vmcnt(32)
    """)
    for r in range(16):
        a.I(f"v_add_f32 v{16+r}, v{16+r}, v{32+r}\nv_add_f32 v{48+r}, v{48+r}, v{64+r}\nv_add_f32 v{16+r}, v{16+r}, v{48+r}")
    for d in range(4): a.I(f"v_cvt_pk_bf16_f32 v{84+d}, v{16+2*d}, v{17+2*d}")
    for d in range(4):
        a.I(f"v_cvt_pk_bf16_f32 v1, v{24+2*d}, v{25+2*d}\nv_lshlrev_b32 v{24+2*d}, 16, v1\nv_and_b32 v{25+2*d}, 0xffff0000, v1\nv_add_f32 v{24+2*d}, 1.0, v{24+2*d}\nv_add_f32 v{25+2*d}, 1.0, v{25+2*d}\nv_cvt_pk_bf16_f32 v{88+d}, v{24+2*d}, v{25+2*d}")
    a.I(f"""
    ds_write_b128 v4, v[88:91]
    ds_write_b128 v4, v[84:87] offset:1024
    v_and_b32 v3, 31, v2
    v_lshrrev_b32 v6, 5, v2
    v_lshlrev_b32 v7, 10, v3
    v_add_u32 v7, s43, v7
    v_mov_b32 v5, {UTZ}
    v_cmp_gt_u32 vcc, 2, v3
    v_cndmask_b32 v7, v5, v7, vcc
    v_lshl_add_u32 v7, v6, 3, v7
    s_waitcnt lgkmcnt(0)
    """)
    for t in range(32):
        r = 16 + 4*(t % 8)
        a.I(f"ds_read_b64 v[{r}:{r+1}], v7 offset:{32*t}\nds_read_b64 v[{r+2}:{r+3}], v7 offset:{32*t+16}")
        if t % 8 == 7:
            a.I(f"s_waitcnt vmcnt({31-t}) lgkmcnt(0)")
            for tt in range(t-7, t+1):
                cin = "0" if tt == 0 else "v[48:63]"
                a.I(f"v_mfma_f32_32x32x16_bf16 v[48:63], v[{128+4*tt}:{131+4*tt}], v[{16+4*(tt%8)}:{19+4*(tt%8)}], {cin}")
            a.I("s_nop 7")
    a.I(f"""
    v_mul_u32_u24 v4, {1408*4}, v3
    v_lshl_add_u32 v4, v6, 4, v4
    v_mov_b32 v5, 0x7ff00000
    v_cndmask_b32 v4, v5, v4, vcc
    s_mul_i32 s38, s51, {2*1408*4}
    s_lshl_b32 s39, s2, 7
    s_add_u32 s38, s38, s39
    s_add_u32 s38, s38, {UT}
    s_nop 7
    """)
    for aa in range(4):
        a.I(f"buffer_store_dwordx4 v[{48+4*aa}:{51+4*aa}], v4, s[8:11], s38 offen offset:{32*aa}{SC}")
    a.I(f"s_mov_b32 s38, {CNTU}")
    signal(a, "s38")
    a.T("L2_NOUT:")
    a.I("s_waitcnt vmcnt(0)\ns_barrier\ns_barrier\ns_barrier\ns_barrier")
    a.T("L2_E:")
    a.I("s_barrier")
    a.reset()
    wg_map(a, "r2c4")
    a.I(f"""
    s_cmp_ge_u32 s34, 15
    s_cbranch_scc1 L_P4
    s_mul_i32 s38, s34, 196608
    s_add_u32 s38, s38, {W13}
    s_mul_i32 s39, s50, 3072
    s_add_u32 s38, s38, s39
    s_mov_b32 s40, s39
    s_mul_i32 s42, s34, 384
    s_add_u32 s42, s42, {UT}
    s_mul_i32 s43, s50, {1408*4}
    s_add_u32 s43, s43, s42
    s_mul_i32 s44, s50, 384
    s_mov_b32 s45, {CNTU}
    """)
    NS3 = 12
    def issue3(g):
        if g % NS3 == 0 and g: a.I("s_mov_b32 s40, s39")
        a.I("s_mov_b32 m0, s40")
        for i in range(3): a.VM(f"buffer_load_dwordx4 v8, s[8:11], s38 offen offset:{1024*i} lds", f"w{g}")
        a.I("s_add_u32 s38, s38, 12288\ns_add_u32 s40, s40, 12288")
    for g in range(NS3): issue3(g)
    nxt = NS3
    for g in range(16):
        a.WAIT(vm=f"w{g}"); a.I("s_barrier")
        if nxt < 16 and nxt - NS3 <= g - 2:
            issue3(nxt); nxt += 1
        if g == 8:
            poll(a, "L_PLU", "s45", 86)
            a.I("s_add_u32 m0, s44, 147456\ns_mov_b64 exec, 0xffffff")
            a.VM(f"buffer_load_dwordx4 v8, s[8:11], s43 offen{SC} lds", "ut")
            a.I("s_mov_b64 exec, -1")
    assert nxt == 16
    a.WAIT(vm="ut"); a.I("s_barrier\ns_barrier")
    a.T("L_P4:"); a.reset()
    wg_map(a, "sq")
    a.I(f"""
    s_and_b32 s51, s3, 1
    s_lshl_b32 s36, s33, 1
    s_add_u32 s36, s36, s51
    s_mul_i32 s37, s36, {86*1024}
    s_add_u32 s37, s37, {HH}
    s_lshl_b32 s38, s34, 1
    s_add_u32 s38, s38, s51
    s_mul_i32 s38, s38, {86*1024}
    s_add_u32 s38, s38, {W2}
    s_lshl_b32 s39, s50, 13
    s_mov_b32 s40, s39
    s_cmp_ge_u32 s50, 2
    s_cbranch_scc1 L4_GO
    s_mov_b32 s38, s37
    s_lshl_b32 s43, s36, 8
    s_add_u32 s43, s43, {CNT + 0x8000}
    """)
    poll(a, "L_PL4", "s43", 15)
    a.T("L4_GO:")
    def issue4(g):
        if g % 4 == 0 and g: a.I("s_mov_b32 s40, s39")
        for hf in range(2):
            n = min(4, 86 - 8*g - 4*hf)
            if n <= 0: continue
            a.I(f"s_add_u32 m0, s40, {4096*hf}")
            for i in range(n): a.VM(f"buffer_load_dwordx4 v8, s[8:11], s38 offen offset:{1024*i}{SC} lds", f"w{g}")
            a.I("s_add_u32 s38, s38, 4096")
        a.I("s_add_u32 s40, s40, 32768")
    for g in range(4): issue4(g)
    nxt = 4
    for g in range(11):
        a.WAIT(vm=f"w{g}"); a.I("s_barrier")
        if nxt < 11 and nxt - 4 <= g - 2:
            issue4(nxt); nxt += 1
    assert nxt == 11
    a.T("KM_END:")
    a.I("s_endpgm")

def main():
    a = Asm()
    gen_k0(a); gen_main(a)
    head = """; generated by work/gen20.py
; @launch kernel=k0_kernel grid=(450,1,1) block=(256,1,1) lds=32768
; @launch kernel=km_kernel grid=(256,1,1) block=(512,1,1) lds=163840
.amdgcn_target "amdgcn-amd-amdhsa--gfx950"
.text
"""
    tail = '.section .rodata,"a"\n' + desc("k0_kernel", 128) + desc("km_kernel", 256)
    out = head + a.render() + tail
    args = [x for x in sys.argv[1:] if not x.startswith("-")]
    path = args[0] if args else f"cdna_kernels/{NAME}.s"
    open(path, "w").write(out)
    print("wrote", path, len(out))
main()
```

```python
import sys
sys.path.insert(0, 'work')
from asmlib import Asm

NAME = "adaLN_cond__sliding_local_dilated__glu_gated_swiglu__prompt"
A_X, A_WQKV, A_WO, A_BX, A_W1, A_W3, A_W2, A_C, A_WMOD, A_OUT, A_DBG, A_WS = [8*i for i in range(12)]
MODP = 0
MODF = 0x10000
UT   = 0x14000
ST   = 0x40000
XN   = 0x100000
WQ   = 0x300000
OO   = 0x500000
WO   = 0x700000
X1   = 0x800000
W13  = 0xA00000
HH   = 0xD00000
W2   = 0x1300000
YY   = 0x1500000
CNT  = 0x30000
CNTU = 0x3E000
CNTW = 0x3C000
CNT2 = 0x3D000
WS_BYTES = 0x2000000
LOG2E = 0x3fb8aa3b
PROF = "-p" in sys.argv
PROFB = 0x1800000
TIMER = "s_memtime" if "-c" in sys.argv else "s_memrealtime"
def opt(name, default):
    for x in sys.argv:
        if x.startswith(f"-{name}="): return int(x.split("=")[1])
    return default

class Prof:
    def __init__(self, a, kid): self.a, self.kid, self.n = a, kid, 0
    def stamp(self):
        if not PROF: return
        self.a.I(f"{TIMER} s[{60+2*self.n}:{61+2*self.n}]"); self.a.WAITALL(vm=False)
        self.n += 1
    def flush(self):
        if not PROF: return
        a = self.a
        a.WAITALL()
        a.I(f"{TIMER} s[{60+2*self.n}:{61+2*self.n}]\ns_waitcnt lgkmcnt(0)")
        a.I(f"s_lshl_b32 s58, s2, 3\ns_add_u32 s58, s58, s3\ns_lshl_b32 s58, s58, 7\ns_add_u32 s58, s58, {PROFB + self.kid*0x80000}\nv_mov_b32 v0, 0")
        for i in range(self.n+1):
            a.I(f"v_mov_b32 v2, s{60+2*i}\nv_mov_b32 v3, s{61+2*i}\nbuffer_store_dwordx2 v[2:3], v0, s[8:11], s58 offen offset:{8*i}")

def srd(a, d, b, nbytes):
    a.I(f"s_mov_b32 s{d}, s{b}\ns_and_b32 s{d+1}, s{b+1}, 0xffff\ns_mov_b32 s{d+2}, {nbytes}\ns_mov_b32 s{d+3}, 0x00020000")
def header(a, name):
    a.T(f".globl {name}\n.p2align 8\n.type {name},@function\n{name}:"); a.reset()
def desc(name, vgpr, agpr=0, sgpr=96):
    acc = (vgpr + 3) // 4 * 4
    return f""".p2align 6
.amdhsa_kernel {name}
  .amdhsa_next_free_vgpr {acc + agpr if agpr else vgpr}
  .amdhsa_next_free_sgpr {sgpr}
  .amdhsa_accum_offset {acc}
  .amdhsa_group_segment_fixed_size 0
  .amdhsa_kernarg_size 96
  .amdhsa_user_sgpr_count 2
  .amdhsa_user_sgpr_kernarg_segment_ptr 1
  .amdhsa_system_sgpr_workgroup_id_x 1
.end_amdhsa_kernel
"""
def round_bf16(a, dst, src):
    a.I(f"v_cvt_pk_bf16_f32 v{dst}, v{src}, v{src}\nv_lshlrev_b32 v{dst}, 16, v{dst}")
def transpose8x8(a, R, D, s_lo, s_hi):
    for c in range(4):
        for e in range(2):
            n = 2*c + e
            for jj in range(4):
                a.I(f"v_perm_b32 v{D+4*n+jj}, v{R+4*(2*jj+1)+c}, v{R+4*(2*jj)+c}, s{s_hi if e else s_lo}")

def chained_addr(a, unit_s, R):
    a.I(f"""
    s_and_b32 s35, s{unit_s}, 7
    s_lshr_b32 s34, s{unit_s}, 3
    v_lshrrev_b32 v3, 4, v2
    v_bfe_u32 v12, v2, 3, 1
    v_and_b32 v4, 7, v2
    v_lshlrev_b32 v5, 14, v3
    v_lshl_add_u32 v5, v12, 12, v5
    v_lshl_add_u32 v5, v4, 4, v5
    v_add_u32 v9, 8192, v5
    s_lshl_b32 s36, s34, 16
    s_lshl_b32 s37, s35, 7
    s_add_u32 s36, s36, s37
    """)
def chained_loads(a, R, sr, tag=None):
    for j in range(8):
        a.VM(f"buffer_load_dwordx4 v[{R+4*j}:{R+3+4*j}], v{5 if j < 4 else 9}, s[{sr}:{sr+3}], s36 offen offset:{1024*(j%4)}", tag)
def chained_dst(a, tmax, dst, ct_stride):
    a.I(f"""
    s_mul_i32 s36, s35, {2*ct_stride}
    s_lshl_b32 s37, s34, 12
    s_add_u32 s36, s36, s37
    s_add_u32 s36, s36, {dst}
    v_lshrrev_b32 v6, 2, v4
    s_mov_b32 s38, {ct_stride}
    v_mul_lo_u32 v6, v6, s38
    v_lshl_add_u32 v6, v3, 10, v6
    v_lshl_add_u32 v6, v12, 9, v6
    v_and_b32 v7, 3, v4
    v_lshl_add_u32 v6, v7, 7, v6
    s_lshl_b32 s37, s34, 2
    v_add_u32 v7, s37, v3
    v_cmp_gt_u32 vcc, {tmax}, v7
    v_mov_b32 v7, 0x7ff00000
    v_cndmask_b32 v6, v7, v6, vcc
    """)

def chained_store(a, R, D, dst, ct_stride, last_kb, stg=0, sc=""):
    a.I(f"""
    v_lshrrev_b32 v6, 2, v4
    v_lshl_add_u32 v6, v6, 2, v3
    v_lshlrev_b32 v6, 10, v6
    v_lshl_add_u32 v6, v12, 9, v6
    v_and_b32 v7, 3, v4
    v_lshl_add_u32 v6, v7, 7, v6
    {"s_mov_b32 s42, " + stg if isinstance(stg, str) else "s_lshl_b32 s42, s3, 13"}
    v_add_u32 v6, s42, v6
    v_add_u32 v7, s42, v8
    s_mul_i32 s36, s35, {2*ct_stride}
    s_lshl_b32 s37, s34, 12
    s_add_u32 s36, s36, s37
    s_add_u32 s36, s36, {dst}
    s_add_u32 s37, s36, {ct_stride}
    s_cmp_eq_u32 s34, {last_kb}
    s_cselect_b32 s42, 0x7ff00000, 0
    v_add_u32 v9, s42, v8
    s_waitcnt vmcnt(0)
    """)
    transpose8x8(a, R, D, 40, 41)
    for i in range(8): a.I(f"ds_write_b128 v6, v[{D+4*i}:{D+3+4*i}] offset:{16*i}")
    a.I("s_waitcnt lgkmcnt(0)")
    for f in range(8): a.I(f"ds_read_b128 v[{D+4*f}:{D+3+4*f}], v7 offset:{1024*f}")
    a.I("s_waitcnt lgkmcnt(0)")
    for f in range(8):
        a.I(f"buffer_store_dwordx4 v[{D+4*f}:{D+3+4*f}], {'v8' if f%4 < 2 else 'v9'}, s[8:11], {'s36' if f < 4 else 's37'} offen offset:{1024*(f%4)}{sc}")

def gen_k0(a):
    header(a, "k0_kernel")
    P = Prof(a, 0); P.stamp()
    a.I(f"""
    s_load_dwordx2 s[6:7], s[0:1], {A_WS}
    s_load_dwordx4 s[16:19], s[0:1], {A_X}
    s_load_dwordx2 s[20:21], s[0:1], {A_WO}
    s_load_dwordx4 s[28:31], s[0:1], {A_C}
    s_load_dwordx4 s[24:27], s[0:1], {A_W1}
    s_load_dwordx2 s[22:23], s[0:1], {A_W2}
    v_lshrrev_b32 v1, 6, v0
    v_and_b32 v2, 63, v0
    v_readfirstlane_b32 s3, v1
    s_mov_b32 s40, 0x05040100
    s_mov_b32 s41, 0x07060302
    s_waitcnt lgkmcnt(0)
    """)
    srd(a, 8, 6, WS_BYTES)
    a.I("""
    s_cmp_lt_u32 s2, 192
    s_cbranch_scc1 K0_MOD
    s_cmp_lt_u32 s2, 256
    s_cbranch_scc1 K0_XN
    s_cmp_lt_u32 s2, 304
    s_cbranch_scc1 K0_WQ
    s_cmp_lt_u32 s2, 320
    s_cbranch_scc1 K0_WO
    s_endpgm
    """)
    a.T("K0_MOD:"); a.reset()
    srd(a, 12, 30, 512*3072*2)
    srd(a, 52, 28, 1024)
    a.I(f"""
    s_mov_b32 s32, 0x5555556
    s_mul_hi_u32 s33, s2, s32
    s_mul_i32 s34, s33, 48
    s_sub_u32 s34, s2, s34
    v_lshrrev_b32 v3, 3, v0
    v_and_b32 v4, 7, v0
    s_lshl_b32 s35, s33, 8
    v_lshlrev_b32 v5, 3, v3
    buffer_load_dwordx2 v[6:7], v5, s[52:55], s35 offen
    s_mul_i32 s36, s33, {128*6144}
    s_lshl_b32 s37, s34, 7
    s_add_u32 s36, s36, s37
    s_mov_b32 s38, {4*6144}
    v_mul_lo_u32 v8, v3, s38
    v_lshl_add_u32 v8, v4, 4, v8
    v_add_u32 v9, 6144, v8
    v_add_u32 v10, {2*6144}, v8
    v_add_u32 v11, {3*6144}, v8
    buffer_load_dwordx4 v[16:19], v8, s[12:15], s36 offen
    buffer_load_dwordx4 v[20:23], v9, s[12:15], s36 offen
    buffer_load_dwordx4 v[24:27], v10, s[12:15], s36 offen
    buffer_load_dwordx4 v[28:31], v11, s[12:15], s36 offen
    s_mov_b32 s39, {LOG2E}
    s_waitcnt vmcnt(4)
    v_lshlrev_b32 v12, 16, v6
    v_and_b32 v13, 0xffff0000, v6
    v_lshlrev_b32 v14, 16, v7
    v_and_b32 v15, 0xffff0000, v7
    """)
    for i in range(4):
        r = 12 + i
        a.I(f"v_mul_f32 v32, s39, v{r}\nv_exp_f32 v32, -v32\nv_add_f32 v32, 1.0, v32\nv_rcp_f32 v32, v32\nv_mul_f32 v{r}, v{r}, v32")
        round_bf16(a, r, r)
    a.I("s_waitcnt vmcnt(0)")
    P.stamp()
    for i in range(4):
        for c in range(4):
            a.I(f"v_lshlrev_b32 v33, 16, v{16+4*i+c}\nv_and_b32 v34, 0xffff0000, v{16+4*i+c}")
            op = "v_mul_f32" if i == 0 else "v_fmac_f32"
            a.I(f"{op} v{40+2*c}, v{12+i}, v33\n{op} v{41+2*c}, v{12+i}, v34")
    a.I(f"""
    v_lshlrev_b32 v5, 5, v0
    ds_write_b128 v5, v[40:43]
    ds_write_b128 v5, v[44:47] offset:16
    s_waitcnt lgkmcnt(0)
    s_barrier
    s_cmp_lg_u32 s3, 0
    s_cbranch_scc1 K0_END
    v_lshlrev_b32 v5, 2, v0
    """)
    for kg in range(32):
        a.I(f"ds_read_b32 v{16+kg}, v5 offset:{kg*256}")
    a.I("s_waitcnt lgkmcnt(0)")
    for st in (16, 8, 4, 2, 1):
        for kg in range(st):
            a.I(f"v_add_f32 v{16+kg}, v{16+kg}, v{16+kg+st}")
    a.I(f"""
    s_mul_i32 s36, s33, {3072*4}
    s_lshl_b32 s37, s34, 8
    s_add_u32 s36, s36, s37
    buffer_store_dword v16, v5, s[8:11], s36 offen
    """)
    P.flush()
    a.I("s_endpgm")
    a.T("K0_XN:"); a.reset()
    Px = Prof(a, 5); Px.n = 1
    srd(a, 12, 16, 2048*1024)
    a.I(f"""
    s_sub_u32 s33, s2, 192
    v_lshlrev_b32 v3, 2, v0
    v_mov_b32 v4, 0
    s_lshl_b32 s34, s33, 10
    s_add_u32 s34, s34, {CNT}
    buffer_store_dword v4, v3, s[8:11], s34 offen
    v_and_b32 v3, 31, v2
    v_lshrrev_b32 v4, 5, v2
    v_lshlrev_b32 v5, 10, v3
    v_lshl_add_u32 v5, v4, 7, v5
    s_lshl_b32 s34, s33, 15
    s_lshl_b32 s35, s3, 8
    s_add_u32 s34, s34, s35
    """)
    for s in range(8):
        a.I(f"buffer_load_dwordx4 v[{16+4*s}:{19+4*s}], v5, s[12:15], s34 offen offset:{16*s}")
    a.I("s_waitcnt vmcnt(0)")
    Px.stamp()
    for d in range(32):
        a.I(f"v_lshlrev_b32 v{64+2*d}, 16, v{16+d}\nv_and_b32 v{65+2*d}, 0xffff0000, v{16+d}")
    def halfsum(src):
        a.I(f"v_mov_b32 v7, v{src}\nv_permlane32_swap_b32 v{src}, v7\nv_add_f32 v{src}, v{src}, v7")
    for c in range(4): a.I(f"v_add_f32 v{10+c}, v{64+c}, v{68+c}")
    for d in range(8, 64): a.I(f"v_add_f32 v{10+d%4}, v{10+d%4}, v{64+d}")
    a.I("v_add_f32 v10, v10, v11\nv_add_f32 v12, v12, v13\nv_add_f32 v6, v10, v12")
    halfsum(6)
    a.I(f"""
    v_lshlrev_b32 v8, 2, v3
    s_lshl_b32 s35, s3, 7
    v_add_u32 v9, s35, v8
    ds_write_b32 v9, v6
    s_waitcnt lgkmcnt(0)
    s_barrier
    ds_read_b32 v10, v8
    ds_read_b32 v11, v8 offset:128
    ds_read_b32 v12, v8 offset:256
    ds_read_b32 v13, v8 offset:384
    s_waitcnt lgkmcnt(0)
    v_add_f32 v10, v10, v11
    v_add_f32 v12, v12, v13
    v_add_f32 v10, v10, v12
    v_mul_f32 v14, 0x3b000000, v10
    """)
    for d in range(64):
        a.I(f"v_sub_f32 v7, v{64+d}, v14")
        a.I(f"v_mul_f32 v{10+d}, v7, v7" if d < 4 else f"v_fmac_f32 v{10+d%4}, v7, v7")
    a.I("v_add_f32 v10, v10, v11\nv_add_f32 v12, v12, v13\nv_add_f32 v6, v10, v12")
    halfsum(6)
    a.I(f"""
    ds_write_b32 v9, v6 offset:512
    s_waitcnt lgkmcnt(0)
    s_barrier
    ds_read_b32 v10, v8 offset:512
    ds_read_b32 v11, v8 offset:640
    ds_read_b32 v12, v8 offset:768
    ds_read_b32 v13, v8 offset:896
    s_waitcnt lgkmcnt(0)
    v_add_f32 v10, v10, v11
    v_add_f32 v12, v12, v13
    v_add_f32 v10, v10, v12
    v_mul_f32 v15, 0x3b000000, v10
    """)
    round_bf16(a, 14, 14); round_bf16(a, 15, 15)
    a.I("v_add_f32 v15, 0x3727c5ac, v15"); round_bf16(a, 15, 15)
    a.I("v_sqrt_f32 v15, v15"); round_bf16(a, 15, 15)
    a.I("v_rcp_f32 v15, v15")
    a.I(f"""
    v_lshlrev_b32 v8, 4, v2
    s_lshl_b32 s34, s33, 15
    s_lshl_b32 s35, s3, 13
    s_add_u32 s34, s34, s35
    s_add_u32 s34, s34, {XN}
    """)
    for d in range(32):
        lo, hi = 64+2*d, 65+2*d
        a.I(f"""
        v_sub_f32 v{lo}, v{lo}, v14
        v_sub_f32 v{hi}, v{hi}, v14
        v_cvt_pk_bf16_f32 v6, v{lo}, v{hi}
        v_lshlrev_b32 v{lo}, 16, v6
        v_and_b32 v{hi}, 0xffff0000, v6
        v_mul_f32 v{lo}, v{lo}, v15
        v_mul_f32 v{hi}, v{hi}, v15
        v_cvt_pk_bf16_f32 v{16+d}, v{lo}, v{hi}
        """)
        if d % 4 == 3:
            ss = d // 4
            if ss == 4: a.I("s_add_u32 s34, s34, 4096")
            a.I(f"buffer_store_dwordx4 v[{16+4*ss}:{19+4*ss}], v8, s[8:11], s34 offen offset:{1024*(ss%4)}")
    Px.flush()
    a.I("s_endpgm")
    a.T("K0_WQ:"); a.reset()
    srd(a, 12, 18, 512*3072)
    a.I(f"""
    s_sub_u32 s33, s2, 256
    s_lshl_b32 s33, s33, 2
    s_add_u32 s33, s33, s3
    s_mov_b32 s32, 0xaaaaaab
    s_mul_hi_u32 s34, s33, s32
    s_mul_i32 s35, s34, 24
    s_sub_u32 s35, s33, s35
    v_lshrrev_b32 v3, 3, v2
    v_and_b32 v4, 7, v2
    s_mov_b32 s38, {8*3072}
    v_mul_lo_u32 v5, v3, s38
    v_lshl_add_u32 v5, v4, 4, v5
    s_mul_i32 s36, s34, {64*3072}
    s_lshl_b32 s37, s35, 7
    s_add_u32 s36, s36, s37
    """)
    for j in range(8):
        a.I(f"buffer_load_dwordx4 v[{16+4*j}:{19+4*j}], v5, s[12:15], s36 offen")
        if j < 7: a.I("s_add_u32 s36, s36, 3072")
    a.I(f"""
    s_and_b32 s36, s35, 7
    s_mul_i32 s36, s36, {2*98304}
    s_lshr_b32 s37, s35, 3
    s_lshl_b32 s37, s37, 10
    s_add_u32 s36, s36, s37
    s_lshr_b32 s37, s34, 1
    s_mul_i32 s37, s37, {8*3072}
    s_add_u32 s36, s36, s37
    s_and_b32 s37, s34, 1
    s_lshl_b32 s37, s37, 9
    s_add_u32 s36, s36, s37
    s_add_u32 s36, s36, {WQ}
    v_lshrrev_b32 v6, 2, v4
    v_lshl_add_u32 v6, v6, 3, v3
    v_lshlrev_b32 v6, 9, v6
    v_and_b32 v7, 3, v4
    v_lshl_add_u32 v6, v7, 7, v6
    s_lshl_b32 s42, s3, 13
    v_add_u32 v6, s42, v6
    v_lshlrev_b32 v7, 4, v2
    v_add_u32 v7, s42, v7
    v_lshrrev_b32 v9, 5, v2
    v_mul_u32_u24 v9, 3072, v9
    v_and_b32 v10, 31, v2
    v_lshl_add_u32 v9, v10, 4, v9
    s_waitcnt vmcnt(0)
    """)
    transpose8x8(a, 16, 64, 40, 41)
    for i in range(8): a.I(f"ds_write_b128 v6, v[{64+4*i}:{67+4*i}] offset:{16*i}")
    a.I("s_waitcnt lgkmcnt(0)")
    for f in range(8): a.I(f"ds_read_b128 v[{64+4*f}:{67+4*f}], v7 offset:{1024*f}")
    a.I("s_waitcnt lgkmcnt(0)")
    for f in range(8):
        a.I(f"buffer_store_dwordx4 v[{64+4*f}:{67+4*f}], v9, s[8:11], s36 offen")
        a.I(f"s_add_u32 s36, s36, {6144 if f != 3 else 98304 - 3*6144}")
    Pq = Prof(a, 6); Pq.n = 1; Pq.flush()
    a.I("s_endpgm")
    a.T("K0_WO:"); a.reset()
    srd(a, 12, 20, 512*1024)
    a.I("s_sub_u32 s33, s2, 304\ns_lshl_b32 s33, s33, 2\ns_add_u32 s33, s33, s3")
    a.I("v_lshlrev_b32 v8, 4, v2")
    chained_addr(a, 33, 16); chained_loads(a, 16, 12)
    chained_store(a, 16, 64, WO, 32768, 999)
    a.T("K0_END:")
    a.I("s_endpgm")

def wg_map(a, mode):
    if mode == "r4c2":
        a.I("""
        s_bfe_u32 s33, s2, 0x20001
        s_lshl_b32 s33, s33, 2
        s_bfe_u32 s34, s2, 0x20003
        s_add_u32 s33, s33, s34
        s_and_b32 s34, s2, 1
        s_lshl_b32 s34, s34, 3
        s_lshr_b32 s35, s2, 5
        s_add_u32 s34, s34, s35
        """)
    elif mode == "r2c4":
        a.I("""
        s_bfe_u32 s33, s2, 0x10002
        s_lshl_b32 s33, s33, 3
        s_bfe_u32 s34, s2, 0x30003
        s_add_u32 s33, s33, s34
        s_and_b32 s34, s2, 3
        s_lshl_b32 s34, s34, 2
        s_lshr_b32 s35, s2, 6
        s_add_u32 s34, s34, s35
        """)
    elif mode == "sq":
        a.I("""
        s_bfe_u32 s33, s2, 0x20001
        s_lshl_b32 s33, s33, 3
        s_bfe_u32 s34, s2, 0x30003
        s_add_u32 s33, s33, s34
        s_and_b32 s34, s2, 1
        s_lshl_b32 s34, s34, 2
        s_lshr_b32 s35, s2, 6
        s_add_u32 s34, s34, s35
        """)

SC = " sc1"
def signal(a, soff):
    a.I(f"""
    s_waitcnt vmcnt(0)
    v_mov_b32 v0, 0
    v_mov_b32 v1, 1
    s_mov_b64 exec, 1
    buffer_atomic_add v1, v0, s[8:11], {soff} offen sc1
    s_mov_b64 exec, -1
    """)
    a.vmq = []
def poll(a, label, soff, target):
    a.I("v_mov_b32 v0, 0\ns_mov_b32 s31, 0")
    a.T(f"{label}:")
    a.I(f"""
    buffer_load_dword v1, v0, s[8:11], {soff} offen sc1
    s_waitcnt vmcnt(0)
    v_readfirstlane_b32 s30, v1
    s_add_u32 s31, s31, 1
    s_cmp_ge_u32 s30, {target}
    s_cbranch_scc1 {label}_OK
    s_cmp_ge_u32 s31, 0x100000
    s_cbranch_scc1 {label}_OK
    s_sleep 1
    s_branch {label}
    """)
    a.T(f"{label}_OK:")
    a.vmq = []
def modvec_loads(a, row, base, soff_tmp, ct_s, vaddr):
    for ks in range(4):
        a.I(f"s_lshl_b32 {soff_tmp}, {ct_s}, 7\ns_add_u32 {soff_tmp}, {soff_tmp}, {MODP + ks*12288 + row*2048}")
        for aa in range(4):
            a.VM(f"buffer_load_dwordx4 v[{base+16*ks+4*aa}:{base+16*ks+4*aa+3}], {vaddr}, s[8:11], {soff_tmp} offen offset:{32*aa}", "mv")
def modvec_sum(a, base, dst, plus1):
    for r in range(16):
        a.I(f"v_add_f32 v{base+r}, v{base+r}, v{base+16+r}\nv_add_f32 v{base+32+r}, v{base+32+r}, v{base+48+r}\nv_add_f32 v{dst+r}, v{base+r}, v{base+32+r}")
    for r in range(0, 16, 2):
        a.I(f"v_cvt_pk_bf16_f32 v1, v{dst+r}, v{dst+r+1}\nv_lshlrev_b32 v{dst+r}, 16, v1\nv_and_b32 v{dst+r+1}, 0xffff0000, v1")
    if plus1:
        for r in range(16): a.I(f"v_add_f32 v{dst+r}, 1.0, v{dst+r}")
        for r in range(0, 16, 2):
            a.I(f"v_cvt_pk_bf16_f32 v1, v{dst+r}, v{dst+r+1}\nv_lshlrev_b32 v{dst+r}, 16, v1\nv_and_b32 v{dst+r+1}, 0xffff0000, v1")

def gen_main(a):
    TAB, HBL, KT, VT = 98304, 102400, 131072, 140288
    UTT, UTZ = 149504, 151552
    STG = 131072
    header(a, "km_kernel")
    P = Prof(a, 1); P.stamp()
    a.I(f"""
    s_cmp_ge_u32 s2, 256
    s_cbranch_scc1 KM_END
    s_load_dwordx2 s[4:5], s[0:1], {A_WS}
    s_load_dwordx2 s[6:7], s[0:1], {A_X}
    s_load_dwordx2 s[20:21], s[0:1], {A_OUT}
    s_load_dwordx4 s[24:27], s[0:1], {A_W1}
    s_load_dwordx2 s[28:29], s[0:1], {A_W2}
    v_lshrrev_b32 v1, 6, v0
    v_and_b32 v2, 63, v0
    v_readfirstlane_b32 s3, v1
    v_lshlrev_b32 v8, 4, v2
    """)
    wg_map(a, "r4c2")
    a.I(f"""
    s_and_b32 s50, s3, 3
    s_lshl_b32 s36, s33, 2
    s_add_u32 s36, s36, s50
    s_waitcnt lgkmcnt(0)
    """)
    srd(a, 8, 4, WS_BYTES); srd(a, 12, 6, 2048*1024); srd(a, 16, 20, 2048*1024)
    a.I("s_cmp_ge_u32 s3, 4\ns_cbranch_scc1 KM_LOADER")
    MT = 16
    def modulate(base, tb):
        ins = []
        for d in range(4): ins += [f"v_lshlrev_b32 v{MT+2*d}, 16, v{base+d}", f"v_and_b32 v{MT+2*d+1}, 0xffff0000, v{base+d}"]
        for j in range(8): ins.append(f"v_fma_f32 v{MT+j}, v{MT+j}, v{tb+j}, v{tb+8+j}")
        for d in range(4): ins.append(f"v_cvt_pk_bf16_f32 v{base+d}, v{MT+2*d}, v{MT+2*d+1}")
        return ins
    def gen_ut():
        a.I(f"""
        s_cmp_lg_u32 s50, 3
        s_cbranch_scc1 UT_DONE
        s_cmp_ge_u32 s33, s46
        s_cbranch_scc1 UT_DONE
        s_and_b32 s51, s33, 1
        s_lshr_b32 s53, s33, 1
        s_mul_i32 s54, s34, 3
        s_add_u32 s53, s53, s54
        v_lshlrev_b32 v3, 5, v2
        s_mul_i32 s52, s34, 196608
        s_lshl_b32 s54, s33, 10
        s_add_u32 s52, s52, s54
        s_add_u32 s52, s52, {W13}
        """)
        for ks in range(4):
            a.I(f"s_mov_b32 s43, {MODP + ks*12288 + 3*2048}")
            for q in range(4):
                a.I(f"buffer_load_dwordx4 v[{16+16*ks+4*q}:{19+16*ks+4*q}], v3, s[8:11], s43 offen offset:{(q//2)*2048 + (q%2)*16}")
        for t in range(32):
            a.I(f"buffer_load_dwordx4 v[{128+4*t}:{131+4*t}], v8, s[8:11], s52 offen{SC}\ns_add_u32 s52, s52, 6144")
        a.I(f"""
        s_mov_b32 s43, {UTT}
        v_add_u32 v4, s43, v8
        v_mov_b32 v80, 0
        v_mov_b32 v81, 0
        v_mov_b32 v82, 0
        v_mov_b32 v83, 0
        v_add_u32 v5, {UTZ}, v8
        ds_write_b128 v5, v[80:83]
        s_waitcnt vmcnt(32)
        """)
        for r in range(16):
            a.I(f"v_add_f32 v{16+r}, v{16+r}, v{32+r}\nv_add_f32 v{48+r}, v{48+r}, v{64+r}\nv_add_f32 v{16+r}, v{16+r}, v{48+r}")
        for d in range(4): a.I(f"v_cvt_pk_bf16_f32 v{84+d}, v{16+2*d}, v{17+2*d}")
        for d in range(4):
            a.I(f"v_cvt_pk_bf16_f32 v1, v{24+2*d}, v{25+2*d}\nv_lshlrev_b32 v{24+2*d}, 16, v1\nv_and_b32 v{25+2*d}, 0xffff0000, v1\nv_add_f32 v{24+2*d}, 1.0, v{24+2*d}\nv_add_f32 v{25+2*d}, 1.0, v{25+2*d}\nv_cvt_pk_bf16_f32 v{88+d}, v{24+2*d}, v{25+2*d}")
        a.I(f"""
        ds_write_b128 v4, v[88:91]
        ds_write_b128 v4, v[84:87] offset:1024
        v_and_b32 v3, 31, v2
        v_lshrrev_b32 v6, 5, v2
        v_lshlrev_b32 v7, 10, v3
        v_add_u32 v7, s43, v7
        v_mov_b32 v5, {UTZ}
        v_cmp_gt_u32 vcc, 2, v3
        v_cndmask_b32 v7, v5, v7, vcc
        v_lshl_add_u32 v7, v6, 3, v7
        s_waitcnt lgkmcnt(0)
        """)
        for t in range(32):
            r = 16 + 4*(t % 8)
            a.I(f"ds_read_b64 v[{r}:{r+1}], v7 offset:{32*t}\nds_read_b64 v[{r+2}:{r+3}], v7 offset:{32*t+16}")
            if t % 8 == 7:
                a.I(f"s_waitcnt vmcnt({31-t}) lgkmcnt(0)")
                for tt in range(t-7, t+1):
                    cin = "0" if tt == 0 else "v[48:63]"
                    a.I(f"v_mfma_f32_32x32x16_bf16 v[48:63], v[{128+4*tt}:{131+4*tt}], v[{16+4*(tt%8)}:{19+4*(tt%8)}], {cin}")
                a.I("s_nop 7")
        a.I(f"""
        v_mul_u32_u24 v4, {1408*4}, v3
        v_lshl_add_u32 v4, v6, 4, v4
        v_mov_b32 v5, 0x7ff00000
        v_cndmask_b32 v4, v5, v4, vcc
        s_mul_i32 s52, s51, {2*1408*4}
        s_lshl_b32 s54, s53, 7
        s_add_u32 s52, s52, s54
        s_add_u32 s52, s52, {UT}
        s_nop 7
        """)
        for aa in range(4):
            a.I(f"buffer_store_dwordx4 v[{48+4*aa}:{51+4*aa}], v4, s[8:11], s52 offen offset:{32*aa}{SC}")
        signal(a, "s45")
        a.T("UT_DONE:")
    AF, TB, XB, ACC = 32, 80, 112, 144
    a.I("v_lshlrev_b32 v3, 3, v0")
    for ks in range(4):
        a.I(f"s_mov_b32 s35, {MODP + ks*12288}")
        a.I(f"buffer_load_dwordx2 v[{16+2*ks}:{17+2*ks}], v3, s[8:11], s35 offen")
        a.I(f"buffer_load_dwordx2 v[{24+2*ks}:{25+2*ks}], v3, s[8:11], s35 offen offset:2048")
    a.I(f"s_lshl_b32 s37, s36, 15\ns_add_u32 s37, s37, {XN}")
    def bload(i):
        a.I(f"buffer_load_dwordx4 v[{XB+4*i}:{XB+4*i+3}], v8, s[8:11], s37 offen offset:{1024*(i%4)}")
        if i % 4 == 3: a.I("s_add_u32 s37, s37, 4096")
    for i in range(8): bload(i)
    a.I(f"""
    v_lshrrev_b32 v4, 6, v0
    v_bfe_u32 v5, v0, 2, 3
    v_lshl_add_u32 v4, v4, 3, v5
    v_bfe_u32 v5, v0, 5, 1
    v_lshl_add_u32 v4, v4, 1, v5
    v_and_b32 v5, 3, v0
    v_lshlrev_b32 v4, 5, v4
    v_lshl_add_u32 v4, v5, 3, v4
    v_add_u32 v4, {TAB}, v4
    v_lshrrev_b32 v5, 5, v2
    v_lshlrev_b32 v10, 5, v5
    v_add_u32 v10, {TAB}, v10
    v_mov_b32 v9, v8
    s_mov_b32 s41, 0
    """)
    for i in range(48): a.I(f"v_mov_b32 v{ACC+i}, 0")
    a.I("s_waitcnt vmcnt(8)")
    for o in (16, 24):
        for e in range(2):
            r = o+e
            a.I(f"v_add_f32 v{r}, v{r}, v{r+2}\nv_add_f32 v{r+4}, v{r+4}, v{r+6}\nv_add_f32 v{r}, v{r}, v{r+4}")
            round_bf16(a, r, r)
    for e in range(2):
        a.I(f"v_add_f32 v{24+e}, 1.0, v{24+e}"); round_bf16(a, 24+e, 24+e)
    a.I("ds_write_b64 v4, v[24:25]\nds_write_b64 v4, v[16:17] offset:2048\ns_waitcnt lgkmcnt(0)\ns_barrier")
    P.stamp()
    def reads(i):
        tb = TB + 16*(i % 2)
        for q in range(4): a.I(f"ds_read_b128 v[{tb+4*q}:{tb+4*q+3}], v10 offset:{(q//2)*2048 + i*64 + (q%2)*16}")
        for ty in range(3): a.I(f"ds_read_b128 v[{AF+12*(i%4)+4*ty}:{AF+12*(i%4)+4*ty+3}], v9 offset:{i*3072 + ty*1024}")
    reads(0); reads(1)
    a.I("s_waitcnt vmcnt(7) lgkmcnt(10)")
    for x in modulate(XB, TB): a.I(x)
    def loop(tag, pos):
        a.T(f"P1_LOOP{tag}:")
        for i in range(8):
            if (i + 2) % 4 == 0: a.I("s_barrier")
            if pos < 0:
                reads(i+2); a.I("s_waitcnt vmcnt(6) lgkmcnt(10)")
            else:
                a.I("s_waitcnt vmcnt(6) lgkmcnt(3)")
            fill = modulate(XB+4*((i+1) % 8), TB + 16*((i+1) % 2))
            nf = (len(fill)+2)//3
            for ty in range(3):
                a.I(f"v_mfma_f32_32x32x16_bf16 v[{ACC+16*ty}:{ACC+16*ty+15}], v[{AF+12*(i%4)+4*ty}:{AF+12*(i%4)+4*ty+3}], v[{XB+4*i}:{XB+4*i+3}], v[{ACC+16*ty}:{ACC+16*ty+15}]")
                for x in fill[nf*ty:nf*ty+nf]: a.I(x)
                if pos == ty: reads(i+2)
            bload(i)
        a.I(f"""
        v_add_u32 v9, 24576, v9
        v_add_u32 v10, 512, v10
        s_add_u32 s41, s41, 1
        s_cmp_eq_u32 s41, 3
        s_cselect_b32 s37, 0x7ff00000, s37
        s_cmp_lt_u32 s41, 4
        s_cbranch_scc1 P1_LOOP{tag}
        """)
    a.I("s_and_b32 s35, s3, 1\ns_cmp_lg_u32 s35, 0\ns_cbranch_scc1 P1_LOOPB")
    loop("A", -1)
    a.I("s_branch P1_LOOPE")
    loop("B", 1)
    a.T("P1_LOOPE:")
    a.I("s_waitcnt vmcnt(0) lgkmcnt(0)\ns_nop 7")
    P.stamp()
    a.I("s_barrier")
    RL = 0
    QP, KP = 116, 24
    a.I(f"""
    v_and_b32 v3, 31, v2
    v_lshrrev_b32 v4, 5, v2
    s_lshl_b32 s35, s3, 5
    v_add_u32 v5, s35, v3
    v_add_u32 v5, 16, v5
    v_mul_u32_u24 v6, {144*16}, v4
    v_lshl_add_u32 v15, v5, 4, v6
    v_add_u32 v15, {KT}, v15
    v_mul_u32_u24 v6, {2*144*16}, v4
    v_lshl_add_u32 v7, v5, 4, v6
    v_add_u32 v7, {VT}, v7
    """)
    for d in range(8): a.I(f"v_cvt_pk_bf16_f32 v{KP+d}, v{ACC+16+2*d}, v{ACC+17+2*d}")
    for d in range(8):
        a.I(f"v_cvt_pk_bf16_f32 v9, v{ACC+32+2*d}, v{ACC+33+2*d}\nv_lshlrev_b32 v{ACC+32+2*d}, 16, v9\nv_and_b32 v{ACC+33+2*d}, 0xffff0000, v9")
    V0 = ACC+32
    for x in [f"ds_write_b128 v15, v[{KP}:{KP+3}]", f"ds_write_b128 v15, v[{KP+4}:{KP+7}] offset:{2*144*16}",
              f"ds_write_b128 v7, v[{V0}:{V0+3}]", f"ds_write_b128 v7, v[{V0+4}:{V0+7}] offset:{144*16}",
              f"ds_write_b128 v7, v[{V0+8}:{V0+11}] offset:{4*144*16}", f"ds_write_b128 v7, v[{V0+12}:{V0+15}] offset:{5*144*16}"]:
        a.I(x)
    for d in range(8): a.I(f"v_cvt_pk_bf16_f32 v{QP+d}, v{ACC+2*d}, v{ACC+1+2*d}")
    a.I("v_subrev_u32 v15, 224, v15\nv_subrev_u32 v7, 224, v7\ns_waitcnt lgkmcnt(0)\ns_barrier")
    a.reset()
    for e in range(2):
        for w in range(8):
            a.DS(f"ds_read_b128 v[{32+(e*8+w)*4}:{35+(e*8+w)*4}], v15 offset:{e*2*144*16 + (7-w)*32}", f"k{e}{w//4}")
    VB, LG = 128, 96
    def vread(e, w):
        for aa in range(2):
            r = VB + ((e*8+w)*2+aa)*4
            a.DS(f"ds_read_b128 v[{r}:{r+3}], v7 offset:{e*4*144*16 + aa*144*16 + (7-w)*32}", f"v{e}{w//2}")
    for e in range(2):
        for w in range(8):
            if w % 4 == 0: a.WAIT(ds=f"k{e}{w//4}")
            kb = 32+(e*8+w)*4
            a.I(f"v_dot2_f32_bf16 v{LG+e*8+w}, v{QP+4*e}, v{kb}, 0")
            for d in range(1, 4):
                a.I(f"v_dot2_f32_bf16 v{LG+e*8+w}, v{QP+4*e+d}, v{kb+d}, v{LG+e*8+w}")
            vread(e, w)
    for w in range(8): a.I(f"v_permlane32_swap_b32 v{LG+w}, v{LG+8+w}")
    for w in range(8): a.I(f"v_add_f32 v{LG+w}, v{LG+w}, v{LG+8+w}")
    for w in range(0, 8, 2):
        a.I(f"v_cvt_pk_bf16_f32 v5, v{LG+w}, v{LG+w+1}\nv_lshlrev_b32 v{LG+w}, 16, v5\nv_and_b32 v{LG+w+1}, 0xffff0000, v5")
    a.I(f"s_mov_b32 s35, 0x3eb8aa3b\ns_cmp_lg_u32 s36, 0\ns_cbranch_scc1 P1_NOMASK\nv_and_b32 v3, 31, v2\nv_mov_b32 v4, 0xcf6e6b28")
    for w in range(1, 8):
        a.I(f"v_cmp_le_u32 vcc, {2*w}, v3\nv_cndmask_b32 v{LG+w}, v4, v{LG+w}, vcc")
    a.T("P1_NOMASK:")
    a.I(f"v_max3_f32 v5, v{LG}, v{LG+1}, v{LG+2}\nv_max3_f32 v6, v{LG+3}, v{LG+4}, v{LG+5}\nv_max3_f32 v5, v5, v{LG+6}, v{LG+7}\nv_max_f32 v5, v5, v6")
    for w in range(8): a.I(f"v_sub_f32 v{LG+w}, v{LG+w}, v5")
    for w in range(8): a.I(f"v_mul_f32 v{LG+w}, s35, v{LG+w}")
    for w in range(8): a.I(f"v_exp_f32 v{LG+w}, v{LG+w}")
    a.I(f"v_add_f32 v5, v{LG}, v{LG+1}\nv_add_f32 v6, v{LG+2}, v{LG+3}\nv_add_f32 v9, v{LG+4}, v{LG+5}\nv_add_f32 v10, v{LG+6}, v{LG+7}\nv_add_f32 v5, v5, v6\nv_add_f32 v9, v9, v10\nv_add_f32 v6, v5, v9\nv_rcp_f32 v6, v6")
    for w in range(8): a.I(f"v_mul_f32 v{LG+w}, v{LG+w}, v6")
    for w in range(0, 8, 2):
        a.I(f"v_cvt_pk_bf16_f32 v5, v{LG+w}, v{LG+w+1}\nv_lshlrev_b32 v{LG+w}, 16, v5\nv_and_b32 v{LG+w+1}, 0xffff0000, v5")
    for w in range(8): a.I(f"v_mov_b32 v{LG+8+w}, v{LG+w}")
    for w in range(8): a.I(f"v_permlane32_swap_b32 v{LG+w}, v{LG+8+w}")
    OA = 16
    a.I(f"s_lshl_b32 s37, s36, 15\ns_lshl_b32 s38, s34, 11\ns_add_u32 s37, s37, s38\ns_add_u32 s37, s37, {OO}")
    for e in range(2):
        for w in range(8):
            if w % 2 == 0: a.WAIT(ds=f"v{e}{w//2}")
            for q in range(8):
                r = VB + (e*8+w)*8 + q
                a.I(f"v_mul_f32 v{OA+q}, v{LG+8*e+w}, v{r}" if w == 0 else f"v_fmac_f32 v{OA+q}, v{LG+8*e+w}, v{r}")
        for d in range(4): a.I(f"v_cvt_pk_bf16_f32 v{32+4*e+d}, v{OA+2*d}, v{OA+2*d+1}")
        a.I(f"buffer_store_dwordx4 v[{32+4*e}:{35+4*e}], v8, s[8:11], s37 offen offset:{1024*e}{SC}")
    a.I(f"s_lshl_b32 s38, s36, 8\ns_add_u32 s38, s38, {CNT}")
    signal(a, "s38")
    P.stamp()
    def proj_compute(which):
        nt = 32 if which == 2 else 86
        wg_map(a, "sq")
        a.I(f"""
        s_and_b32 s51, s3, 1
        s_lshr_b32 s52, s3, 1
        s_lshl_b32 s36, s33, 1
        s_add_u32 s36, s36, s51         ; mb
        s_lshl_b32 s35, s34, 1
        s_add_u32 s35, s35, s52         ; ct
        v_and_b32 v3, 31, v2
        v_lshrrev_b32 v4, 5, v2
        v_lshlrev_b32 v5, 4, v4
        s_lshl_b32 s41, s36, 15
        s_lshl_b32 s42, s35, 6
        s_add_u32 s41, s41, s42
        v_lshlrev_b32 v6, 10, v3
        v_lshl_add_u32 v6, v4, 3, v6
        s_lshl_b32 s42, s36, 15
        s_lshl_b32 s44, s35, 11
        s_add_u32 s42, s42, s44
        s_add_u32 s42, s42, {X1}
        """)
        a.reset()
        modvec_loads(a, 2 if which == 2 else 5, 128, "s43", "s35", "v5")
        if which == 2:
            modvec_loads(a, 4, 192, "s43", "s35", "v5")
            for aa in range(4):
                a.VM(f"buffer_load_dwordx2 v[{32+2*aa}:{33+2*aa}], v6, s[12:15], s41 offen offset:{16*aa}", "mv")
            a.I("""
            s_lshl_b32 s44, s52, 15
            v_add_u32 v10, s44, v8
            s_lshl_b32 s44, s51, 15
            s_add_u32 s44, s44, 65536
            v_add_u32 v9, s44, v8
            """)
        else:
            a.I("""
            s_lshl_b32 s44, s51, 13
            v_add_u32 v9, s44, v8
            s_lshl_b32 s44, s52, 13
            s_add_u32 s44, s44, 16384
            v_add_u32 v10, s44, v8
            v_add_u32 v11, 65536, v9
            v_add_u32 v12, 65536, v10
            """)
        a.WAIT(vm="mv")
        modvec_sum(a, 128, 16, False)
        if which == 2: modvec_sum(a, 192, 112, True)
        FR = 64
        def fread(t):
            if which == 2:
                rb, ra, off = "v9", "v10", t*1024
            else:
                off = ((t//8) % 4)*32768 + (t % 8)*1024
                rb, ra = [("v9", "v10"), ("v11", "v12")][off // 65536]; off %= 65536
            st = FR + 8*(t % 4)
            a.DS(f"ds_read_b128 v[{st}:{st+3}], {ra} offset:{off}", f"f{t}")
            a.DS(f"ds_read_b128 v[{st+4}:{st+7}], {rb} offset:{off}", f"f{t}")
        a.I("s_barrier")
        P.stamp()
        if which == 4:
            a.VM(f"buffer_load_dwordx4 v[32:35], v8, s[8:11], s42 offen{SC}", "e")
            a.VM(f"buffer_load_dwordx4 v[36:39], v8, s[8:11], s42 offen offset:1024{SC}", "e")
        for t in range(3): fread(t)
        for t in range(nt):
            if t + 3 < nt:
                if (t+3) % 8 == 0: a.I("s_barrier")
                fread(t+3)
            a.WAIT(ds=f"f{t}")
            st = FR + 8*(t % 4)
            cin = "0" if t == 0 else "v[48:63]"
            a.I(f"v_mfma_f32_32x32x16_bf16 v[48:63], v[{st}:{st+3}], v[{st+4}:{st+7}], {cin}")
            if t == nt - 6:
                a.WAIT(vm="e")
                for d in range(8):
                    a.I(f"v_lshlrev_b32 v{96+2*d}, 16, v{32+d}\nv_and_b32 v{97+2*d}, 0xffff0000, v{32+d}")
        if which == 2: a.I("s_barrier")
        P.stamp()
        for r in range(16): a.I(f"v_fmac_f32 v{96+r}, v{48+r}, v{16+r}")
        for d in range(8): a.I(f"v_cvt_pk_bf16_f32 v{84+d}, v{96+2*d}, v{97+2*d}")
        if which == 2:
            for d in range(8):
                a.I(f"v_lshlrev_b32 v{96+2*d}, 16, v{84+d}\nv_and_b32 v{97+2*d}, 0xffff0000, v{84+d}")
            for r in range(16): a.I(f"v_mul_f32 v{112+r}, v{112+r}, v{96+r}")
            for d in range(8): a.I(f"v_cvt_pk_bf16_f32 v{64+d}, v{112+2*d}, v{113+2*d}")
            a.I(f"""
            s_add_u32 s43, s42, {YY - X1}
            buffer_store_dwordx4 v[64:67], v8, s[8:11], s43 offen{SC}
            buffer_store_dwordx4 v[68:71], v8, s[8:11], s43 offen offset:1024{SC}
            v_add_f32 v92, v96, v97
            v_add_f32 v94, v98, v99
            v_mul_f32 v93, v96, v96
            v_mul_f32 v95, v97, v97
            v_fmac_f32 v93, v98, v98
            v_fmac_f32 v95, v99, v99
            """)
            for r in range(4, 16, 2):
                a.I(f"v_add_f32 v92, v92, v{96+r}\nv_add_f32 v94, v94, v{97+r}\nv_fmac_f32 v93, v{96+r}, v{96+r}\nv_fmac_f32 v95, v{97+r}, v{97+r}")
            a.I(f"""
            v_add_f32 v92, v92, v94
            v_add_f32 v93, v93, v95
            v_mov_b32 v94, v92
            v_mov_b32 v95, v93
            v_permlane32_swap_b32 v92, v94
            v_permlane32_swap_b32 v93, v95
            v_add_f32 v92, v92, v94
            v_add_f32 v93, v93, v95
            v_lshlrev_b32 v7, 7, v3
            s_lshl_b32 s44, s36, 12
            s_lshl_b32 s43, s35, 3
            s_add_u32 s44, s44, s43
            s_add_u32 s44, s44, {ST}
            buffer_store_dwordx2 v[92:93], v7, s[8:11], s44 offen{SC}
            buffer_store_dwordx4 v[84:87], v8, s[8:11], s42 offen{SC}
            buffer_store_dwordx4 v[88:91], v8, s[8:11], s42 offen offset:1024{SC}
            s_lshl_b32 s38, s36, 8
            s_add_u32 s38, s38, {CNT + 0x4000}
            """)
            signal(a, "s38")
        else:
            a.I("""
            v_permlane32_swap_b32 v84, v86
            v_permlane32_swap_b32 v85, v87
            v_permlane32_swap_b32 v88, v90
            v_permlane32_swap_b32 v89, v91
            v_lshlrev_b32 v6, 10, v3
            v_lshl_add_u32 v6, v4, 4, v6
            buffer_store_dwordx4 v[84:87], v6, s[16:19], s41 offen
            buffer_store_dwordx4 v[88:91], v6, s[16:19], s41 offen offset:32
            """)
        P.stamp()
    proj_compute(2)
    wg_map(a, "r2c4")
    a.I(f"""
    s_cmp_ge_u32 s34, 15
    s_cbranch_scc1 C_P4
    s_lshl_b32 s36, s33, 2
    s_add_u32 s36, s36, s50
    v_and_b32 v3, 31, v2
    v_lshrrev_b32 v4, 5, v2
    v_mov_b32 v9, v8
    v_add_u32 v11, 49152, v9
    v_lshlrev_b32 v5, 4, v4
    v_add_u32 v5, 147456, v5
    v_lshlrev_b32 v6, 7, v3
    v_lshl_add_u32 v6, v4, 6, v6
    s_lshl_b32 s41, s36, 12
    s_add_u32 s41, s41, {ST}
    s_lshl_b32 s37, s36, 15
    s_add_u32 s37, s37, {YY}
    s_mul_i32 s44, s36, {86*1024}
    s_mul_i32 s43, s34, {6*1024}
    s_add_u32 s44, s44, s43
    s_add_u32 s44, s44, {HH}
    s_mov_b32 s45, {LOG2E}
    s_mov_b32 s46, 49152
    s_mov_b32 s47, 0
    s_mov_b32 s48, {-49152 & 0xffffffff}
    s_lshl_b32 s38, s36, 8
    s_add_u32 s38, s38, {CNT + 0x4000}
    """)
    AF3, BB, AC3 = 16, 112, 160
    for i in range(96): a.I(f"v_mov_b32 v{AC3+i}, 0")
    poll(a, "C_PL3", "s38", 16)
    P.stamp()
    for q in range(4):
        a.I(f"buffer_load_dwordx4 v[{144+4*q}:{147+4*q}], v6, s[8:11], s41 offen offset:{16*q}{SC}")
    def bload3(i):
        a.I(f"buffer_load_dwordx4 v[{BB+4*i}:{BB+4*i+3}], v8, s[8:11], s37 offen offset:{1024*(i%4)}{SC}")
        if i % 4 == 3: a.I("s_add_u32 s37, s37, 4096")
    for i in range(8): bload3(i)
    def fread3(i, lo, hi):
        ra = "v11" if i >= 8 else "v9"
        for f in range(lo, hi):
            a.I(f"ds_read_b128 v[{AF3+24*(i%4)+4*f}:{AF3+24*(i%4)+4*f+3}], {ra} offset:{(i%8)*6144 + 1024*f}")
    a.I("s_barrier")
    fread3(0, 0, 6); fread3(1, 0, 6)
    a.T("P3_LOOP:")
    for i in range(8):
        if i % 2 == 0: a.I("s_barrier")
        for hf in range(2):
            fread3(i+2, 3*hf, 3*hf+3)
            a.I("s_waitcnt vmcnt(7) lgkmcnt(12)" if hf == 0 else "s_waitcnt lgkmcnt(12)")
            for f in range(3*hf, 3*hf+3):
                a.I(f"v_mfma_f32_32x32x16_bf16 v[{AC3+16*f}:{AC3+16*f+15}], v[{AF3+24*(i%4)+4*f}:{AF3+24*(i%4)+4*f+3}], v[{BB+4*i}:{BB+4*i+3}], v[{AC3+16*f}:{AC3+16*f+15}]")
        bload3(i)
    a.I(f"""
    v_mov_b32 v9, v11
    s_add_u32 s46, s46, 49152
    s_cmp_eq_u32 s46, 147456
    s_cselect_b32 s49, 98304, s48
    s_cselect_b32 s46, 0, s46
    v_subrev_u32 v11, s49, v11
    s_add_u32 s47, s47, 1
    s_cmp_eq_u32 s47, 3
    s_cselect_b32 s37, 0x7ff00000, s37
    s_cmp_lt_u32 s47, 4
    s_cbranch_scc1 P3_LOOP
    s_waitcnt vmcnt(0) lgkmcnt(0)
    s_barrier
    """)
    P.stamp()
    a.reset()
    def ut_reads(p):
        for arr in range(4):
            for aa in range(4):
                r = 16 + arr*16 + 4*aa
                a.DS(f"ds_read_b128 v[{r}:{r+3}], v5 offset:{arr*384 + p*128 + aa*32}", f"u{p}_{arr//2}")
    ut_reads(0)
    for q in range(1, 8): a.I(f"v_add_f32 v144, v144, v{144+2*q}\nv_add_f32 v145, v145, v{145+2*q}")
    a.I("""
    v_mov_b32 v146, v144
    v_mov_b32 v147, v145
    v_permlane32_swap_b32 v144, v146
    v_permlane32_swap_b32 v145, v147
    v_add_f32 v144, v144, v146
    v_add_f32 v145, v145, v147
    v_mul_f32 v13, 0x3b000000, v144
    v_mul_f32 v12, 0x3b000000, v145
    v_fma_f32 v12, -v13, v13, v12
    v_max_f32 v12, 0, v12
    v_add_f32 v12, 0x3727c5ac, v12
    v_rsq_f32 v14, v12
    v_sub_f32 v15, 0, v13
    """)
    U = 16; TMP = 80
    for p in range(3):
        if p == 1: a.I("s_cmp_eq_u32 s34, 14\ns_cbranch_scc1 P3_FIN")
        for mm in range(2):
            a.WAIT(ds=f"u{p}_{mm}")
            A = AC3 + 32*p + 16*mm
            for r in range(16): a.I(f"v_fmac_f32 v{A+r}, v{U+32*mm+r}, v15")
            for r in range(16): a.I(f"v_fma_f32 v{A+r}, v{A+r}, v14, v{U+32*mm+16+r}")
        G = AC3 + 32*p
        if p < 2: ut_reads(p+1)
        for r in range(16): a.I(f"v_mul_f32 v{TMP+r}, s45, v{G+r}")
        for r in range(16): a.I(f"v_exp_f32 v{TMP+r}, -v{TMP+r}")
        for r in range(16): a.I(f"v_mul_f32 v{G+r}, v{G+r}, v{G+16+r}")
        for r in range(16): a.I(f"v_add_f32 v{TMP+r}, 1.0, v{TMP+r}")
        for r in range(16): a.I(f"v_rcp_f32 v{TMP+r}, v{TMP+r}")
        for r in range(16): a.I(f"v_mul_f32 v{G+r}, v{G+r}, v{TMP+r}")
        for d in range(8): a.I(f"v_cvt_pk_bf16_f32 v{96+8*p+d}, v{G+2*d}, v{G+2*d+1}")
        a.I(f"buffer_store_dwordx4 v[{96+8*p}:{99+8*p}], v8, s[8:11], s44 offen offset:{(p*2048)%4096}{SC}")
        a.I(f"buffer_store_dwordx4 v[{100+8*p}:{103+8*p}], v8, s[8:11], s44 offen offset:{(p*2048)%4096+1024}{SC}")
        if p == 1: a.I("s_add_u32 s44, s44, 4096")
    a.T("P3_FIN:")
    a.I(f"s_waitcnt lgkmcnt(0)\ns_lshl_b32 s38, s36, 8\ns_add_u32 s38, s38, {CNT + 0x8000}")
    signal(a, "s38")
    if PROF: a.I("s_branch C_P4X")
    a.T("C_P4:")
    if PROF:
        n = P.n; P.n = n - 2; P.stamp(); P.stamp()
        a.T("C_P4X:")
    P.stamp()
    proj_compute(4)
    P.flush()
    a.I("s_endpgm")
    a.T("KM_LOADER:"); a.reset()
    HB, HA = 100, 116
    a.I(f"""
    s_mul_i32 s39, s50, 3072
    s_mul_i32 s38, s34, 98304
    s_add_u32 s38, s38, {WQ}
    s_add_u32 s38, s38, s39
    s_mov_b32 s40, s39
    v_and_b32 v4, 15, v2
    v_lshrrev_b32 v5, 4, v2
    v_lshrrev_b32 v6, 1, v5
    v_and_b32 v7, 1, v5
    v_lshlrev_b32 v9, 10, v6
    v_lshl_add_u32 v9, v7, 9, v9
    v_lshl_add_u32 v9, v4, 4, v9
    v_add_u32 v9, 256, v9
    s_lshl_b32 s41, s33, 2
    s_sub_u32 s41, s41, 1
    s_max_i32 s41, s41, 0
    s_lshl_b32 s41, s41, 15
    s_lshl_b32 s43, s50, 11
    s_add_u32 s41, s41, s43
    s_add_u32 s41, s41, {XN}
    v_mul_u32_u24 v13, 3072, v6
    v_lshl_add_u32 v13, v7, 9, v13
    v_lshl_add_u32 v13, v4, 4, v13
    s_lshr_b32 s43, s50, 1
    s_add_u32 s43, s43, 1
    s_lshl_b32 s43, s43, 10
    s_and_b32 s44, s50, 1
    s_lshl_b32 s44, s44, 8
    s_add_u32 s43, s43, s44
    v_add_u32 v13, s43, v13
    v_add_u32 v14, 49152, v13
    v_lshlrev_b32 v12, 5, v5
    s_lshl_b32 s43, s50, 7
    v_add_u32 v12, s43, v12
    v_add_u32 v12, {TAB}, v12
    v_add_u32 v10, {HBL}, v8
    s_lshl_b32 s43, s50, 10
    v_add_u32 v11, s43, v10
    """)
    def issue1(g):
        a.I("s_mov_b32 m0, s40")
        for i in range(3): a.VM(f"buffer_load_dwordx4 v8, s[8:11], s38 offen offset:{1024*i} lds", f"w{g}")
        a.I("s_add_u32 s38, s38, 12288\ns_add_u32 s40, s40, 12288")
    issue1(0); issue1(1)
    for i in range(4):
        a.VM(f"buffer_load_dwordx4 v[{HB+4*i}:{HB+3+4*i}], v9, s[8:11], s41 offen", "h")
        a.I("s_add_u32 s41, s41, 8192")
    issue1(2); issue1(3)
    def halo(g):
        for i in range(2):
            a.DS(f"ds_read_b128 v[{64+8*i}:{67+8*i}], {'v13' if g < 4 else 'v14'} offset:{(g%4)*12288 + i*6144}", f"hh{g}")
            a.DS(f"ds_read_b128 v[{68+8*i}:{71+8*i}], v10 offset:{(2*g+i)*1024}", f"hh{g}")
        a.WAIT(ds=f"hh{g}")
        for i in range(2):
            cin = "0" if (g == 0 and i == 0) else f"v[{HA}:{HA+3}]"
            a.I(f"v_mfma_f32_16x16x32_bf16 v[{HA}:{HA+3}], v[{64+8*i}:{67+8*i}], v[{68+8*i}:{71+8*i}], {cin}")
    for g in range(8):
        a.WAIT(vm=f"w{g}", ds="hw"); a.I("s_barrier")
        if g + 4 < 8: issue1(g+4)
        if g == 3 and opt("touch", 1):
            a.I("s_lshl_b32 s43, s2, 2\ns_add_u32 s43, s43, s50\ns_lshl_b32 s43, s43, 11")
            for pp in (24, 26, 28):
                srd(a, 56, pp, 512*2752)
                a.VM("buffer_load_dwordx4 v[140:143], v8, s[56:59], s43 offen", "pp")
                a.VM("buffer_load_dwordx4 v[140:143], v8, s[56:59], s43 offen offset:1024", "pp")
        if g < 4:
            for q in range(4):
                a.DS(f"ds_read_b128 v[{32+4*q}:{35+4*q}], v12 offset:{(q//2)*2048 + g*512 + (q%2)*16}", f"ht{g}")
        if g > 0: halo(g-1)
        if g < 4:
            a.WAIT(vm="h", ds=f"ht{g}")
            for x in modulate(HB+4*g, 32): a.I(x)
            a.DS(f"ds_write_b128 v11, v[{HB+4*g}:{HB+4*g+3}] offset:{g*4096}", "hw")
    a.I("s_barrier")
    halo(7)
    a.I(f"""
    v_and_b32 v3, 15, v2
    v_lshrrev_b32 v4, 4, v2
    v_and_b32 v5, 1, v4
    v_lshrrev_b32 v6, 1, v4
    s_and_b32 s35, s3, 1
    s_nop 7
    v_cvt_pk_bf16_f32 v84, v{HA}, v{HA+1}
    v_cvt_pk_bf16_f32 v85, v{HA+2}, v{HA+3}
    s_cmp_ge_u32 s50, 2
    s_cbranch_scc1 L_HV
    s_mul_i32 s35, s35, {2*144*16}
    v_mul_u32_u24 v5, {144*16}, v5
    v_lshl_add_u32 v5, v3, 4, v5
    v_lshl_add_u32 v5, v6, 3, v5
    v_add_u32 v5, s35, v5
    v_add_u32 v5, {KT}, v5
    ds_write_b64 v5, v[84:85]
    s_branch L_HD
    """)
    a.T("L_HV:")
    a.I(f"""
    v_lshlrev_b32 v80, 16, v84
    v_and_b32 v81, 0xffff0000, v84
    v_lshlrev_b32 v82, 16, v85
    v_and_b32 v83, 0xffff0000, v85
    s_mul_i32 s35, s35, {4*144*16}
    v_lshl_add_u32 v5, v5, 1, v6
    v_mul_u32_u24 v5, {144*16}, v5
    v_lshl_add_u32 v5, v3, 4, v5
    v_add_u32 v5, s35, v5
    v_add_u32 v5, {VT}, v5
    ds_write_b128 v5, v[80:83]
    """)
    a.T("L_HD:")
    a.I("s_waitcnt lgkmcnt(0)\ns_barrier\ns_barrier")
    a.reset()
    a.I(f"""
    s_mov_b32 s55, 0x7ff00000
    s_cmp_ge_u32 s50, 2
    s_cbranch_scc1 RL_END
    s_mov_b32 s40, 0x05040100
    s_mov_b32 s41, 0x07060302
    s_lshl_b32 s52, s2, 1
    s_add_u32 s52, s52, s50
    s_lshl_b32 s45, s50, 15
    s_add_u32 s45, s45, 65536
    s_cmp_ge_u32 s52, 344
    s_cbranch_scc1 RL_W2
    s_and_b32 s44, s52, 3           ; kq
    s_bfe_u32 s53, s52, 0x10002     ; mat
    s_lshr_b32 s54, s52, 3          ; nb
    v_lshrrev_b32 v14, 3, v2
    v_bfe_u32 v4, v2, 2, 1
    v_and_b32 v5, 3, v2
    s_lshl_b32 s42, s44, 3
    v_add_u32 v13, s42, v14
    v_lshlrev_b32 v15, 4, v13
    v_lshl_add_u32 v15, v4, 2, v15
    s_mov_b32 s42, 2752
    v_mul_lo_u32 v7, v15, s42
    v_lshl_add_u32 v7, v5, 4, v7
    s_lshl_b32 s42, s54, 6
    s_cmp_eq_u32 s53, 1
    s_cselect_b32 s22, s26, s24
    s_cselect_b32 s23, s27, s25
    """)
    srd(a, 56, 22, 512*2752)
    for j in range(8):
        row = (j % 4) + 8*(j // 4)
        a.I(f"v_add_u32 v9, {row*2752}, v7\nbuffer_load_dwordx4 v[{64+4*j}:{67+4*j}], v9, s[56:59], s42 offen")
    a.I(f"""
    v_lshlrev_b32 v6, 10, v14
    v_lshl_add_u32 v6, v4, 9, v6
    v_lshl_add_u32 v6, v5, 7, v6
    v_add_u32 v6, s45, v6
    v_add_u32 v7, s45, v8
    s_mul_i32 s43, s54, 43691
    s_lshr_b32 s43, s43, 17
    s_mul_i32 s39, s43, 3
    s_sub_u32 s39, s54, s39
    s_lshl_b32 s39, s39, 1
    s_add_u32 s39, s39, s53
    s_lshl_b32 s39, s39, 10
    s_mul_i32 s38, s43, 196608
    s_add_u32 s38, s38, s39
    s_mul_i32 s39, s44, {8*6144}
    s_add_u32 s38, s38, s39
    s_add_u32 s38, s38, {W13}
    s_waitcnt vmcnt(0)
    """)
    transpose8x8(a, 64, 96, 40, 41)
    for i in range(8): a.I(f"ds_write_b128 v6, v[{96+4*i}:{99+4*i}] offset:{16*i}")
    a.I("s_waitcnt lgkmcnt(0)")
    for f in range(8): a.I(f"ds_read_b128 v[{96+4*f}:{99+4*f}], v7 offset:{1024*f}")
    a.I("s_waitcnt lgkmcnt(0)")
    for f in range(8):
        a.I(f"buffer_store_dwordx4 v[{96+4*f}:{99+4*f}], v8, s[8:11], s38 offen{SC}\ns_add_u32 s38, s38, 6144")
    a.I(f"s_lshl_b32 s55, s43, 8\ns_add_u32 s55, s55, {CNTW}\ns_branch RL_END")
    a.T("RL_W2:")
    srd(a, 56, 28, 1376*1024)
    a.I("s_sub_u32 s53, s52, 344")
    a.T("RL_W2L:")
    chained_addr(a, 53, 64)
    for j in range(8):
        a.I(f"buffer_load_dwordx4 v[{64+4*j}:{67+4*j}], v{5 if j < 4 else 9}, s[56:59], s36 offen offset:{1024*(j%4)}")
    chained_store(a, 64, 96, W2, 88064, 21, stg="s45", sc=SC)
    a.I(f"s_lshl_b32 s55, s35, 8\ns_add_u32 s55, s55, {CNT2}")
    a.I("s_cmp_ge_u32 s53, 8\ns_cbranch_scc1 RL_END")
    signal(a, "s55")
    a.I("s_add_u32 s53, s53, 168\ns_branch RL_W2L")
    a.T("RL_END:")
    wg_map(a, "sq")
    a.I(f"""
    s_and_b32 s51, s3, 1
    s_cmp_ge_u32 s50, 2
    s_cbranch_scc1 L2_A
    s_lshl_b32 s36, s33, 1
    s_add_u32 s36, s36, s51
    s_lshl_b32 s38, s36, 15
    s_add_u32 s38, s38, {OO}
    s_lshl_b32 s40, s51, 15
    s_add_u32 s40, s40, 65536
    s_lshl_b32 s43, s36, 8
    s_add_u32 s43, s43, {CNT}
    """)
    signal(a, "s55")
    poll(a, "L_PL2", "s43", 16)
    def stream(n4, sc, tag):
        for q in range(n4):
            a.I("s_mov_b32 m0, s40")
            for i in range(4): a.VM(f"buffer_load_dwordx4 v8, s[8:11], s38 offen offset:{1024*i}{sc} lds", f"{tag}{q//2}")
            a.I("s_add_u32 s38, s38, 4096\ns_add_u32 s40, s40, 4096")
    stream(8, SC, "c")
    for g in range(4):
        a.WAIT(vm=f"c{g}"); a.I("s_barrier")
    a.I("s_branch L2_E")
    a.T("L2_A:"); a.reset()
    a.I(f"""
    s_lshl_b32 s38, s34, 1
    s_add_u32 s38, s38, s51
    s_lshl_b32 s38, s38, 15
    s_add_u32 s38, s38, {WO}
    s_lshl_b32 s40, s51, 15
    """)
    stream(8, "", "c")
    a.I("s_waitcnt vmcnt(0)\ns_barrier\ns_barrier\ns_barrier\ns_barrier")
    a.T("L2_E:")
    a.I("s_barrier")
    a.reset()
    wg_map(a, "r2c4")
    a.I(f"""
    s_cmp_ge_u32 s34, 15
    s_cbranch_scc1 L_P4
    s_mul_i32 s38, s34, 196608
    s_add_u32 s38, s38, {W13}
    s_mul_i32 s39, s50, 3072
    s_add_u32 s38, s38, s39
    s_mov_b32 s40, s39
    s_mul_i32 s42, s34, 384
    s_add_u32 s42, s42, {UT}
    s_lshl_b32 s45, s34, 8
    s_add_u32 s45, s45, {CNTU}
    s_cmp_eq_u32 s34, 14
    s_cselect_b32 s46, 2, 6
    """)
    NS3 = 12
    def issue3(g):
        if g % NS3 == 0 and g: a.I("s_mov_b32 s40, s39")
        a.I("s_mov_b32 m0, s40")
        for i in range(3): a.VM(f"buffer_load_dwordx4 v8, s[8:11], s38 offen offset:{1024*i}{SC} lds", f"w{g}")
        a.I("s_add_u32 s38, s38, 12288\ns_add_u32 s40, s40, 12288")
    a.I(f"s_lshl_b32 s43, s34, 8\ns_add_u32 s43, s43, {CNTW}\ns_lshl_b32 s44, s46, 2")
    poll(a, "L_PLW", "s43", "s44")
    for g in range(NS3): issue3(g)
    q = list(a.vmq); gen_ut(); a.vmq = q
    nxt = NS3
    for g in range(16):
        a.WAIT(vm=f"w{g}"); a.I("s_barrier")
        if nxt < 16 and nxt - NS3 <= g - 2:
            issue3(nxt); nxt += 1
        if g == opt("gu", 12):
            q = list(a.vmq)
            a.I("s_cmp_lg_u32 s50, 0\ns_cbranch_scc1 L_NOU")
            poll(a, "L_PLU", "s45", "s46")
            a.I("s_mov_b64 exec, 0xffffff")
            for arr in range(4):
                a.I(f"s_mov_b32 m0, {147456 + arr*384}\ns_add_u32 s43, s42, {arr*1408*4}\nbuffer_load_dwordx4 v8, s[8:11], s43 offen{SC} lds")
            a.I("s_mov_b64 exec, -1")
            a.T("L_NOU:")
            a.vmq = q
    assert nxt == 16
    a.I("s_barrier")
    a.I("s_waitcnt vmcnt(0)\ns_barrier")
    a.T("L_P4:"); a.reset()
    wg_map(a, "sq")
    a.I(f"""
    s_and_b32 s51, s3, 1
    s_lshl_b32 s36, s33, 1
    s_add_u32 s36, s36, s51
    s_mul_i32 s37, s36, {86*1024}
    s_add_u32 s37, s37, {HH}
    s_lshl_b32 s38, s34, 1
    s_add_u32 s38, s38, s51
    s_mul_i32 s38, s38, {86*1024}
    s_add_u32 s38, s38, {W2}
    s_lshl_b32 s39, s50, 13
    s_mov_b32 s40, s39
    s_lshl_b32 s43, s34, 8
    s_add_u32 s43, s43, {CNT2}
    s_mov_b32 s44, 22
    s_cmp_ge_u32 s50, 2
    s_cbranch_scc1 L4_PL
    s_mov_b32 s38, s37
    s_lshl_b32 s43, s36, 8
    s_add_u32 s43, s43, {CNT + 0x8000}
    s_mov_b32 s44, 15
    """)
    a.T("L4_PL:")
    poll(a, "L_PL4", "s43", "s44")
    a.T("L4_GO:")
    def issue4(g):
        if g % 4 == 0 and g: a.I("s_mov_b32 s40, s39")
        for hf in range(2):
            n = min(4, 86 - 8*g - 4*hf)
            if n <= 0: continue
            a.I(f"s_add_u32 m0, s40, {4096*hf}")
            for i in range(n): a.VM(f"buffer_load_dwordx4 v8, s[8:11], s38 offen offset:{1024*i}{SC} lds", f"w{g}")
            a.I("s_add_u32 s38, s38, 4096")
        a.I("s_add_u32 s40, s40, 32768")
    for g in range(4): issue4(g)
    nxt = 4
    for g in range(11):
        a.WAIT(vm=f"w{g}"); a.I("s_barrier")
        if nxt < 11 and nxt - 4 <= g - 2:
            issue4(nxt); nxt += 1
    assert nxt == 11
    a.T("KM_END:")
    a.I("s_endpgm")

def main():
    a = Asm()
    gen_k0(a); gen_main(a)
    head = """; generated by work/gen23.py
; @launch kernel=k0_kernel grid=(320,1,1) block=(256,1,1) lds=32768
; @launch kernel=km_kernel grid=(256,1,1) block=(512,1,1) lds=163840
.amdgcn_target "amdgcn-amd-amdhsa--gfx950"
.text
"""
    tail = '.section .rodata,"a"\n' + desc("k0_kernel", 128) + desc("km_kernel", 256)
    out = head + a.render() + tail
    args = [x for x in sys.argv[1:] if not x.startswith("-")]
    path = args[0] if args else f"cdna_kernels/{NAME}.s"
    open(path, "w").write(out)
    print("wrote", path, len(out))
main()
```

```python
import sys
sys.path.insert(0, 'work')
from asmlib import Asm

NAME = "adaLN_cond__sliding_local_dilated__glu_gated_swiglu__prompt"
A_X, A_WQKV, A_WO, A_BX, A_W1, A_W3, A_W2, A_C, A_WMOD, A_OUT, A_DBG, A_WS = [8*i for i in range(12)]
MODP = 0
MODF = 0x10000
UT   = 0x14000
ST   = 0x40000
XN   = 0x100000
WQ   = 0x300000
OO   = 0x500000
WO   = 0x700000
X1   = 0x800000
W13  = 0xA00000
HH   = 0xD00000
W2   = 0x1300000
YY   = 0x1500000
CNT  = 0x30000
CNTU = 0x3E000
WS_BYTES = 0x2000000
LOG2E = 0x3fb8aa3b
PROF = "-p" in sys.argv
PROFB = 0x1800000
TIMER = "s_memtime" if "-c" in sys.argv else "s_memrealtime"
def opt(name, default):
    for x in sys.argv:
        if x.startswith(f"-{name}="): return int(x.split("=")[1])
    return default

class Prof:
    def __init__(self, a, kid): self.a, self.kid, self.n = a, kid, 0
    def stamp(self):
        if not PROF: return
        self.a.I(f"{TIMER} s[{60+2*self.n}:{61+2*self.n}]"); self.a.WAITALL(vm=False)
        self.n += 1
    def flush(self):
        if not PROF: return
        a = self.a
        a.WAITALL()
        a.I(f"{TIMER} s[{60+2*self.n}:{61+2*self.n}]\ns_waitcnt lgkmcnt(0)")
        a.I(f"s_lshl_b32 s58, s2, 3\ns_add_u32 s58, s58, s3\ns_lshl_b32 s58, s58, 7\ns_add_u32 s58, s58, {PROFB + self.kid*0x80000}\nv_mov_b32 v0, 0")
        for i in range(self.n+1):
            a.I(f"v_mov_b32 v2, s{60+2*i}\nv_mov_b32 v3, s{61+2*i}\nbuffer_store_dwordx2 v[2:3], v0, s[8:11], s58 offen offset:{8*i}")

def srd(a, d, b, nbytes):
    a.I(f"s_mov_b32 s{d}, s{b}\ns_and_b32 s{d+1}, s{b+1}, 0xffff\ns_mov_b32 s{d+2}, {nbytes}\ns_mov_b32 s{d+3}, 0x00020000")
def header(a, name):
    a.T(f".globl {name}\n.p2align 8\n.type {name},@function\n{name}:"); a.reset()
def desc(name, vgpr, agpr=0, sgpr=96):
    acc = (vgpr + 3) // 4 * 4
    return f""".p2align 6
.amdhsa_kernel {name}
  .amdhsa_next_free_vgpr {acc + agpr if agpr else vgpr}
  .amdhsa_next_free_sgpr {sgpr}
  .amdhsa_accum_offset {acc}
  .amdhsa_group_segment_fixed_size 0
  .amdhsa_kernarg_size 96
  .amdhsa_user_sgpr_count 2
  .amdhsa_user_sgpr_kernarg_segment_ptr 1
  .amdhsa_system_sgpr_workgroup_id_x 1
.end_amdhsa_kernel
"""
def round_bf16(a, dst, src):
    a.I(f"v_cvt_pk_bf16_f32 v{dst}, v{src}, v{src}\nv_lshlrev_b32 v{dst}, 16, v{dst}")
def transpose8x8(a, R, D, s_lo, s_hi):
    for c in range(4):
        for e in range(2):
            n = 2*c + e
            for jj in range(4):
                a.I(f"v_perm_b32 v{D+4*n+jj}, v{R+4*(2*jj+1)+c}, v{R+4*(2*jj)+c}, s{s_hi if e else s_lo}")

def chained_addr(a, unit_s, R):
    a.I(f"""
    s_and_b32 s35, s{unit_s}, 7
    s_lshr_b32 s34, s{unit_s}, 3
    v_lshrrev_b32 v3, 4, v2
    v_bfe_u32 v12, v2, 3, 1
    v_and_b32 v4, 7, v2
    v_lshlrev_b32 v5, 14, v3
    v_lshl_add_u32 v5, v12, 12, v5
    v_lshl_add_u32 v5, v4, 4, v5
    v_add_u32 v9, 8192, v5
    s_lshl_b32 s36, s34, 16
    s_lshl_b32 s37, s35, 7
    s_add_u32 s36, s36, s37
    """)
def chained_loads(a, R, sr, tag=None):
    for j in range(8):
        a.VM(f"buffer_load_dwordx4 v[{R+4*j}:{R+3+4*j}], v{5 if j < 4 else 9}, s[{sr}:{sr+3}], s36 offen offset:{1024*(j%4)}", tag)
def chained_dst(a, tmax, dst, ct_stride):
    a.I(f"""
    s_mul_i32 s36, s35, {2*ct_stride}
    s_lshl_b32 s37, s34, 12
    s_add_u32 s36, s36, s37
    s_add_u32 s36, s36, {dst}
    v_lshrrev_b32 v6, 2, v4
    s_mov_b32 s38, {ct_stride}
    v_mul_lo_u32 v6, v6, s38
    v_lshl_add_u32 v6, v3, 10, v6
    v_lshl_add_u32 v6, v12, 9, v6
    v_and_b32 v7, 3, v4
    v_lshl_add_u32 v6, v7, 7, v6
    s_lshl_b32 s37, s34, 2
    v_add_u32 v7, s37, v3
    v_cmp_gt_u32 vcc, {tmax}, v7
    v_mov_b32 v7, 0x7ff00000
    v_cndmask_b32 v6, v7, v6, vcc
    """)

def chained_store(a, R, D, dst, ct_stride, last_kb):
    a.I(f"""
    v_lshrrev_b32 v6, 2, v4
    v_lshl_add_u32 v6, v6, 2, v3
    v_lshlrev_b32 v6, 10, v6
    v_lshl_add_u32 v6, v12, 9, v6
    v_and_b32 v7, 3, v4
    v_lshl_add_u32 v6, v7, 7, v6
    s_lshl_b32 s42, s3, 13
    v_add_u32 v6, s42, v6
    v_add_u32 v7, s42, v8
    s_mul_i32 s36, s35, {2*ct_stride}
    s_lshl_b32 s37, s34, 12
    s_add_u32 s36, s36, s37
    s_add_u32 s36, s36, {dst}
    s_add_u32 s37, s36, {ct_stride}
    s_cmp_eq_u32 s34, {last_kb}
    s_cselect_b32 s42, 0x7ff00000, 0
    v_add_u32 v9, s42, v8
    s_waitcnt vmcnt(0)
    """)
    transpose8x8(a, R, D, 40, 41)
    for i in range(8): a.I(f"ds_write_b128 v6, v[{D+4*i}:{D+3+4*i}] offset:{16*i}")
    a.I("s_waitcnt lgkmcnt(0)")
    for f in range(8): a.I(f"ds_read_b128 v[{D+4*f}:{D+3+4*f}], v7 offset:{1024*f}")
    a.I("s_waitcnt lgkmcnt(0)")
    for f in range(8):
        a.I(f"buffer_store_dwordx4 v[{D+4*f}:{D+3+4*f}], {'v8' if f%4 < 2 else 'v9'}, s[8:11], {'s36' if f < 4 else 's37'} offen offset:{1024*(f%4)}")

def gen_k0(a):
    header(a, "k0_kernel")
    P = Prof(a, 0); P.stamp()
    a.I(f"""
    s_load_dwordx2 s[6:7], s[0:1], {A_WS}
    s_load_dwordx4 s[16:19], s[0:1], {A_X}
    s_load_dwordx2 s[20:21], s[0:1], {A_WO}
    s_load_dwordx4 s[28:31], s[0:1], {A_C}
    s_load_dwordx4 s[24:27], s[0:1], {A_W1}
    s_load_dwordx2 s[22:23], s[0:1], {A_W2}
    v_lshrrev_b32 v1, 6, v0
    v_and_b32 v2, 63, v0
    v_readfirstlane_b32 s3, v1
    s_mov_b32 s40, 0x05040100
    s_mov_b32 s41, 0x07060302
    s_waitcnt lgkmcnt(0)
    """)
    srd(a, 8, 6, WS_BYTES)
    a.I("""
    s_cmp_lt_u32 s2, 192
    s_cbranch_scc1 K0_MOD
    s_cmp_lt_u32 s2, 256
    s_cbranch_scc1 K0_XN
    s_cmp_lt_u32 s2, 304
    s_cbranch_scc1 K0_WQ
    s_cmp_lt_u32 s2, 320
    s_cbranch_scc1 K0_WO
    s_cmp_lt_u32 s2, 406
    s_cbranch_scc1 K0_W13
    s_cmp_lt_u32 s2, 450
    s_cbranch_scc1 K0_W2
    s_endpgm
    """)
    a.T("K0_MOD:"); a.reset()
    srd(a, 12, 30, 512*3072*2)
    srd(a, 52, 28, 1024)
    a.I(f"""
    s_mov_b32 s32, 0x5555556
    s_mul_hi_u32 s33, s2, s32
    s_mul_i32 s34, s33, 48
    s_sub_u32 s34, s2, s34
    v_lshrrev_b32 v3, 3, v0
    v_and_b32 v4, 7, v0
    s_lshl_b32 s35, s33, 8
    v_lshlrev_b32 v5, 3, v3
    buffer_load_dwordx2 v[6:7], v5, s[52:55], s35 offen
    s_mul_i32 s36, s33, {128*6144}
    s_lshl_b32 s37, s34, 7
    s_add_u32 s36, s36, s37
    s_mov_b32 s38, {4*6144}
    v_mul_lo_u32 v8, v3, s38
    v_lshl_add_u32 v8, v4, 4, v8
    v_add_u32 v9, 6144, v8
    v_add_u32 v10, {2*6144}, v8
    v_add_u32 v11, {3*6144}, v8
    buffer_load_dwordx4 v[16:19], v8, s[12:15], s36 offen
    buffer_load_dwordx4 v[20:23], v9, s[12:15], s36 offen
    buffer_load_dwordx4 v[24:27], v10, s[12:15], s36 offen
    buffer_load_dwordx4 v[28:31], v11, s[12:15], s36 offen
    s_mov_b32 s39, {LOG2E}
    s_waitcnt vmcnt(4)
    v_lshlrev_b32 v12, 16, v6
    v_and_b32 v13, 0xffff0000, v6
    v_lshlrev_b32 v14, 16, v7
    v_and_b32 v15, 0xffff0000, v7
    """)
    for i in range(4):
        r = 12 + i
        a.I(f"v_mul_f32 v32, s39, v{r}\nv_exp_f32 v32, -v32\nv_add_f32 v32, 1.0, v32\nv_rcp_f32 v32, v32\nv_mul_f32 v{r}, v{r}, v32")
        round_bf16(a, r, r)
    a.I("s_waitcnt vmcnt(0)")
    P.stamp()
    for i in range(4):
        for c in range(4):
            a.I(f"v_lshlrev_b32 v33, 16, v{16+4*i+c}\nv_and_b32 v34, 0xffff0000, v{16+4*i+c}")
            op = "v_mul_f32" if i == 0 else "v_fmac_f32"
            a.I(f"{op} v{40+2*c}, v{12+i}, v33\n{op} v{41+2*c}, v{12+i}, v34")
    a.I(f"""
    v_lshlrev_b32 v5, 5, v0
    ds_write_b128 v5, v[40:43]
    ds_write_b128 v5, v[44:47] offset:16
    s_waitcnt lgkmcnt(0)
    s_barrier
    s_cmp_lg_u32 s3, 0
    s_cbranch_scc1 K0_END
    v_lshlrev_b32 v5, 2, v0
    """)
    for kg in range(32):
        a.I(f"ds_read_b32 v{16+kg}, v5 offset:{kg*256}")
    a.I("s_waitcnt lgkmcnt(0)")
    for st in (16, 8, 4, 2, 1):
        for kg in range(st):
            a.I(f"v_add_f32 v{16+kg}, v{16+kg}, v{16+kg+st}")
    a.I(f"""
    s_mul_i32 s36, s33, {3072*4}
    s_lshl_b32 s37, s34, 8
    s_add_u32 s36, s36, s37
    buffer_store_dword v16, v5, s[8:11], s36 offen
    """)
    P.flush()
    a.I("s_endpgm")
    a.T("K0_XN:"); a.reset()
    Px = Prof(a, 5); Px.n = 1
    srd(a, 12, 16, 2048*1024)
    a.I(f"""
    s_sub_u32 s33, s2, 192
    v_lshlrev_b32 v3, 2, v0
    v_mov_b32 v4, 0
    s_lshl_b32 s34, s33, 10
    s_add_u32 s34, s34, {CNT}
    buffer_store_dword v4, v3, s[8:11], s34 offen
    v_and_b32 v3, 31, v2
    v_lshrrev_b32 v4, 5, v2
    v_lshlrev_b32 v5, 10, v3
    v_lshl_add_u32 v5, v4, 7, v5
    s_lshl_b32 s34, s33, 15
    s_lshl_b32 s35, s3, 8
    s_add_u32 s34, s34, s35
    """)
    for s in range(8):
        a.I(f"buffer_load_dwordx4 v[{16+4*s}:{19+4*s}], v5, s[12:15], s34 offen offset:{16*s}")
    a.I("s_waitcnt vmcnt(0)")
    Px.stamp()
    for d in range(32):
        a.I(f"v_lshlrev_b32 v{64+2*d}, 16, v{16+d}\nv_and_b32 v{65+2*d}, 0xffff0000, v{16+d}")
    def halfsum(src):
        a.I(f"v_mov_b32 v7, v{src}\nv_permlane32_swap_b32 v{src}, v7\nv_add_f32 v{src}, v{src}, v7")
    for c in range(4): a.I(f"v_add_f32 v{10+c}, v{64+c}, v{68+c}")
    for d in range(8, 64): a.I(f"v_add_f32 v{10+d%4}, v{10+d%4}, v{64+d}")
    a.I("v_add_f32 v10, v10, v11\nv_add_f32 v12, v12, v13\nv_add_f32 v6, v10, v12")
    halfsum(6)
    a.I(f"""
    v_lshlrev_b32 v8, 2, v3
    s_lshl_b32 s35, s3, 7
    v_add_u32 v9, s35, v8
    ds_write_b32 v9, v6
    s_waitcnt lgkmcnt(0)
    s_barrier
    ds_read_b32 v10, v8
    ds_read_b32 v11, v8 offset:128
    ds_read_b32 v12, v8 offset:256
    ds_read_b32 v13, v8 offset:384
    s_waitcnt lgkmcnt(0)
    v_add_f32 v10, v10, v11
    v_add_f32 v12, v12, v13
    v_add_f32 v10, v10, v12
    v_mul_f32 v14, 0x3b000000, v10
    """)
    for d in range(64):
        a.I(f"v_sub_f32 v7, v{64+d}, v14")
        a.I(f"v_mul_f32 v{10+d}, v7, v7" if d < 4 else f"v_fmac_f32 v{10+d%4}, v7, v7")
    a.I("v_add_f32 v10, v10, v11\nv_add_f32 v12, v12, v13\nv_add_f32 v6, v10, v12")
    halfsum(6)
    a.I(f"""
    ds_write_b32 v9, v6 offset:512
    s_waitcnt lgkmcnt(0)
    s_barrier
    ds_read_b32 v10, v8 offset:512
    ds_read_b32 v11, v8 offset:640
    ds_read_b32 v12, v8 offset:768
    ds_read_b32 v13, v8 offset:896
    s_waitcnt lgkmcnt(0)
    v_add_f32 v10, v10, v11
    v_add_f32 v12, v12, v13
    v_add_f32 v10, v10, v12
    v_mul_f32 v15, 0x3b000000, v10
    """)
    round_bf16(a, 14, 14); round_bf16(a, 15, 15)
    a.I("v_add_f32 v15, 0x3727c5ac, v15"); round_bf16(a, 15, 15)
    a.I("v_sqrt_f32 v15, v15"); round_bf16(a, 15, 15)
    a.I("v_rcp_f32 v15, v15")
    a.I(f"""
    v_lshlrev_b32 v8, 4, v2
    s_lshl_b32 s34, s33, 15
    s_lshl_b32 s35, s3, 13
    s_add_u32 s34, s34, s35
    s_add_u32 s34, s34, {XN}
    """)
    for d in range(32):
        lo, hi = 64+2*d, 65+2*d
        a.I(f"""
        v_sub_f32 v{lo}, v{lo}, v14
        v_sub_f32 v{hi}, v{hi}, v14
        v_cvt_pk_bf16_f32 v6, v{lo}, v{hi}
        v_lshlrev_b32 v{lo}, 16, v6
        v_and_b32 v{hi}, 0xffff0000, v6
        v_mul_f32 v{lo}, v{lo}, v15
        v_mul_f32 v{hi}, v{hi}, v15
        v_cvt_pk_bf16_f32 v{16+d}, v{lo}, v{hi}
        """)
        if d % 4 == 3:
            ss = d // 4
            if ss == 4: a.I("s_add_u32 s34, s34, 4096")
            a.I(f"buffer_store_dwordx4 v[{16+4*ss}:{19+4*ss}], v8, s[8:11], s34 offen offset:{1024*(ss%4)}")
    Px.flush()
    a.I("s_endpgm")
    a.T("K0_WQ:"); a.reset()
    srd(a, 12, 18, 512*3072)
    a.I(f"""
    s_sub_u32 s33, s2, 256
    s_lshl_b32 s33, s33, 2
    s_add_u32 s33, s33, s3
    s_mov_b32 s32, 0xaaaaaab
    s_mul_hi_u32 s34, s33, s32
    s_mul_i32 s35, s34, 24
    s_sub_u32 s35, s33, s35
    v_lshrrev_b32 v3, 3, v2
    v_and_b32 v4, 7, v2
    s_mov_b32 s38, {8*3072}
    v_mul_lo_u32 v5, v3, s38
    v_lshl_add_u32 v5, v4, 4, v5
    s_mul_i32 s36, s34, {64*3072}
    s_lshl_b32 s37, s35, 7
    s_add_u32 s36, s36, s37
    """)
    for j in range(8):
        a.I(f"buffer_load_dwordx4 v[{16+4*j}:{19+4*j}], v5, s[12:15], s36 offen")
        if j < 7: a.I("s_add_u32 s36, s36, 3072")
    a.I(f"""
    s_and_b32 s36, s35, 7
    s_mul_i32 s36, s36, {2*98304}
    s_lshr_b32 s37, s35, 3
    s_lshl_b32 s37, s37, 10
    s_add_u32 s36, s36, s37
    s_lshr_b32 s37, s34, 1
    s_mul_i32 s37, s37, {8*3072}
    s_add_u32 s36, s36, s37
    s_and_b32 s37, s34, 1
    s_lshl_b32 s37, s37, 9
    s_add_u32 s36, s36, s37
    s_add_u32 s36, s36, {WQ}
    v_lshrrev_b32 v6, 2, v4
    v_lshl_add_u32 v6, v6, 3, v3
    v_lshlrev_b32 v6, 9, v6
    v_and_b32 v7, 3, v4
    v_lshl_add_u32 v6, v7, 7, v6
    s_lshl_b32 s42, s3, 13
    v_add_u32 v6, s42, v6
    v_lshlrev_b32 v7, 4, v2
    v_add_u32 v7, s42, v7
    v_lshrrev_b32 v9, 5, v2
    v_mul_u32_u24 v9, 3072, v9
    v_and_b32 v10, 31, v2
    v_lshl_add_u32 v9, v10, 4, v9
    s_waitcnt vmcnt(0)
    """)
    transpose8x8(a, 16, 64, 40, 41)
    for i in range(8): a.I(f"ds_write_b128 v6, v[{64+4*i}:{67+4*i}] offset:{16*i}")
    a.I("s_waitcnt lgkmcnt(0)")
    for f in range(8): a.I(f"ds_read_b128 v[{64+4*f}:{67+4*f}], v7 offset:{1024*f}")
    a.I("s_waitcnt lgkmcnt(0)")
    for f in range(8):
        a.I(f"buffer_store_dwordx4 v[{64+4*f}:{67+4*f}], v9, s[8:11], s36 offen")
        a.I(f"s_add_u32 s36, s36, {6144 if f != 3 else 98304 - 3*6144}")
    Pq = Prof(a, 6); Pq.n = 1; Pq.flush()
    a.I("s_endpgm")
    a.T("K0_WO:"); a.reset()
    srd(a, 12, 20, 512*1024)
    a.I("s_sub_u32 s33, s2, 304\ns_lshl_b32 s33, s33, 2\ns_add_u32 s33, s33, s3")
    a.I("v_lshlrev_b32 v8, 4, v2")
    chained_addr(a, 33, 16); chained_loads(a, 16, 12)
    chained_store(a, 16, 64, WO, 32768, 999)
    a.I("s_endpgm")
    a.T("K0_W2:"); a.reset()
    srd(a, 12, 22, 1376*1024)
    a.I("s_sub_u32 s33, s2, 406\ns_lshl_b32 s33, s33, 2\ns_add_u32 s33, s33, s3\nv_lshlrev_b32 v8, 4, v2")
    chained_addr(a, 33, 16); chained_loads(a, 16, 12)
    chained_store(a, 16, 64, W2, 88064, 21)
    a.I("s_endpgm")
    a.T("K0_W13:"); a.reset()
    a.I(f"""
    s_sub_u32 s54, s2, 320
    s_and_b32 s53, s54, 1
    s_lshr_b32 s54, s54, 1
    v_lshlrev_b32 v8, 4, v2
    v_lshrrev_b32 v14, 3, v2
    v_bfe_u32 v4, v2, 2, 1
    v_and_b32 v5, 3, v2
    s_lshl_b32 s42, s3, 3
    v_add_u32 v13, s42, v14
    v_lshlrev_b32 v15, 4, v13
    v_lshl_add_u32 v15, v4, 2, v15
    s_mov_b32 s42, 2752
    v_mul_lo_u32 v7, v15, s42
    v_lshl_add_u32 v7, v5, 4, v7
    s_lshl_b32 s42, s54, 6
    s_cmp_eq_u32 s53, 1
    s_cselect_b32 s24, s26, s24
    s_cselect_b32 s25, s27, s25
    """)
    srd(a, 16, 24, 512*2752)
    for j in range(8):
        row = (j % 4) + 8*(j // 4)
        a.I(f"v_add_u32 v9, {row*2752}, v7\nbuffer_load_dwordx4 v[{16+4*j}:{19+4*j}], v9, s[16:19], s42 offen")
    a.I(f"""
    v_lshlrev_b32 v6, 10, v14
    v_lshl_add_u32 v6, v4, 9, v6
    v_lshl_add_u32 v6, v5, 7, v6
    s_lshl_b32 s42, s3, 13
    v_add_u32 v6, s42, v6
    v_add_u32 v7, s42, v8
    s_mul_i32 s38, s54, 43691
    s_lshr_b32 s38, s38, 17
    s_mul_i32 s39, s38, 3
    s_sub_u32 s39, s54, s39
    s_lshl_b32 s39, s39, 1
    s_add_u32 s39, s39, s53
    s_lshl_b32 s39, s39, 10
    s_mul_i32 s38, s38, 196608
    s_add_u32 s38, s38, s39
    s_mul_i32 s39, s3, {8*6144}
    s_add_u32 s38, s38, s39
    s_add_u32 s38, s38, {W13}
    s_waitcnt vmcnt(0)
    """)
    transpose8x8(a, 16, 64, 40, 41)
    for i in range(8): a.I(f"ds_write_b128 v6, v[{64+4*i}:{67+4*i}] offset:{16*i}")
    a.I("s_waitcnt lgkmcnt(0)")
    for f in range(8): a.I(f"ds_read_b128 v[{64+4*f}:{67+4*f}], v7 offset:{1024*f}")
    a.I("s_waitcnt lgkmcnt(0)")
    for f in range(8):
        a.I(f"buffer_store_dwordx4 v[{64+4*f}:{67+4*f}], v8, s[8:11], s38 offen\ns_add_u32 s38, s38, 6144")
    a.T("K0_END:")
    a.I("s_endpgm")

def wg_map(a, mode):
    if mode == "r4c2":
        a.I("""
        s_bfe_u32 s33, s2, 0x20001
        s_lshl_b32 s33, s33, 2
        s_bfe_u32 s34, s2, 0x20003
        s_add_u32 s33, s33, s34
        s_and_b32 s34, s2, 1
        s_lshl_b32 s34, s34, 3
        s_lshr_b32 s35, s2, 5
        s_add_u32 s34, s34, s35
        """)
    elif mode == "r2c4":
        a.I("""
        s_bfe_u32 s33, s2, 0x10002
        s_lshl_b32 s33, s33, 3
        s_bfe_u32 s34, s2, 0x30003
        s_add_u32 s33, s33, s34
        s_and_b32 s34, s2, 3
        s_lshl_b32 s34, s34, 2
        s_lshr_b32 s35, s2, 6
        s_add_u32 s34, s34, s35
        """)
    elif mode == "sq":
        a.I("""
        s_bfe_u32 s33, s2, 0x20001
        s_lshl_b32 s33, s33, 3
        s_bfe_u32 s34, s2, 0x30003
        s_add_u32 s33, s33, s34
        s_and_b32 s34, s2, 1
        s_lshl_b32 s34, s34, 2
        s_lshr_b32 s35, s2, 6
        s_add_u32 s34, s34, s35
        """)

SC = " sc1"
def signal(a, soff):
    a.I(f"""
    s_waitcnt vmcnt(0)
    v_mov_b32 v0, 0
    v_mov_b32 v1, 1
    s_mov_b64 exec, 1
    buffer_atomic_add v1, v0, s[8:11], {soff} offen sc1
    s_mov_b64 exec, -1
    """)
    a.vmq = []
def poll(a, label, soff, target):
    a.I("v_mov_b32 v0, 0\ns_mov_b32 s31, 0")
    a.T(f"{label}:")
    a.I(f"""
    buffer_load_dword v1, v0, s[8:11], {soff} offen sc1
    s_waitcnt vmcnt(0)
    v_readfirstlane_b32 s30, v1
    s_add_u32 s31, s31, 1
    s_cmp_ge_u32 s30, {target}
    s_cbranch_scc1 {label}_OK
    s_cmp_ge_u32 s31, 0x100000
    s_cbranch_scc1 {label}_OK
    s_sleep 1
    s_branch {label}
    """)
    a.T(f"{label}_OK:")
    a.vmq = []
def modvec_loads(a, row, base, soff_tmp, ct_s, vaddr):
    for ks in range(4):
        a.I(f"s_lshl_b32 {soff_tmp}, {ct_s}, 7\ns_add_u32 {soff_tmp}, {soff_tmp}, {MODP + ks*12288 + row*2048}")
        for aa in range(4):
            a.VM(f"buffer_load_dwordx4 v[{base+16*ks+4*aa}:{base+16*ks+4*aa+3}], {vaddr}, s[8:11], {soff_tmp} offen offset:{32*aa}", "mv")
def modvec_sum(a, base, dst, plus1):
    for r in range(16):
        a.I(f"v_add_f32 v{base+r}, v{base+r}, v{base+16+r}\nv_add_f32 v{base+32+r}, v{base+32+r}, v{base+48+r}\nv_add_f32 v{dst+r}, v{base+r}, v{base+32+r}")
    for r in range(0, 16, 2):
        a.I(f"v_cvt_pk_bf16_f32 v1, v{dst+r}, v{dst+r+1}\nv_lshlrev_b32 v{dst+r}, 16, v1\nv_and_b32 v{dst+r+1}, 0xffff0000, v1")
    if plus1:
        for r in range(16): a.I(f"v_add_f32 v{dst+r}, 1.0, v{dst+r}")
        for r in range(0, 16, 2):
            a.I(f"v_cvt_pk_bf16_f32 v1, v{dst+r}, v{dst+r+1}\nv_lshlrev_b32 v{dst+r}, 16, v1\nv_and_b32 v{dst+r+1}, 0xffff0000, v1")

def gen_main(a):
    TAB, HBL, KT, VT = 98304, 102400, 131072, 140288
    UTT, UTZ = 131072, 147456
    header(a, "km_kernel")
    P = Prof(a, 1); P.stamp()
    a.I(f"""
    s_cmp_ge_u32 s2, 256
    s_cbranch_scc1 KM_END
    s_load_dwordx2 s[4:5], s[0:1], {A_WS}
    s_load_dwordx2 s[6:7], s[0:1], {A_X}
    s_load_dwordx2 s[20:21], s[0:1], {A_OUT}
    v_lshrrev_b32 v1, 6, v0
    v_and_b32 v2, 63, v0
    v_readfirstlane_b32 s3, v1
    v_lshlrev_b32 v8, 4, v2
    """)
    wg_map(a, "r4c2")
    a.I(f"""
    s_and_b32 s50, s3, 3
    s_lshl_b32 s36, s33, 2
    s_add_u32 s36, s36, s50
    s_waitcnt lgkmcnt(0)
    """)
    srd(a, 8, 4, WS_BYTES); srd(a, 12, 6, 2048*1024); srd(a, 16, 20, 2048*1024)
    a.I("s_cmp_ge_u32 s3, 4\ns_cbranch_scc1 KM_LOADER")
    MT = 16
    def modulate(base, tb):
        ins = []
        for d in range(4): ins += [f"v_lshlrev_b32 v{MT+2*d}, 16, v{base+d}", f"v_and_b32 v{MT+2*d+1}, 0xffff0000, v{base+d}"]
        for j in range(8): ins.append(f"v_fma_f32 v{MT+j}, v{MT+j}, v{tb+j}, v{tb+8+j}")
        for d in range(4): ins.append(f"v_cvt_pk_bf16_f32 v{base+d}, v{MT+2*d}, v{MT+2*d+1}")
        return ins
    def gen_ut():
        a.I(f"""
        s_lshl_b32 s53, s33, 3
        s_add_u32 s53, s53, s3
        s_cmp_ge_u32 s53, 86
        s_cbranch_scc1 UT_DONE
        s_and_b32 s51, s53, 1
        s_lshr_b32 s53, s53, 1
        v_lshlrev_b32 v3, 5, v2
        s_mul_i32 s38, s53, 43691
        s_lshr_b32 s38, s38, 17
        s_mul_i32 s39, s38, 3
        s_sub_u32 s39, s53, s39
        s_lshl_b32 s39, s39, 1
        s_add_u32 s39, s39, s51
        s_lshl_b32 s39, s39, 10
        s_mul_i32 s38, s38, 196608
        s_add_u32 s38, s38, s39
        s_add_u32 s38, s38, {W13}
        """)
        for ks in range(4):
            a.I(f"s_mov_b32 s43, {MODP + ks*12288 + 3*2048}")
            for q in range(4):
                a.I(f"buffer_load_dwordx4 v[{16+16*ks+4*q}:{19+16*ks+4*q}], v3, s[8:11], s43 offen offset:{(q//2)*2048 + (q%2)*16}")
        for t in range(32):
            a.I(f"buffer_load_dwordx4 v[{128+4*t}:{131+4*t}], v8, s[8:11], s38 offen\ns_add_u32 s38, s38, 6144")
        a.I(f"""
        s_lshl_b32 s43, s3, 11
        s_add_u32 s43, s43, {UTT}
        v_add_u32 v4, s43, v8
        v_mov_b32 v80, 0
        v_mov_b32 v81, 0
        v_mov_b32 v82, 0
        v_mov_b32 v83, 0
        v_add_u32 v5, {UTZ}, v8
        ds_write_b128 v5, v[80:83]
        s_waitcnt vmcnt(32)
        """)
        for r in range(16):
            a.I(f"v_add_f32 v{16+r}, v{16+r}, v{32+r}\nv_add_f32 v{48+r}, v{48+r}, v{64+r}\nv_add_f32 v{16+r}, v{16+r}, v{48+r}")
        for d in range(4): a.I(f"v_cvt_pk_bf16_f32 v{84+d}, v{16+2*d}, v{17+2*d}")
        for d in range(4):
            a.I(f"v_cvt_pk_bf16_f32 v1, v{24+2*d}, v{25+2*d}\nv_lshlrev_b32 v{24+2*d}, 16, v1\nv_and_b32 v{25+2*d}, 0xffff0000, v1\nv_add_f32 v{24+2*d}, 1.0, v{24+2*d}\nv_add_f32 v{25+2*d}, 1.0, v{25+2*d}\nv_cvt_pk_bf16_f32 v{88+d}, v{24+2*d}, v{25+2*d}")
        a.I(f"""
        ds_write_b128 v4, v[88:91]
        ds_write_b128 v4, v[84:87] offset:1024
        v_and_b32 v3, 31, v2
        v_lshrrev_b32 v6, 5, v2
        v_lshlrev_b32 v7, 10, v3
        v_add_u32 v7, s43, v7
        v_mov_b32 v5, {UTZ}
        v_cmp_gt_u32 vcc, 2, v3
        v_cndmask_b32 v7, v5, v7, vcc
        v_lshl_add_u32 v7, v6, 3, v7
        s_waitcnt lgkmcnt(0)
        """)
        for t in range(32):
            r = 16 + 4*(t % 8)
            a.I(f"ds_read_b64 v[{r}:{r+1}], v7 offset:{32*t}\nds_read_b64 v[{r+2}:{r+3}], v7 offset:{32*t+16}")
            if t % 8 == 7:
                a.I(f"s_waitcnt vmcnt({31-t}) lgkmcnt(0)")
                for tt in range(t-7, t+1):
                    cin = "0" if tt == 0 else "v[48:63]"
                    a.I(f"v_mfma_f32_32x32x16_bf16 v[48:63], v[{128+4*tt}:{131+4*tt}], v[{16+4*(tt%8)}:{19+4*(tt%8)}], {cin}")
                a.I("s_nop 7")
        a.I(f"""
        v_mul_u32_u24 v4, {1408*4}, v3
        v_lshl_add_u32 v4, v6, 4, v4
        v_mov_b32 v5, 0x7ff00000
        v_cndmask_b32 v4, v5, v4, vcc
        s_mul_i32 s38, s51, {2*1408*4}
        s_lshl_b32 s39, s53, 7
        s_add_u32 s38, s38, s39
        s_add_u32 s38, s38, {UT}
        s_nop 7
        """)
        for aa in range(4):
            a.I(f"buffer_store_dwordx4 v[{48+4*aa}:{51+4*aa}], v4, s[8:11], s38 offen offset:{32*aa}{SC}")
        a.I(f"s_mul_i32 s38, s53, 43691\ns_lshr_b32 s38, s38, 17\ns_lshl_b32 s38, s38, 8\ns_add_u32 s38, s38, {CNTU}")
        signal(a, "s38")
        a.T("UT_DONE:")
    AF, TB, XB, ACC = 32, 80, 112, 144
    a.I("v_lshlrev_b32 v3, 3, v0")
    for ks in range(4):
        a.I(f"s_mov_b32 s35, {MODP + ks*12288}")
        a.I(f"buffer_load_dwordx2 v[{16+2*ks}:{17+2*ks}], v3, s[8:11], s35 offen")
        a.I(f"buffer_load_dwordx2 v[{24+2*ks}:{25+2*ks}], v3, s[8:11], s35 offen offset:2048")
    a.I(f"s_lshl_b32 s37, s36, 15\ns_add_u32 s37, s37, {XN}")
    def bload(i):
        a.I(f"buffer_load_dwordx4 v[{XB+4*i}:{XB+4*i+3}], v8, s[8:11], s37 offen offset:{1024*(i%4)}")
        if i % 4 == 3: a.I("s_add_u32 s37, s37, 4096")
    for i in range(8): bload(i)
    a.I(f"""
    v_lshrrev_b32 v4, 6, v0
    v_bfe_u32 v5, v0, 2, 3
    v_lshl_add_u32 v4, v4, 3, v5
    v_bfe_u32 v5, v0, 5, 1
    v_lshl_add_u32 v4, v4, 1, v5
    v_and_b32 v5, 3, v0
    v_lshlrev_b32 v4, 5, v4
    v_lshl_add_u32 v4, v5, 3, v4
    v_add_u32 v4, {TAB}, v4
    v_lshrrev_b32 v5, 5, v2
    v_lshlrev_b32 v10, 5, v5
    v_add_u32 v10, {TAB}, v10
    v_mov_b32 v9, v8
    s_mov_b32 s41, 0
    """)
    for i in range(48): a.I(f"v_mov_b32 v{ACC+i}, 0")
    a.I("s_waitcnt vmcnt(8)")
    for o in (16, 24):
        for e in range(2):
            r = o+e
            a.I(f"v_add_f32 v{r}, v{r}, v{r+2}\nv_add_f32 v{r+4}, v{r+4}, v{r+6}\nv_add_f32 v{r}, v{r}, v{r+4}")
            round_bf16(a, r, r)
    for e in range(2):
        a.I(f"v_add_f32 v{24+e}, 1.0, v{24+e}"); round_bf16(a, 24+e, 24+e)
    a.I("ds_write_b64 v4, v[24:25]\nds_write_b64 v4, v[16:17] offset:2048\ns_waitcnt lgkmcnt(0)\ns_barrier")
    P.stamp()
    def reads(i):
        tb = TB + 16*(i % 2)
        for q in range(4): a.I(f"ds_read_b128 v[{tb+4*q}:{tb+4*q+3}], v10 offset:{(q//2)*2048 + i*64 + (q%2)*16}")
        for ty in range(3): a.I(f"ds_read_b128 v[{AF+12*(i%4)+4*ty}:{AF+12*(i%4)+4*ty+3}], v9 offset:{i*3072 + ty*1024}")
    reads(0); reads(1)
    a.I("s_waitcnt vmcnt(7) lgkmcnt(10)")
    for x in modulate(XB, TB): a.I(x)
    def loop(tag, pos):
        a.T(f"P1_LOOP{tag}:")
        for i in range(8):
            if (i + 2) % 4 == 0: a.I("s_barrier")
            if pos < 0:
                reads(i+2); a.I("s_waitcnt vmcnt(6) lgkmcnt(10)")
            else:
                a.I("s_waitcnt vmcnt(6) lgkmcnt(3)")
            fill = modulate(XB+4*((i+1) % 8), TB + 16*((i+1) % 2))
            nf = (len(fill)+2)//3
            for ty in range(3):
                a.I(f"v_mfma_f32_32x32x16_bf16 v[{ACC+16*ty}:{ACC+16*ty+15}], v[{AF+12*(i%4)+4*ty}:{AF+12*(i%4)+4*ty+3}], v[{XB+4*i}:{XB+4*i+3}], v[{ACC+16*ty}:{ACC+16*ty+15}]")
                for x in fill[nf*ty:nf*ty+nf]: a.I(x)
                if pos == ty: reads(i+2)
            bload(i)
        a.I(f"""
        v_add_u32 v9, 24576, v9
        v_add_u32 v10, 512, v10
        s_add_u32 s41, s41, 1
        s_cmp_eq_u32 s41, 3
        s_cselect_b32 s37, 0x7ff00000, s37
        s_cmp_lt_u32 s41, 4
        s_cbranch_scc1 P1_LOOP{tag}
        """)
    a.I("s_and_b32 s35, s3, 1\ns_cmp_lg_u32 s35, 0\ns_cbranch_scc1 P1_LOOPB")
    loop("A", -1)
    a.I("s_branch P1_LOOPE")
    loop("B", 1)
    a.T("P1_LOOPE:")
    a.I("s_waitcnt vmcnt(0) lgkmcnt(0)\ns_nop 7")
    P.stamp()
    a.I("s_barrier")
    QP, KP = 116, 24
    a.I(f"""
    v_and_b32 v3, 31, v2
    v_lshrrev_b32 v4, 5, v2
    s_lshl_b32 s35, s3, 5
    v_add_u32 v5, s35, v3
    v_add_u32 v5, 16, v5
    v_mul_u32_u24 v6, {144*16}, v4
    v_lshl_add_u32 v15, v5, 4, v6
    v_add_u32 v15, {KT}, v15
    v_mul_u32_u24 v6, {2*144*16}, v4
    v_lshl_add_u32 v7, v5, 4, v6
    v_add_u32 v7, {VT}, v7
    """)
    for d in range(8): a.I(f"v_cvt_pk_bf16_f32 v{KP+d}, v{ACC+16+2*d}, v{ACC+17+2*d}")
    for d in range(8):
        a.I(f"v_cvt_pk_bf16_f32 v9, v{ACC+32+2*d}, v{ACC+33+2*d}\nv_lshlrev_b32 v{ACC+32+2*d}, 16, v9\nv_and_b32 v{ACC+33+2*d}, 0xffff0000, v9")
    V0 = ACC+32
    for x in [f"ds_write_b128 v15, v[{KP}:{KP+3}]", f"ds_write_b128 v15, v[{KP+4}:{KP+7}] offset:{2*144*16}",
              f"ds_write_b128 v7, v[{V0}:{V0+3}]", f"ds_write_b128 v7, v[{V0+4}:{V0+7}] offset:{144*16}",
              f"ds_write_b128 v7, v[{V0+8}:{V0+11}] offset:{4*144*16}", f"ds_write_b128 v7, v[{V0+12}:{V0+15}] offset:{5*144*16}"]:
        a.I(x)
    for d in range(8): a.I(f"v_cvt_pk_bf16_f32 v{QP+d}, v{ACC+2*d}, v{ACC+1+2*d}")
    a.I("v_subrev_u32 v15, 224, v15\nv_subrev_u32 v7, 224, v7\ns_waitcnt lgkmcnt(0)\ns_barrier")
    a.reset()
    for e in range(2):
        for w in range(8):
            a.DS(f"ds_read_b128 v[{32+(e*8+w)*4}:{35+(e*8+w)*4}], v15 offset:{e*2*144*16 + (7-w)*32}", f"k{e}{w//4}")
    VB, LG = 128, 96
    def vread(e, w):
        for aa in range(2):
            r = VB + ((e*8+w)*2+aa)*4
            a.DS(f"ds_read_b128 v[{r}:{r+3}], v7 offset:{e*4*144*16 + aa*144*16 + (7-w)*32}", f"v{e}{w//2}")
    for e in range(2):
        for w in range(8):
            if w % 4 == 0: a.WAIT(ds=f"k{e}{w//4}")
            kb = 32+(e*8+w)*4
            a.I(f"v_dot2_f32_bf16 v{LG+e*8+w}, v{QP+4*e}, v{kb}, 0")
            for d in range(1, 4):
                a.I(f"v_dot2_f32_bf16 v{LG+e*8+w}, v{QP+4*e+d}, v{kb+d}, v{LG+e*8+w}")
            vread(e, w)
    for w in range(8): a.I(f"v_permlane32_swap_b32 v{LG+w}, v{LG+8+w}")
    for w in range(8): a.I(f"v_add_f32 v{LG+w}, v{LG+w}, v{LG+8+w}")
    for w in range(0, 8, 2):
        a.I(f"v_cvt_pk_bf16_f32 v5, v{LG+w}, v{LG+w+1}\nv_lshlrev_b32 v{LG+w}, 16, v5\nv_and_b32 v{LG+w+1}, 0xffff0000, v5")
    a.I(f"s_mov_b32 s35, 0x3eb8aa3b\ns_cmp_lg_u32 s36, 0\ns_cbranch_scc1 P1_NOMASK\nv_and_b32 v3, 31, v2\nv_mov_b32 v4, 0xcf6e6b28")
    for w in range(1, 8):
        a.I(f"v_cmp_le_u32 vcc, {2*w}, v3\nv_cndmask_b32 v{LG+w}, v4, v{LG+w}, vcc")
    a.T("P1_NOMASK:")
    a.I(f"v_max3_f32 v5, v{LG}, v{LG+1}, v{LG+2}\nv_max3_f32 v6, v{LG+3}, v{LG+4}, v{LG+5}\nv_max3_f32 v5, v5, v{LG+6}, v{LG+7}\nv_max_f32 v5, v5, v6")
    for w in range(8): a.I(f"v_sub_f32 v{LG+w}, v{LG+w}, v5")
    for w in range(8): a.I(f"v_mul_f32 v{LG+w}, s35, v{LG+w}")
    for w in range(8): a.I(f"v_exp_f32 v{LG+w}, v{LG+w}")
    a.I(f"v_add_f32 v5, v{LG}, v{LG+1}\nv_add_f32 v6, v{LG+2}, v{LG+3}\nv_add_f32 v9, v{LG+4}, v{LG+5}\nv_add_f32 v10, v{LG+6}, v{LG+7}\nv_add_f32 v5, v5, v6\nv_add_f32 v9, v9, v10\nv_add_f32 v6, v5, v9\nv_rcp_f32 v6, v6")
    for w in range(8): a.I(f"v_mul_f32 v{LG+w}, v{LG+w}, v6")
    for w in range(0, 8, 2):
        a.I(f"v_cvt_pk_bf16_f32 v5, v{LG+w}, v{LG+w+1}\nv_lshlrev_b32 v{LG+w}, 16, v5\nv_and_b32 v{LG+w+1}, 0xffff0000, v5")
    for w in range(8): a.I(f"v_mov_b32 v{LG+8+w}, v{LG+w}")
    for w in range(8): a.I(f"v_permlane32_swap_b32 v{LG+w}, v{LG+8+w}")
    OA = 16
    a.I(f"s_lshl_b32 s37, s36, 15\ns_lshl_b32 s38, s34, 11\ns_add_u32 s37, s37, s38\ns_add_u32 s37, s37, {OO}")
    for e in range(2):
        for w in range(8):
            if w % 2 == 0: a.WAIT(ds=f"v{e}{w//2}")
            for q in range(8):
                r = VB + (e*8+w)*8 + q
                a.I(f"v_mul_f32 v{OA+q}, v{LG+8*e+w}, v{r}" if w == 0 else f"v_fmac_f32 v{OA+q}, v{LG+8*e+w}, v{r}")
        for d in range(4): a.I(f"v_cvt_pk_bf16_f32 v{32+4*e+d}, v{OA+2*d}, v{OA+2*d+1}")
        a.I(f"buffer_store_dwordx4 v[{32+4*e}:{35+4*e}], v8, s[8:11], s37 offen offset:{1024*e}{SC}")
    a.I(f"s_lshl_b32 s38, s36, 8\ns_add_u32 s38, s38, {CNT}")
    signal(a, "s38")
    P.stamp()
    def proj_compute(which):
        nt = 32 if which == 2 else 86
        wg_map(a, "sq")
        a.I(f"""
        s_and_b32 s51, s3, 1
        s_lshr_b32 s52, s3, 1
        s_lshl_b32 s36, s33, 1
        s_add_u32 s36, s36, s51         ; mb
        s_lshl_b32 s35, s34, 1
        s_add_u32 s35, s35, s52         ; ct
        v_and_b32 v3, 31, v2
        v_lshrrev_b32 v4, 5, v2
        v_lshlrev_b32 v5, 4, v4
        s_lshl_b32 s41, s36, 15
        s_lshl_b32 s42, s35, 6
        s_add_u32 s41, s41, s42
        v_lshlrev_b32 v6, 10, v3
        v_lshl_add_u32 v6, v4, 3, v6
        s_lshl_b32 s42, s36, 15
        s_lshl_b32 s44, s35, 11
        s_add_u32 s42, s42, s44
        s_add_u32 s42, s42, {X1}
        """)
        a.reset()
        modvec_loads(a, 2 if which == 2 else 5, 128, "s43", "s35", "v5")
        if which == 2:
            modvec_loads(a, 4, 192, "s43", "s35", "v5")
            for aa in range(4):
                a.VM(f"buffer_load_dwordx2 v[{32+2*aa}:{33+2*aa}], v6, s[12:15], s41 offen offset:{16*aa}", "mv")
            a.I("""
            s_lshl_b32 s44, s52, 15
            v_add_u32 v10, s44, v8
            s_lshl_b32 s44, s51, 15
            s_add_u32 s44, s44, 65536
            v_add_u32 v9, s44, v8
            """)
        else:
            a.I("""
            s_lshl_b32 s44, s51, 13
            v_add_u32 v9, s44, v8
            s_lshl_b32 s44, s52, 13
            s_add_u32 s44, s44, 16384
            v_add_u32 v10, s44, v8
            v_add_u32 v11, 65536, v9
            v_add_u32 v12, 65536, v10
            """)
        a.WAIT(vm="mv")
        modvec_sum(a, 128, 16, False)
        if which == 2: modvec_sum(a, 192, 112, True)
        FR = 64
        def fread(t):
            if which == 2:
                rb, ra, off = "v9", "v10", t*1024
            else:
                off = ((t//8) % 4)*32768 + (t % 8)*1024
                rb, ra = [("v9", "v10"), ("v11", "v12")][off // 65536]; off %= 65536
            st = FR + 8*(t % 4)
            a.DS(f"ds_read_b128 v[{st}:{st+3}], {ra} offset:{off}", f"f{t}")
            a.DS(f"ds_read_b128 v[{st+4}:{st+7}], {rb} offset:{off}", f"f{t}")
        a.I("s_barrier")
        P.stamp()
        if which == 4:
            a.VM(f"buffer_load_dwordx4 v[32:35], v8, s[8:11], s42 offen{SC}", "e")
            a.VM(f"buffer_load_dwordx4 v[36:39], v8, s[8:11], s42 offen offset:1024{SC}", "e")
        for t in range(3): fread(t)
        for t in range(nt):
            if t + 3 < nt:
                if (t+3) % 8 == 0: a.I("s_barrier")
                fread(t+3)
            a.WAIT(ds=f"f{t}")
            st = FR + 8*(t % 4)
            cin = "0" if t == 0 else "v[48:63]"
            a.I(f"v_mfma_f32_32x32x16_bf16 v[48:63], v[{st}:{st+3}], v[{st+4}:{st+7}], {cin}")
            if t == nt - 6:
                a.WAIT(vm="e")
                for d in range(8):
                    a.I(f"v_lshlrev_b32 v{96+2*d}, 16, v{32+d}\nv_and_b32 v{97+2*d}, 0xffff0000, v{32+d}")
        if which == 2: a.I("s_barrier")
        P.stamp()
        for r in range(16): a.I(f"v_fmac_f32 v{96+r}, v{48+r}, v{16+r}")
        for d in range(8): a.I(f"v_cvt_pk_bf16_f32 v{84+d}, v{96+2*d}, v{97+2*d}")
        if which == 2:
            for d in range(8):
                a.I(f"v_lshlrev_b32 v{96+2*d}, 16, v{84+d}\nv_and_b32 v{97+2*d}, 0xffff0000, v{84+d}")
            for r in range(16): a.I(f"v_mul_f32 v{112+r}, v{112+r}, v{96+r}")
            for d in range(8): a.I(f"v_cvt_pk_bf16_f32 v{64+d}, v{112+2*d}, v{113+2*d}")
            a.I(f"""
            s_add_u32 s43, s42, {YY - X1}
            buffer_store_dwordx4 v[64:67], v8, s[8:11], s43 offen{SC}
            buffer_store_dwordx4 v[68:71], v8, s[8:11], s43 offen offset:1024{SC}
            v_add_f32 v92, v96, v97
            v_add_f32 v94, v98, v99
            v_mul_f32 v93, v96, v96
            v_mul_f32 v95, v97, v97
            v_fmac_f32 v93, v98, v98
            v_fmac_f32 v95, v99, v99
            """)
            for r in range(4, 16, 2):
                a.I(f"v_add_f32 v92, v92, v{96+r}\nv_add_f32 v94, v94, v{97+r}\nv_fmac_f32 v93, v{96+r}, v{96+r}\nv_fmac_f32 v95, v{97+r}, v{97+r}")
            a.I(f"""
            v_add_f32 v92, v92, v94
            v_add_f32 v93, v93, v95
            v_mov_b32 v94, v92
            v_mov_b32 v95, v93
            v_permlane32_swap_b32 v92, v94
            v_permlane32_swap_b32 v93, v95
            v_add_f32 v92, v92, v94
            v_add_f32 v93, v93, v95
            v_lshlrev_b32 v7, 7, v3
            s_lshl_b32 s44, s36, 12
            s_lshl_b32 s43, s35, 3
            s_add_u32 s44, s44, s43
            s_add_u32 s44, s44, {ST}
            buffer_store_dwordx2 v[92:93], v7, s[8:11], s44 offen{SC}
            buffer_store_dwordx4 v[84:87], v8, s[8:11], s42 offen{SC}
            buffer_store_dwordx4 v[88:91], v8, s[8:11], s42 offen offset:1024{SC}
            s_lshl_b32 s38, s36, 8
            s_add_u32 s38, s38, {CNT + 0x4000}
            """)
            signal(a, "s38")
        else:
            a.I("""
            v_permlane32_swap_b32 v84, v86
            v_permlane32_swap_b32 v85, v87
            v_permlane32_swap_b32 v88, v90
            v_permlane32_swap_b32 v89, v91
            v_lshlrev_b32 v6, 10, v3
            v_lshl_add_u32 v6, v4, 4, v6
            buffer_store_dwordx4 v[84:87], v6, s[16:19], s41 offen
            buffer_store_dwordx4 v[88:91], v6, s[16:19], s41 offen offset:32
            """)
        P.stamp()
    proj_compute(2)
    wg_map(a, "r2c4")
    a.I(f"""
    s_cmp_ge_u32 s34, 15
    s_cbranch_scc1 UT_GO
    s_lshl_b32 s36, s33, 2
    s_add_u32 s36, s36, s50
    v_and_b32 v3, 31, v2
    v_lshrrev_b32 v4, 5, v2
    v_mov_b32 v9, v8
    v_add_u32 v11, 49152, v9
    v_lshlrev_b32 v5, 4, v4
    v_add_u32 v5, 147456, v5
    v_lshlrev_b32 v6, 7, v3
    v_lshl_add_u32 v6, v4, 6, v6
    s_lshl_b32 s41, s36, 12
    s_add_u32 s41, s41, {ST}
    s_lshl_b32 s37, s36, 15
    s_add_u32 s37, s37, {YY}
    s_mul_i32 s44, s36, {86*1024}
    s_mul_i32 s43, s34, {6*1024}
    s_add_u32 s44, s44, s43
    s_add_u32 s44, s44, {HH}
    s_mov_b32 s45, {LOG2E}
    s_mov_b32 s46, 49152
    s_mov_b32 s47, 0
    s_mov_b32 s48, {-49152 & 0xffffffff}
    s_lshl_b32 s38, s36, 8
    s_add_u32 s38, s38, {CNT + 0x4000}
    """)
    AF3, BB, AC3 = 16, 112, 160
    for i in range(96): a.I(f"v_mov_b32 v{AC3+i}, 0")
    poll(a, "C_PL3", "s38", 16)
    P.stamp()
    for q in range(4):
        a.I(f"buffer_load_dwordx4 v[{144+4*q}:{147+4*q}], v6, s[8:11], s41 offen offset:{16*q}{SC}")
    def bload3(i):
        a.I(f"buffer_load_dwordx4 v[{BB+4*i}:{BB+4*i+3}], v8, s[8:11], s37 offen offset:{1024*(i%4)}{SC}")
        if i % 4 == 3: a.I("s_add_u32 s37, s37, 4096")
    for i in range(8): bload3(i)
    def fread3(i, lo, hi):
        ra = "v11" if i >= 8 else "v9"
        for f in range(lo, hi):
            a.I(f"ds_read_b128 v[{AF3+24*(i%4)+4*f}:{AF3+24*(i%4)+4*f+3}], {ra} offset:{(i%8)*6144 + 1024*f}")
    a.I("s_barrier")
    fread3(0, 0, 6); fread3(1, 0, 6)
    a.T("P3_LOOP:")
    for i in range(8):
        if i % 2 == 0: a.I("s_barrier")
        for hf in range(2):
            fread3(i+2, 3*hf, 3*hf+3)
            a.I("s_waitcnt vmcnt(7) lgkmcnt(12)" if hf == 0 else "s_waitcnt lgkmcnt(12)")
            for f in range(3*hf, 3*hf+3):
                a.I(f"v_mfma_f32_32x32x16_bf16 v[{AC3+16*f}:{AC3+16*f+15}], v[{AF3+24*(i%4)+4*f}:{AF3+24*(i%4)+4*f+3}], v[{BB+4*i}:{BB+4*i+3}], v[{AC3+16*f}:{AC3+16*f+15}]")
        bload3(i)
    a.I(f"""
    v_mov_b32 v9, v11
    s_add_u32 s46, s46, 49152
    s_cmp_eq_u32 s46, 147456
    s_cselect_b32 s49, 98304, s48
    s_cselect_b32 s46, 0, s46
    v_subrev_u32 v11, s49, v11
    s_add_u32 s47, s47, 1
    s_cmp_eq_u32 s47, 3
    s_cselect_b32 s37, 0x7ff00000, s37
    s_cmp_lt_u32 s47, 4
    s_cbranch_scc1 P3_LOOP
    s_waitcnt vmcnt(0) lgkmcnt(0)
    s_barrier
    """)
    P.stamp()
    a.reset()
    def ut_reads(p):
        for arr in range(4):
            for aa in range(4):
                r = 16 + arr*16 + 4*aa
                a.DS(f"ds_read_b128 v[{r}:{r+3}], v5 offset:{arr*384 + p*128 + aa*32}", f"u{p}_{arr//2}")
    ut_reads(0)
    for q in range(1, 8): a.I(f"v_add_f32 v144, v144, v{144+2*q}\nv_add_f32 v145, v145, v{145+2*q}")
    a.I("""
    v_mov_b32 v146, v144
    v_mov_b32 v147, v145
    v_permlane32_swap_b32 v144, v146
    v_permlane32_swap_b32 v145, v147
    v_add_f32 v144, v144, v146
    v_add_f32 v145, v145, v147
    v_mul_f32 v13, 0x3b000000, v144
    v_mul_f32 v12, 0x3b000000, v145
    v_fma_f32 v12, -v13, v13, v12
    v_max_f32 v12, 0, v12
    v_add_f32 v12, 0x3727c5ac, v12
    v_rsq_f32 v14, v12
    v_sub_f32 v15, 0, v13
    """)
    U = 16; TMP = 80
    for p in range(3):
        if p == 1: a.I("s_cmp_eq_u32 s34, 14\ns_cbranch_scc1 P3_FIN")
        for mm in range(2):
            a.WAIT(ds=f"u{p}_{mm}")
            A = AC3 + 32*p + 16*mm
            for r in range(16): a.I(f"v_fmac_f32 v{A+r}, v{U+32*mm+r}, v15")
            for r in range(16): a.I(f"v_fma_f32 v{A+r}, v{A+r}, v14, v{U+32*mm+16+r}")
        G = AC3 + 32*p
        if p < 2: ut_reads(p+1)
        for r in range(16): a.I(f"v_mul_f32 v{TMP+r}, s45, v{G+r}")
        for r in range(16): a.I(f"v_exp_f32 v{TMP+r}, -v{TMP+r}")
        for r in range(16): a.I(f"v_mul_f32 v{G+r}, v{G+r}, v{G+16+r}")
        for r in range(16): a.I(f"v_add_f32 v{TMP+r}, 1.0, v{TMP+r}")
        for r in range(16): a.I(f"v_rcp_f32 v{TMP+r}, v{TMP+r}")
        for r in range(16): a.I(f"v_mul_f32 v{G+r}, v{G+r}, v{TMP+r}")
        for d in range(8): a.I(f"v_cvt_pk_bf16_f32 v{96+8*p+d}, v{G+2*d}, v{G+2*d+1}")
        a.I(f"buffer_store_dwordx4 v[{96+8*p}:{99+8*p}], v8, s[8:11], s44 offen offset:{(p*2048)%4096}{SC}")
        a.I(f"buffer_store_dwordx4 v[{100+8*p}:{103+8*p}], v8, s[8:11], s44 offen offset:{(p*2048)%4096+1024}{SC}")
        if p == 1: a.I("s_add_u32 s44, s44, 4096")
    a.T("P3_FIN:")
    a.I(f"s_waitcnt lgkmcnt(0)\ns_lshl_b32 s38, s36, 8\ns_add_u32 s38, s38, {CNT + 0x8000}")
    signal(a, "s38")
    if PROF: a.I("s_branch C_P4X")
    a.T("C_P4:")
    if PROF:
        n = P.n; P.n = n - 2; P.stamp(); P.stamp()
        a.T("C_P4X:")
    P.stamp()
    proj_compute(4)
    P.flush()
    a.I("s_endpgm")
    a.T("KM_LOADER:"); a.reset()
    HB, HA = 100, 116
    a.I(f"""
    s_mul_i32 s39, s50, 3072
    s_mul_i32 s38, s34, 98304
    s_add_u32 s38, s38, {WQ}
    s_add_u32 s38, s38, s39
    s_mov_b32 s40, s39
    v_and_b32 v4, 15, v2
    v_lshrrev_b32 v5, 4, v2
    v_lshrrev_b32 v6, 1, v5
    v_and_b32 v7, 1, v5
    v_lshlrev_b32 v9, 10, v6
    v_lshl_add_u32 v9, v7, 9, v9
    v_lshl_add_u32 v9, v4, 4, v9
    v_add_u32 v9, 256, v9
    s_lshl_b32 s41, s33, 2
    s_sub_u32 s41, s41, 1
    s_max_i32 s41, s41, 0
    s_lshl_b32 s41, s41, 15
    s_lshl_b32 s43, s50, 11
    s_add_u32 s41, s41, s43
    s_add_u32 s41, s41, {XN}
    v_mul_u32_u24 v13, 3072, v6
    v_lshl_add_u32 v13, v7, 9, v13
    v_lshl_add_u32 v13, v4, 4, v13
    s_lshr_b32 s43, s50, 1
    s_add_u32 s43, s43, 1
    s_lshl_b32 s43, s43, 10
    s_and_b32 s44, s50, 1
    s_lshl_b32 s44, s44, 8
    s_add_u32 s43, s43, s44
    v_add_u32 v13, s43, v13
    v_add_u32 v14, 49152, v13
    v_lshlrev_b32 v12, 5, v5
    s_lshl_b32 s43, s50, 7
    v_add_u32 v12, s43, v12
    v_add_u32 v12, {TAB}, v12
    v_add_u32 v10, {HBL}, v8
    s_lshl_b32 s43, s50, 10
    v_add_u32 v11, s43, v10
    """)
    def issue1(g):
        a.I("s_mov_b32 m0, s40")
        for i in range(3): a.VM(f"buffer_load_dwordx4 v8, s[8:11], s38 offen offset:{1024*i} lds", f"w{g}")
        a.I("s_add_u32 s38, s38, 12288\ns_add_u32 s40, s40, 12288")
    issue1(0); issue1(1)
    for i in range(4):
        a.VM(f"buffer_load_dwordx4 v[{HB+4*i}:{HB+3+4*i}], v9, s[8:11], s41 offen", "h")
        a.I("s_add_u32 s41, s41, 8192")
    issue1(2); issue1(3)
    def halo(g):
        for i in range(2):
            a.DS(f"ds_read_b128 v[{64+8*i}:{67+8*i}], {'v13' if g < 4 else 'v14'} offset:{(g%4)*12288 + i*6144}", f"hh{g}")
            a.DS(f"ds_read_b128 v[{68+8*i}:{71+8*i}], v10 offset:{(2*g+i)*1024}", f"hh{g}")
        a.WAIT(ds=f"hh{g}")
        for i in range(2):
            cin = "0" if (g == 0 and i == 0) else f"v[{HA}:{HA+3}]"
            a.I(f"v_mfma_f32_16x16x32_bf16 v[{HA}:{HA+3}], v[{64+8*i}:{67+8*i}], v[{68+8*i}:{71+8*i}], {cin}")
    for g in range(8):
        a.WAIT(vm=f"w{g}", ds="hw"); a.I("s_barrier")
        if g + 4 < 8: issue1(g+4)
        if g < 4:
            for q in range(4):
                a.DS(f"ds_read_b128 v[{32+4*q}:{35+4*q}], v12 offset:{(q//2)*2048 + g*512 + (q%2)*16}", f"ht{g}")
        if g > 0: halo(g-1)
        if g < 4:
            a.WAIT(vm="h", ds=f"ht{g}")
            for x in modulate(HB+4*g, 32): a.I(x)
            a.DS(f"ds_write_b128 v11, v[{HB+4*g}:{HB+4*g+3}] offset:{g*4096}", "hw")
    a.I("s_barrier")
    halo(7)
    a.I(f"""
    v_and_b32 v3, 15, v2
    v_lshrrev_b32 v4, 4, v2
    v_and_b32 v5, 1, v4
    v_lshrrev_b32 v6, 1, v4
    s_and_b32 s35, s3, 1
    s_nop 7
    v_cvt_pk_bf16_f32 v84, v{HA}, v{HA+1}
    v_cvt_pk_bf16_f32 v85, v{HA+2}, v{HA+3}
    s_cmp_ge_u32 s50, 2
    s_cbranch_scc1 L_HV
    s_mul_i32 s35, s35, {2*144*16}
    v_mul_u32_u24 v5, {144*16}, v5
    v_lshl_add_u32 v5, v3, 4, v5
    v_lshl_add_u32 v5, v6, 3, v5
    v_add_u32 v5, s35, v5
    v_add_u32 v5, {KT}, v5
    ds_write_b64 v5, v[84:85]
    s_branch L_HD
    """)
    a.T("L_HV:")
    a.I(f"""
    v_lshlrev_b32 v80, 16, v84
    v_and_b32 v81, 0xffff0000, v84
    v_lshlrev_b32 v82, 16, v85
    v_and_b32 v83, 0xffff0000, v85
    s_mul_i32 s35, s35, {4*144*16}
    v_lshl_add_u32 v5, v5, 1, v6
    v_mul_u32_u24 v5, {144*16}, v5
    v_lshl_add_u32 v5, v3, 4, v5
    v_add_u32 v5, s35, v5
    v_add_u32 v5, {VT}, v5
    ds_write_b128 v5, v[80:83]
    """)
    a.T("L_HD:")
    a.I("s_waitcnt lgkmcnt(0)\ns_barrier\ns_barrier")
    a.reset()
    wg_map(a, "sq")
    a.I(f"""
    s_and_b32 s51, s3, 1
    s_cmp_ge_u32 s50, 2
    s_cbranch_scc1 L2_A
    s_lshl_b32 s36, s33, 1
    s_add_u32 s36, s36, s51
    s_lshl_b32 s38, s36, 15
    s_add_u32 s38, s38, {OO}
    s_lshl_b32 s40, s51, 15
    s_add_u32 s40, s40, 65536
    s_lshl_b32 s43, s36, 8
    s_add_u32 s43, s43, {CNT}
    """)
    poll(a, "L_PL2", "s43", 16)
    def stream(n4, sc, tag):
        for q in range(n4):
            a.I("s_mov_b32 m0, s40")
            for i in range(4): a.VM(f"buffer_load_dwordx4 v8, s[8:11], s38 offen offset:{1024*i}{sc} lds", f"{tag}{q//2}")
            a.I("s_add_u32 s38, s38, 4096\ns_add_u32 s40, s40, 4096")
    stream(8, SC, "c")
    for g in range(4):
        a.WAIT(vm=f"c{g}"); a.I("s_barrier")
    a.I("s_branch L2_E")
    a.T("L2_A:"); a.reset()
    a.I(f"""
    s_lshl_b32 s38, s34, 1
    s_add_u32 s38, s38, s51
    s_lshl_b32 s38, s38, 15
    s_add_u32 s38, s38, {WO}
    s_lshl_b32 s40, s51, 15
    """)
    stream(8, "", "c")
    a.I("s_waitcnt vmcnt(0)\ns_barrier\ns_barrier\ns_barrier\ns_barrier")
    a.T("L2_E:")
    a.I("s_barrier")
    a.reset()
    wg_map(a, "r2c4")
    a.I(f"""
    s_cmp_ge_u32 s34, 15
    s_cbranch_scc1 UT_GO
    s_mul_i32 s38, s34, 196608
    s_add_u32 s38, s38, {W13}
    s_mul_i32 s39, s50, 3072
    s_add_u32 s38, s38, s39
    s_mov_b32 s40, s39
    s_mul_i32 s42, s34, 384
    s_add_u32 s42, s42, {UT}
    s_lshl_b32 s45, s34, 8
    s_add_u32 s45, s45, {CNTU}
    s_cmp_eq_u32 s34, 14
    s_cselect_b32 s46, 2, 6
    """)
    NS3 = 12
    def issue3(g):
        if g % NS3 == 0 and g: a.I("s_mov_b32 s40, s39")
        a.I("s_mov_b32 m0, s40")
        for i in range(3): a.VM(f"buffer_load_dwordx4 v8, s[8:11], s38 offen offset:{1024*i} lds", f"w{g}")
        a.I("s_add_u32 s38, s38, 12288\ns_add_u32 s40, s40, 12288")
    for g in range(NS3): issue3(g)
    nxt = NS3
    for g in range(16):
        a.WAIT(vm=f"w{g}"); a.I("s_barrier")
        if nxt < 16 and nxt - NS3 <= g - 2:
            issue3(nxt); nxt += 1
        if g == 12:
            q = list(a.vmq)
            a.I("s_cmp_lg_u32 s50, 0\ns_cbranch_scc1 L_NOU")
            poll(a, "L_PLU", "s45", "s46")
            a.I("s_mov_b64 exec, 0xffffff")
            for arr in range(4):
                a.I(f"s_mov_b32 m0, {147456 + arr*384}\ns_add_u32 s43, s42, {arr*1408*4}\nbuffer_load_dwordx4 v8, s[8:11], s43 offen{SC} lds")
            a.I("s_mov_b64 exec, -1")
            a.T("L_NOU:")
            a.vmq = q
    assert nxt == 16
    a.I("s_waitcnt vmcnt(0)\ns_barrier\ns_barrier")
    a.T("L_P4:"); a.reset()
    wg_map(a, "sq")
    a.I(f"""
    s_and_b32 s51, s3, 1
    s_lshl_b32 s36, s33, 1
    s_add_u32 s36, s36, s51
    s_mul_i32 s37, s36, {86*1024}
    s_add_u32 s37, s37, {HH}
    s_lshl_b32 s38, s34, 1
    s_add_u32 s38, s38, s51
    s_mul_i32 s38, s38, {86*1024}
    s_add_u32 s38, s38, {W2}
    s_lshl_b32 s39, s50, 13
    s_mov_b32 s40, s39
    s_cmp_ge_u32 s50, 2
    s_cbranch_scc1 L4_GO
    s_mov_b32 s38, s37
    s_lshl_b32 s43, s36, 8
    s_add_u32 s43, s43, {CNT + 0x8000}
    """)
    poll(a, "L_PL4", "s43", 15)
    a.T("L4_GO:")
    def issue4(g):
        if g % 4 == 0 and g: a.I("s_mov_b32 s40, s39")
        for hf in range(2):
            n = min(4, 86 - 8*g - 4*hf)
            if n <= 0: continue
            a.I(f"s_add_u32 m0, s40, {4096*hf}")
            for i in range(n): a.VM(f"buffer_load_dwordx4 v8, s[8:11], s38 offen offset:{1024*i}{SC} lds", f"w{g}")
            a.I("s_add_u32 s38, s38, 4096")
        a.I("s_add_u32 s40, s40, 32768")
    for g in range(4): issue4(g)
    nxt = 4
    for g in range(11):
        a.WAIT(vm=f"w{g}"); a.I("s_barrier")
        if nxt < 11 and nxt - 4 <= g - 2:
            issue4(nxt); nxt += 1
    assert nxt == 11
    a.I("s_endpgm")
    a.T("UT_GO:"); a.reset()
    gen_ut()
    a.I("s_cmp_ge_u32 s3, 4\ns_cbranch_scc1 L_P4\ns_branch C_P4")
    a.T("KM_END:")
    a.I("s_endpgm")

def main():
    a = Asm()
    gen_k0(a); gen_main(a)
    head = """; generated by work/gen21.py
; @launch kernel=k0_kernel grid=(450,1,1) block=(256,1,1) lds=32768
; @launch kernel=km_kernel grid=(256,1,1) block=(512,1,1) lds=163840
.amdgcn_target "amdgcn-amd-amdhsa--gfx950"
.text
"""
    tail = '.section .rodata,"a"\n' + desc("k0_kernel", 128) + desc("km_kernel", 256)
    out = head + a.render() + tail
    args = [x for x in sys.argv[1:] if not x.startswith("-")]
    path = args[0] if args else f"cdna_kernels/{NAME}.s"
    open(path, "w").write(out)
    print("wrote", path, len(out))
main()
```

```python
import sys
sys.path.insert(0, 'work')
from asmlib import Asm

NAME = "adaLN_cond__sliding_local_dilated__glu_gated_swiglu__prompt"
A_X, A_WQKV, A_WO, A_BX, A_W1, A_W3, A_W2, A_C, A_WMOD, A_OUT, A_DBG, A_WS = [8*i for i in range(12)]
MODP = 0
MODF = 0x10000
UT   = 0x14000
ST   = 0x40000
XN   = 0x100000
WQ   = 0x300000
OO   = 0x500000
WO   = 0x700000
X1   = 0x800000
W13  = 0xA00000
HH   = 0xD00000
W2   = 0x1300000
YY   = 0x1500000
CNT  = 0x30000
CNTU = 0x3E000
CNTW = 0x3C000
CNT2 = 0x3D000
WS_BYTES = 0x2000000
LOG2E = 0x3fb8aa3b
PROF = "-p" in sys.argv
WT = " sc1" if "-wt" in sys.argv else ""
PROFB = 0x1800000
TIMER = "s_memtime" if "-c" in sys.argv else "s_memrealtime"
def opt(name, default):
    for x in sys.argv:
        if x.startswith(f"-{name}="): return int(x.split("=")[1])
    return default

class Prof:
    def __init__(self, a, kid): self.a, self.kid, self.n = a, kid, 0
    def stamp(self):
        if not PROF: return
        self.a.I(f"{TIMER} s[{60+2*self.n}:{61+2*self.n}]"); self.a.WAITALL(vm=False)
        self.n += 1
    def flush(self):
        if not PROF: return
        a = self.a
        a.WAITALL()
        a.I(f"{TIMER} s[{60+2*self.n}:{61+2*self.n}]\ns_waitcnt lgkmcnt(0)")
        a.I(f"s_lshl_b32 s58, s2, 3\ns_add_u32 s58, s58, s3\ns_lshl_b32 s58, s58, 7\ns_add_u32 s58, s58, {PROFB + self.kid*0x80000}\nv_mov_b32 v0, 0")
        for i in range(self.n+1):
            a.I(f"v_mov_b32 v2, s{60+2*i}\nv_mov_b32 v3, s{61+2*i}\nbuffer_store_dwordx2 v[2:3], v0, s[8:11], s58 offen offset:{8*i}")

def srd(a, d, b, nbytes):
    a.I(f"s_mov_b32 s{d}, s{b}\ns_and_b32 s{d+1}, s{b+1}, 0xffff\ns_mov_b32 s{d+2}, {nbytes}\ns_mov_b32 s{d+3}, 0x00020000")
def header(a, name):
    a.T(f".globl {name}\n.p2align 8\n.type {name},@function\n{name}:"); a.reset()
def desc(name, vgpr, agpr=0, sgpr=96):
    acc = (vgpr + 3) // 4 * 4
    return f""".p2align 6
.amdhsa_kernel {name}
  .amdhsa_next_free_vgpr {acc + agpr if agpr else vgpr}
  .amdhsa_next_free_sgpr {sgpr}
  .amdhsa_accum_offset {acc}
  .amdhsa_group_segment_fixed_size 0
  .amdhsa_kernarg_size 96
  .amdhsa_user_sgpr_count 2
  .amdhsa_user_sgpr_kernarg_segment_ptr 1
  .amdhsa_system_sgpr_workgroup_id_x 1
.end_amdhsa_kernel
"""
def round_bf16(a, dst, src):
    a.I(f"v_cvt_pk_bf16_f32 v{dst}, v{src}, v{src}\nv_lshlrev_b32 v{dst}, 16, v{dst}")
def transpose8x8(a, R, D, s_lo, s_hi):
    for c in range(4):
        for e in range(2):
            n = 2*c + e
            for jj in range(4):
                a.I(f"v_perm_b32 v{D+4*n+jj}, v{R+4*(2*jj+1)+c}, v{R+4*(2*jj)+c}, s{s_hi if e else s_lo}")

def chained_addr(a, unit_s, R):
    a.I(f"""
    s_and_b32 s35, s{unit_s}, 7
    s_lshr_b32 s34, s{unit_s}, 3
    v_lshrrev_b32 v3, 4, v2
    v_bfe_u32 v12, v2, 3, 1
    v_and_b32 v4, 7, v2
    v_lshlrev_b32 v5, 14, v3
    v_lshl_add_u32 v5, v12, 12, v5
    v_lshl_add_u32 v5, v4, 4, v5
    v_add_u32 v9, 8192, v5
    s_lshl_b32 s36, s34, 16
    s_lshl_b32 s37, s35, 7
    s_add_u32 s36, s36, s37
    """)
def chained_loads(a, R, sr, tag=None):
    for j in range(8):
        a.VM(f"buffer_load_dwordx4 v[{R+4*j}:{R+3+4*j}], v{5 if j < 4 else 9}, s[{sr}:{sr+3}], s36 offen offset:{1024*(j%4)}", tag)
def chained_dst(a, tmax, dst, ct_stride):
    a.I(f"""
    s_mul_i32 s36, s35, {2*ct_stride}
    s_lshl_b32 s37, s34, 12
    s_add_u32 s36, s36, s37
    s_add_u32 s36, s36, {dst}
    v_lshrrev_b32 v6, 2, v4
    s_mov_b32 s38, {ct_stride}
    v_mul_lo_u32 v6, v6, s38
    v_lshl_add_u32 v6, v3, 10, v6
    v_lshl_add_u32 v6, v12, 9, v6
    v_and_b32 v7, 3, v4
    v_lshl_add_u32 v6, v7, 7, v6
    s_lshl_b32 s37, s34, 2
    v_add_u32 v7, s37, v3
    v_cmp_gt_u32 vcc, {tmax}, v7
    v_mov_b32 v7, 0x7ff00000
    v_cndmask_b32 v6, v7, v6, vcc
    """)

def chained_store(a, R, D, dst, ct_stride, last_kb, stg=0, sc=""):
    a.I(f"""
    v_lshrrev_b32 v6, 2, v4
    v_lshl_add_u32 v6, v6, 2, v3
    v_lshlrev_b32 v6, 10, v6
    v_lshl_add_u32 v6, v12, 9, v6
    v_and_b32 v7, 3, v4
    v_lshl_add_u32 v6, v7, 7, v6
    {"s_mov_b32 s42, " + stg if isinstance(stg, str) else "s_lshl_b32 s42, s3, 13"}
    v_add_u32 v6, s42, v6
    v_add_u32 v7, s42, v8
    s_mul_i32 s36, s35, {2*ct_stride}
    s_lshl_b32 s37, s34, 12
    s_add_u32 s36, s36, s37
    s_add_u32 s36, s36, {dst}
    s_add_u32 s37, s36, {ct_stride}
    s_cmp_eq_u32 s34, {last_kb}
    s_cselect_b32 s42, 0x7ff00000, 0
    v_add_u32 v9, s42, v8
    s_waitcnt vmcnt(0)
    """)
    transpose8x8(a, R, D, 40, 41)
    for i in range(8): a.I(f"ds_write_b128 v6, v[{D+4*i}:{D+3+4*i}] offset:{16*i}")
    a.I("s_waitcnt lgkmcnt(0)")
    for f in range(8): a.I(f"ds_read_b128 v[{D+4*f}:{D+3+4*f}], v7 offset:{1024*f}")
    a.I("s_waitcnt lgkmcnt(0)")
    for f in range(8):
        a.I(f"buffer_store_dwordx4 v[{D+4*f}:{D+3+4*f}], {'v8' if f%4 < 2 else 'v9'}, s[8:11], {'s36' if f < 4 else 's37'} offen offset:{1024*(f%4)}{sc}")

def gen_k0(a):
    header(a, "k0_kernel")
    P = Prof(a, 0); P.stamp()
    a.I(f"""
    s_load_dwordx2 s[6:7], s[0:1], {A_WS}
    s_load_dwordx4 s[16:19], s[0:1], {A_X}
    s_load_dwordx2 s[20:21], s[0:1], {A_WO}
    s_load_dwordx4 s[28:31], s[0:1], {A_C}
    s_load_dwordx4 s[24:27], s[0:1], {A_W1}
    s_load_dwordx2 s[22:23], s[0:1], {A_W2}
    v_lshrrev_b32 v1, 6, v0
    v_and_b32 v2, 63, v0
    v_readfirstlane_b32 s3, v1
    s_mov_b32 s40, 0x05040100
    s_mov_b32 s41, 0x07060302
    s_waitcnt lgkmcnt(0)
    """)
    srd(a, 8, 6, WS_BYTES)
    a.I("""
    s_cmp_lt_u32 s2, 192
    s_cbranch_scc1 K0_MOD
    s_cmp_lt_u32 s2, 256
    s_cbranch_scc1 K0_XN
    s_cmp_lt_u32 s2, 304
    s_cbranch_scc1 K0_WQ
    s_cmp_lt_u32 s2, 320
    s_cbranch_scc1 K0_WO
    s_endpgm
    """)
    a.T("K0_MOD:"); a.reset()
    srd(a, 12, 30, 512*3072*2)
    srd(a, 52, 28, 1024)
    a.I(f"""
    s_mov_b32 s32, 0x5555556
    s_mul_hi_u32 s33, s2, s32
    s_mul_i32 s34, s33, 48
    s_sub_u32 s34, s2, s34
    v_lshrrev_b32 v3, 3, v0
    v_and_b32 v4, 7, v0
    s_lshl_b32 s35, s33, 8
    v_lshlrev_b32 v5, 3, v3
    buffer_load_dwordx2 v[6:7], v5, s[52:55], s35 offen
    s_mul_i32 s36, s33, {128*6144}
    s_lshl_b32 s37, s34, 7
    s_add_u32 s36, s36, s37
    s_mov_b32 s38, {4*6144}
    v_mul_lo_u32 v8, v3, s38
    v_lshl_add_u32 v8, v4, 4, v8
    v_add_u32 v9, 6144, v8
    v_add_u32 v10, {2*6144}, v8
    v_add_u32 v11, {3*6144}, v8
    buffer_load_dwordx4 v[16:19], v8, s[12:15], s36 offen
    buffer_load_dwordx4 v[20:23], v9, s[12:15], s36 offen
    buffer_load_dwordx4 v[24:27], v10, s[12:15], s36 offen
    buffer_load_dwordx4 v[28:31], v11, s[12:15], s36 offen
    s_mov_b32 s39, {LOG2E}
    s_waitcnt vmcnt(4)
    v_lshlrev_b32 v12, 16, v6
    v_and_b32 v13, 0xffff0000, v6
    v_lshlrev_b32 v14, 16, v7
    v_and_b32 v15, 0xffff0000, v7
    """)
    for i in range(4):
        r = 12 + i
        a.I(f"v_mul_f32 v32, s39, v{r}\nv_exp_f32 v32, -v32\nv_add_f32 v32, 1.0, v32\nv_rcp_f32 v32, v32\nv_mul_f32 v{r}, v{r}, v32")
        round_bf16(a, r, r)
    a.I("s_waitcnt vmcnt(0)")
    P.stamp()
    for i in range(4):
        for c in range(4):
            a.I(f"v_lshlrev_b32 v33, 16, v{16+4*i+c}\nv_and_b32 v34, 0xffff0000, v{16+4*i+c}")
            op = "v_mul_f32" if i == 0 else "v_fmac_f32"
            a.I(f"{op} v{40+2*c}, v{12+i}, v33\n{op} v{41+2*c}, v{12+i}, v34")
    a.I(f"""
    v_lshlrev_b32 v5, 5, v0
    ds_write_b128 v5, v[40:43]
    ds_write_b128 v5, v[44:47] offset:16
    s_waitcnt lgkmcnt(0)
    s_barrier
    s_cmp_lg_u32 s3, 0
    s_cbranch_scc1 K0_END
    v_lshlrev_b32 v5, 2, v0
    """)
    for kg in range(32):
        a.I(f"ds_read_b32 v{16+kg}, v5 offset:{kg*256}")
    a.I("s_waitcnt lgkmcnt(0)")
    for st in (16, 8, 4, 2, 1):
        for kg in range(st):
            a.I(f"v_add_f32 v{16+kg}, v{16+kg}, v{16+kg+st}")
    a.I(f"""
    s_mul_i32 s36, s33, {3072*4}
    s_lshl_b32 s37, s34, 8
    s_add_u32 s36, s36, s37
    buffer_store_dword v16, v5, s[8:11], s36 offen
    """)
    P.flush()
    a.I("s_endpgm")
    a.T("K0_XN:"); a.reset()
    Px = Prof(a, 5); Px.n = 1
    srd(a, 12, 16, 2048*1024)
    a.I(f"""
    s_sub_u32 s33, s2, 192
    v_lshlrev_b32 v3, 2, v0
    v_mov_b32 v4, 0
    s_lshl_b32 s34, s33, 10
    s_add_u32 s34, s34, {CNT}
    buffer_store_dword v4, v3, s[8:11], s34 offen
    v_and_b32 v3, 31, v2
    v_lshrrev_b32 v4, 5, v2
    v_lshlrev_b32 v5, 10, v3
    v_lshl_add_u32 v5, v4, 7, v5
    s_lshl_b32 s34, s33, 15
    s_lshl_b32 s35, s3, 8
    s_add_u32 s34, s34, s35
    """)
    for s in range(8):
        a.I(f"buffer_load_dwordx4 v[{16+4*s}:{19+4*s}], v5, s[12:15], s34 offen offset:{16*s}")
    a.I("s_waitcnt vmcnt(0)")
    Px.stamp()
    for d in range(32):
        a.I(f"v_lshlrev_b32 v{64+2*d}, 16, v{16+d}\nv_and_b32 v{65+2*d}, 0xffff0000, v{16+d}")
    def halfsum(src):
        a.I(f"v_mov_b32 v7, v{src}\nv_permlane32_swap_b32 v{src}, v7\nv_add_f32 v{src}, v{src}, v7")
    for c in range(4): a.I(f"v_add_f32 v{10+c}, v{64+c}, v{68+c}")
    for d in range(8, 64): a.I(f"v_add_f32 v{10+d%4}, v{10+d%4}, v{64+d}")
    a.I("v_add_f32 v10, v10, v11\nv_add_f32 v12, v12, v13\nv_add_f32 v6, v10, v12")
    halfsum(6)
    a.I(f"""
    v_lshlrev_b32 v8, 2, v3
    s_lshl_b32 s35, s3, 7
    v_add_u32 v9, s35, v8
    ds_write_b32 v9, v6
    s_waitcnt lgkmcnt(0)
    s_barrier
    ds_read_b32 v10, v8
    ds_read_b32 v11, v8 offset:128
    ds_read_b32 v12, v8 offset:256
    ds_read_b32 v13, v8 offset:384
    s_waitcnt lgkmcnt(0)
    v_add_f32 v10, v10, v11
    v_add_f32 v12, v12, v13
    v_add_f32 v10, v10, v12
    v_mul_f32 v14, 0x3b000000, v10
    """)
    for d in range(64):
        a.I(f"v_sub_f32 v7, v{64+d}, v14")
        a.I(f"v_mul_f32 v{10+d}, v7, v7" if d < 4 else f"v_fmac_f32 v{10+d%4}, v7, v7")
    a.I("v_add_f32 v10, v10, v11\nv_add_f32 v12, v12, v13\nv_add_f32 v6, v10, v12")
    halfsum(6)
    a.I(f"""
    ds_write_b32 v9, v6 offset:512
    s_waitcnt lgkmcnt(0)
    s_barrier
    ds_read_b32 v10, v8 offset:512
    ds_read_b32 v11, v8 offset:640
    ds_read_b32 v12, v8 offset:768
    ds_read_b32 v13, v8 offset:896
    s_waitcnt lgkmcnt(0)
    v_add_f32 v10, v10, v11
    v_add_f32 v12, v12, v13
    v_add_f32 v10, v10, v12
    v_mul_f32 v15, 0x3b000000, v10
    """)
    round_bf16(a, 14, 14); round_bf16(a, 15, 15)
    a.I("v_add_f32 v15, 0x3727c5ac, v15"); round_bf16(a, 15, 15)
    a.I("v_sqrt_f32 v15, v15"); round_bf16(a, 15, 15)
    a.I("v_rcp_f32 v15, v15")
    a.I(f"""
    v_lshlrev_b32 v8, 4, v2
    s_lshl_b32 s34, s33, 15
    s_lshl_b32 s35, s3, 13
    s_add_u32 s34, s34, s35
    s_add_u32 s34, s34, {XN}
    """)
    for d in range(32):
        lo, hi = 64+2*d, 65+2*d
        a.I(f"""
        v_sub_f32 v{lo}, v{lo}, v14
        v_sub_f32 v{hi}, v{hi}, v14
        v_cvt_pk_bf16_f32 v6, v{lo}, v{hi}
        v_lshlrev_b32 v{lo}, 16, v6
        v_and_b32 v{hi}, 0xffff0000, v6
        v_mul_f32 v{lo}, v{lo}, v15
        v_mul_f32 v{hi}, v{hi}, v15
        v_cvt_pk_bf16_f32 v{16+d}, v{lo}, v{hi}
        """)
        if d % 4 == 3:
            ss = d // 4
            if ss == 4: a.I("s_add_u32 s34, s34, 4096")
            a.I(f"buffer_store_dwordx4 v[{16+4*ss}:{19+4*ss}], v8, s[8:11], s34 offen offset:{1024*(ss%4)}{WT}")
    Px.flush()
    a.I("s_endpgm")
    a.T("K0_WQ:"); a.reset()
    srd(a, 12, 18, 512*3072)
    a.I(f"""
    s_sub_u32 s33, s2, 256
    s_lshl_b32 s33, s33, 2
    s_add_u32 s33, s33, s3
    s_mov_b32 s32, 0xaaaaaab
    s_mul_hi_u32 s34, s33, s32
    s_mul_i32 s35, s34, 24
    s_sub_u32 s35, s33, s35
    v_lshrrev_b32 v3, 3, v2
    v_and_b32 v4, 7, v2
    s_mov_b32 s38, {8*3072}
    v_mul_lo_u32 v5, v3, s38
    v_lshl_add_u32 v5, v4, 4, v5
    s_mul_i32 s36, s34, {64*3072}
    s_lshl_b32 s37, s35, 7
    s_add_u32 s36, s36, s37
    """)
    for j in range(8):
        a.I(f"buffer_load_dwordx4 v[{16+4*j}:{19+4*j}], v5, s[12:15], s36 offen")
        if j < 7: a.I("s_add_u32 s36, s36, 3072")
    a.I(f"""
    s_and_b32 s36, s35, 7
    s_mul_i32 s36, s36, {2*98304}
    s_lshr_b32 s37, s35, 3
    s_lshl_b32 s37, s37, 10
    s_add_u32 s36, s36, s37
    s_lshr_b32 s37, s34, 1
    s_mul_i32 s37, s37, {8*3072}
    s_add_u32 s36, s36, s37
    s_and_b32 s37, s34, 1
    s_lshl_b32 s37, s37, 9
    s_add_u32 s36, s36, s37
    s_add_u32 s36, s36, {WQ}
    v_lshrrev_b32 v6, 2, v4
    v_lshl_add_u32 v6, v6, 3, v3
    v_lshlrev_b32 v6, 9, v6
    v_and_b32 v7, 3, v4
    v_lshl_add_u32 v6, v7, 7, v6
    s_lshl_b32 s42, s3, 13
    v_add_u32 v6, s42, v6
    v_lshlrev_b32 v7, 4, v2
    v_add_u32 v7, s42, v7
    v_lshrrev_b32 v9, 5, v2
    v_mul_u32_u24 v9, 3072, v9
    v_and_b32 v10, 31, v2
    v_lshl_add_u32 v9, v10, 4, v9
    s_waitcnt vmcnt(0)
    """)
    transpose8x8(a, 16, 64, 40, 41)
    for i in range(8): a.I(f"ds_write_b128 v6, v[{64+4*i}:{67+4*i}] offset:{16*i}")
    a.I("s_waitcnt lgkmcnt(0)")
    for f in range(8): a.I(f"ds_read_b128 v[{64+4*f}:{67+4*f}], v7 offset:{1024*f}")
    a.I("s_waitcnt lgkmcnt(0)")
    for f in range(8):
        a.I(f"buffer_store_dwordx4 v[{64+4*f}:{67+4*f}], v9, s[8:11], s36 offen{WT}")
        a.I(f"s_add_u32 s36, s36, {6144 if f != 3 else 98304 - 3*6144}")
    Pq = Prof(a, 6); Pq.n = 1; Pq.flush()
    a.I("s_endpgm")
    a.T("K0_WO:"); a.reset()
    srd(a, 12, 20, 512*1024)
    a.I("s_sub_u32 s33, s2, 304\ns_lshl_b32 s33, s33, 2\ns_add_u32 s33, s33, s3")
    a.I("v_lshlrev_b32 v8, 4, v2")
    chained_addr(a, 33, 16); chained_loads(a, 16, 12)
    chained_store(a, 16, 64, WO, 32768, 999, sc=WT)
    a.T("K0_END:")
    a.I("s_endpgm")

def wg_map(a, mode):
    if mode == "r4c2":
        a.I("""
        s_bfe_u32 s33, s2, 0x20001
        s_lshl_b32 s33, s33, 2
        s_bfe_u32 s34, s2, 0x20003
        s_add_u32 s33, s33, s34
        s_and_b32 s34, s2, 1
        s_lshl_b32 s34, s34, 3
        s_lshr_b32 s35, s2, 5
        s_add_u32 s34, s34, s35
        """)
    elif mode == "r2c4":
        a.I("""
        s_bfe_u32 s33, s2, 0x10002
        s_lshl_b32 s33, s33, 3
        s_bfe_u32 s34, s2, 0x30003
        s_add_u32 s33, s33, s34
        s_and_b32 s34, s2, 3
        s_lshl_b32 s34, s34, 2
        s_lshr_b32 s35, s2, 6
        s_add_u32 s34, s34, s35
        """)
    elif mode == "sq":
        a.I("""
        s_bfe_u32 s33, s2, 0x20001
        s_lshl_b32 s33, s33, 3
        s_bfe_u32 s34, s2, 0x30003
        s_add_u32 s33, s33, s34
        s_and_b32 s34, s2, 1
        s_lshl_b32 s34, s34, 2
        s_lshr_b32 s35, s2, 6
        s_add_u32 s34, s34, s35
        """)

SC = " sc1"
def signal(a, soff):
    a.I(f"""
    s_waitcnt vmcnt(0)
    v_mov_b32 v0, 0
    v_mov_b32 v1, 1
    s_mov_b64 exec, 1
    buffer_atomic_add v1, v0, s[8:11], {soff} offen sc1
    s_mov_b64 exec, -1
    """)
    a.vmq = []
def poll(a, label, soff, target):
    a.I("v_mov_b32 v0, 0\ns_mov_b32 s31, 0")
    a.T(f"{label}:")
    a.I(f"""
    buffer_load_dword v1, v0, s[8:11], {soff} offen sc1
    s_waitcnt vmcnt(0)
    v_readfirstlane_b32 s30, v1
    s_add_u32 s31, s31, 1
    s_cmp_ge_u32 s30, {target}
    s_cbranch_scc1 {label}_OK
    s_cmp_ge_u32 s31, 0x100000
    s_cbranch_scc1 {label}_OK
    s_sleep {opt("slp", 1)}
    s_branch {label}
    """)
    a.T(f"{label}_OK:")
    a.vmq = []
def modvec_loads(a, row, base, soff_tmp, ct_s, vaddr):
    for ks in range(4):
        a.I(f"s_lshl_b32 {soff_tmp}, {ct_s}, 7\ns_add_u32 {soff_tmp}, {soff_tmp}, {MODP + ks*12288 + row*2048}")
        for aa in range(4):
            a.VM(f"buffer_load_dwordx4 v[{base+16*ks+4*aa}:{base+16*ks+4*aa+3}], {vaddr}, s[8:11], {soff_tmp} offen offset:{32*aa}", "mv")
def modvec_sum(a, base, dst, plus1):
    for r in range(16):
        a.I(f"v_add_f32 v{base+r}, v{base+r}, v{base+16+r}\nv_add_f32 v{base+32+r}, v{base+32+r}, v{base+48+r}\nv_add_f32 v{dst+r}, v{base+r}, v{base+32+r}")
    for r in range(0, 16, 2):
        a.I(f"v_cvt_pk_bf16_f32 v1, v{dst+r}, v{dst+r+1}\nv_lshlrev_b32 v{dst+r}, 16, v1\nv_and_b32 v{dst+r+1}, 0xffff0000, v1")
    if plus1:
        for r in range(16): a.I(f"v_add_f32 v{dst+r}, 1.0, v{dst+r}")
        for r in range(0, 16, 2):
            a.I(f"v_cvt_pk_bf16_f32 v1, v{dst+r}, v{dst+r+1}\nv_lshlrev_b32 v{dst+r}, 16, v1\nv_and_b32 v{dst+r+1}, 0xffff0000, v1")

def gen_main(a):
    TAB, HBL, KT, VT = 98304, 102400, 131072, 140288
    UTT, UTZ = 131072, 147456
    STG = 131072
    header(a, "km_kernel")
    P = Prof(a, 1); P.stamp()
    a.I(f"""
    s_cmp_ge_u32 s2, 256
    s_cbranch_scc1 KM_END
    s_load_dwordx2 s[4:5], s[0:1], {A_WS}
    s_load_dwordx2 s[6:7], s[0:1], {A_X}
    s_load_dwordx2 s[20:21], s[0:1], {A_OUT}
    s_load_dwordx4 s[24:27], s[0:1], {A_W1}
    s_load_dwordx2 s[28:29], s[0:1], {A_W2}
    v_lshrrev_b32 v1, 6, v0
    v_and_b32 v2, 63, v0
    v_readfirstlane_b32 s3, v1
    v_lshlrev_b32 v8, 4, v2
    """)
    wg_map(a, "r4c2")
    a.I(f"""
    s_and_b32 s50, s3, 3
    s_lshl_b32 s36, s33, 2
    s_add_u32 s36, s36, s50
    s_waitcnt lgkmcnt(0)
    """)
    srd(a, 8, 4, WS_BYTES); srd(a, 12, 6, 2048*1024); srd(a, 16, 20, 2048*1024)
    a.I("s_cmp_ge_u32 s3, 4\ns_cbranch_scc1 KM_LOADER")
    if opt("prio", 0): a.I(f"s_setprio {opt('prio', 0)}")
    MT = 16
    def modulate(base, tb):
        ins = []
        for d in range(4): ins += [f"v_lshlrev_b32 v{MT+2*d}, 16, v{base+d}", f"v_and_b32 v{MT+2*d+1}, 0xffff0000, v{base+d}"]
        for j in range(8): ins.append(f"v_fma_f32 v{MT+j}, v{MT+j}, v{tb+j}, v{tb+8+j}")
        for d in range(4): ins.append(f"v_cvt_pk_bf16_f32 v{base+d}, v{MT+2*d}, v{MT+2*d+1}")
        return ins
    def gen_ut():
        a.I(f"""
        s_xor_b32 s47, s3, 4
        s_lshl_b32 s47, s47, 4
        s_add_u32 s47, s47, s33
        s_cmp_ge_u32 s47, 86
        s_cbranch_scc1 UT_DONE
        """)
        a.I(f"""
        s_and_b32 s51, s47, 1
        s_lshr_b32 s53, s47, 1
        v_lshlrev_b32 v3, 5, v2
        s_mul_i32 s44, s53, 43691
        s_lshr_b32 s44, s44, 17          ; ct
        s_mul_i32 s54, s44, 3
        s_sub_u32 s54, s53, s54
        s_lshl_b32 s54, s54, 1
        s_add_u32 s54, s54, s51
        s_lshl_b32 s54, s54, 10
        s_mul_i32 s52, s44, 196608
        s_add_u32 s52, s52, s54
        s_add_u32 s52, s52, {W13}
        s_lshl_b32 s45, s44, 8
        s_add_u32 s43, s45, {CNTW}
        s_add_u32 s45, s45, {CNTU}
        s_cmp_eq_u32 s44, 14
        s_cselect_b32 s44, 8, 24
        """)
        poll(a, "U_PLW", "s43", "s44")
        for ks in range(4):
            a.I(f"s_mov_b32 s43, {MODP + ks*12288 + 3*2048}")
            for q in range(4):
                a.I(f"buffer_load_dwordx4 v[{16+16*ks+4*q}:{19+16*ks+4*q}], v3, s[8:11], s43 offen offset:{(q//2)*2048 + (q%2)*16}")
        for t in range(32):
            a.I(f"buffer_load_dwordx4 v[{128+4*t}:{131+4*t}], v8, s[8:11], s52 offen{SC}\ns_add_u32 s52, s52, 6144")
        a.I(f"""
        s_lshl_b32 s43, s3, 11
        s_add_u32 s43, s43, {UTT}
        v_add_u32 v4, s43, v8
        v_mov_b32 v80, 0
        v_mov_b32 v81, 0
        v_mov_b32 v82, 0
        v_mov_b32 v83, 0
        v_add_u32 v5, {UTZ}, v8
        ds_write_b128 v5, v[80:83]
        s_waitcnt vmcnt(32)
        """)
        for r in range(16):
            a.I(f"v_add_f32 v{16+r}, v{16+r}, v{32+r}\nv_add_f32 v{48+r}, v{48+r}, v{64+r}\nv_add_f32 v{16+r}, v{16+r}, v{48+r}")
        for d in range(4): a.I(f"v_cvt_pk_bf16_f32 v{84+d}, v{16+2*d}, v{17+2*d}")
        for d in range(4):
            a.I(f"v_cvt_pk_bf16_f32 v1, v{24+2*d}, v{25+2*d}\nv_lshlrev_b32 v{24+2*d}, 16, v1\nv_and_b32 v{25+2*d}, 0xffff0000, v1\nv_add_f32 v{24+2*d}, 1.0, v{24+2*d}\nv_add_f32 v{25+2*d}, 1.0, v{25+2*d}\nv_cvt_pk_bf16_f32 v{88+d}, v{24+2*d}, v{25+2*d}")
        a.I(f"""
        ds_write_b128 v4, v[88:91]
        ds_write_b128 v4, v[84:87] offset:1024
        v_and_b32 v3, 31, v2
        v_lshrrev_b32 v6, 5, v2
        v_lshlrev_b32 v7, 10, v3
        v_add_u32 v7, s43, v7
        v_mov_b32 v5, {UTZ}
        v_cmp_gt_u32 vcc, 2, v3
        v_cndmask_b32 v7, v5, v7, vcc
        v_lshl_add_u32 v7, v6, 3, v7
        s_waitcnt lgkmcnt(0)
        """)
        for t in range(32):
            r = 16 + 4*(t % 8)
            a.I(f"ds_read_b64 v[{r}:{r+1}], v7 offset:{32*t}\nds_read_b64 v[{r+2}:{r+3}], v7 offset:{32*t+16}")
            if t % 8 == 7:
                a.I(f"s_waitcnt vmcnt({31-t}) lgkmcnt(0)")
                for tt in range(t-7, t+1):
                    cin = "0" if tt == 0 else "v[48:63]"
                    a.I(f"v_mfma_f32_32x32x16_bf16 v[48:63], v[{128+4*tt}:{131+4*tt}], v[{16+4*(tt%8)}:{19+4*(tt%8)}], {cin}")
                a.I("s_nop 7")
        a.I(f"""
        v_mul_u32_u24 v4, {1408*4}, v3
        v_lshl_add_u32 v4, v6, 4, v4
        v_mov_b32 v5, 0x7ff00000
        v_cndmask_b32 v4, v5, v4, vcc
        s_mul_i32 s52, s51, {2*1408*4}
        s_lshl_b32 s54, s53, 7
        s_add_u32 s52, s52, s54
        s_add_u32 s52, s52, {UT}
        s_nop 7
        """)
        for aa in range(4):
            a.I(f"buffer_store_dwordx4 v[{48+4*aa}:{51+4*aa}], v4, s[8:11], s52 offen offset:{32*aa}{SC}")
        signal(a, "s45")
        a.T("UT_DONE:")
    AF, TB, XB, ACC = 32, 80, 112, 144
    a.I("v_lshlrev_b32 v3, 3, v0")
    for ks in range(4):
        a.I(f"s_mov_b32 s35, {MODP + ks*12288}")
        a.I(f"buffer_load_dwordx2 v[{16+2*ks}:{17+2*ks}], v3, s[8:11], s35 offen")
        a.I(f"buffer_load_dwordx2 v[{24+2*ks}:{25+2*ks}], v3, s[8:11], s35 offen offset:2048")
    a.I(f"s_lshl_b32 s37, s36, 15\ns_add_u32 s37, s37, {XN}")
    def bload(i):
        a.I(f"buffer_load_dwordx4 v[{XB+4*i}:{XB+4*i+3}], v8, s[8:11], s37 offen offset:{1024*(i%4)}")
        if i % 4 == 3: a.I("s_add_u32 s37, s37, 4096")
    for i in range(8): bload(i)
    a.I(f"""
    v_lshrrev_b32 v4, 6, v0
    v_bfe_u32 v5, v0, 2, 3
    v_lshl_add_u32 v4, v4, 3, v5
    v_bfe_u32 v5, v0, 5, 1
    v_lshl_add_u32 v4, v4, 1, v5
    v_and_b32 v5, 3, v0
    v_lshlrev_b32 v4, 5, v4
    v_lshl_add_u32 v4, v5, 3, v4
    v_add_u32 v4, {TAB}, v4
    v_lshrrev_b32 v5, 5, v2
    v_lshlrev_b32 v10, 5, v5
    v_add_u32 v10, {TAB}, v10
    v_mov_b32 v9, v8
    s_mov_b32 s41, 0
    """)
    for i in range(48): a.I(f"v_mov_b32 v{ACC+i}, 0")
    a.I("s_waitcnt vmcnt(8)")
    for o in (16, 24):
        for e in range(2):
            r = o+e
            a.I(f"v_add_f32 v{r}, v{r}, v{r+2}\nv_add_f32 v{r+4}, v{r+4}, v{r+6}\nv_add_f32 v{r}, v{r}, v{r+4}")
            round_bf16(a, r, r)
    for e in range(2):
        a.I(f"v_add_f32 v{24+e}, 1.0, v{24+e}"); round_bf16(a, 24+e, 24+e)
    a.I("ds_write_b64 v4, v[24:25]\nds_write_b64 v4, v[16:17] offset:2048\ns_waitcnt lgkmcnt(0)\ns_barrier")
    P.stamp()
    def reads(i):
        tb = TB + 16*(i % 2)
        for q in range(4): a.I(f"ds_read_b128 v[{tb+4*q}:{tb+4*q+3}], v10 offset:{(q//2)*2048 + i*64 + (q%2)*16}")
        for ty in range(3): a.I(f"ds_read_b128 v[{AF+12*(i%4)+4*ty}:{AF+12*(i%4)+4*ty+3}], v9 offset:{i*3072 + ty*1024}")
    reads(0); reads(1)
    a.I("s_waitcnt vmcnt(7) lgkmcnt(10)")
    for x in modulate(XB, TB): a.I(x)
    def loop(tag, pos):
        a.T(f"P1_LOOP{tag}:")
        for i in range(8):
            if (i + 2) % 4 == 0: a.I("s_barrier")
            if pos < 0:
                reads(i+2); a.I("s_waitcnt vmcnt(6) lgkmcnt(10)")
            else:
                a.I("s_waitcnt vmcnt(6) lgkmcnt(3)")
            fill = modulate(XB+4*((i+1) % 8), TB + 16*((i+1) % 2))
            nf = (len(fill)+2)//3
            for ty in range(3):
                a.I(f"v_mfma_f32_32x32x16_bf16 v[{ACC+16*ty}:{ACC+16*ty+15}], v[{AF+12*(i%4)+4*ty}:{AF+12*(i%4)+4*ty+3}], v[{XB+4*i}:{XB+4*i+3}], v[{ACC+16*ty}:{ACC+16*ty+15}]")
                for x in fill[nf*ty:nf*ty+nf]: a.I(x)
                if pos == ty: reads(i+2)
            bload(i)
        a.I(f"""
        v_add_u32 v9, 24576, v9
        v_add_u32 v10, 512, v10
        s_add_u32 s41, s41, 1
        s_cmp_eq_u32 s41, 3
        s_cselect_b32 s37, 0x7ff00000, s37
        s_cmp_lt_u32 s41, 4
        s_cbranch_scc1 P1_LOOP{tag}
        """)
    a.I("s_and_b32 s35, s3, 1\ns_cmp_lg_u32 s35, 0\ns_cbranch_scc1 P1_LOOPB")
    loop("A", -1)
    a.I("s_branch P1_LOOPE")
    loop("B", 1)
    a.T("P1_LOOPE:")
    a.I("s_waitcnt vmcnt(0) lgkmcnt(0)\ns_nop 7")
    P.stamp()
    a.I("s_barrier")
    RL = 0
    QP, KP = 116, 24
    a.I(f"""
    v_and_b32 v3, 31, v2
    v_lshrrev_b32 v4, 5, v2
    s_lshl_b32 s35, s3, 5
    v_add_u32 v5, s35, v3
    v_add_u32 v5, 16, v5
    v_mul_u32_u24 v6, {144*16}, v4
    v_lshl_add_u32 v15, v5, 4, v6
    v_add_u32 v15, {KT}, v15
    v_mul_u32_u24 v6, {2*144*16}, v4
    v_lshl_add_u32 v7, v5, 4, v6
    v_add_u32 v7, {VT}, v7
    """)
    for d in range(8): a.I(f"v_cvt_pk_bf16_f32 v{KP+d}, v{ACC+16+2*d}, v{ACC+17+2*d}")
    for d in range(8):
        a.I(f"v_cvt_pk_bf16_f32 v9, v{ACC+32+2*d}, v{ACC+33+2*d}\nv_lshlrev_b32 v{ACC+32+2*d}, 16, v9\nv_and_b32 v{ACC+33+2*d}, 0xffff0000, v9")
    V0 = ACC+32
    for x in [f"ds_write_b128 v15, v[{KP}:{KP+3}]", f"ds_write_b128 v15, v[{KP+4}:{KP+7}] offset:{2*144*16}",
              f"ds_write_b128 v7, v[{V0}:{V0+3}]", f"ds_write_b128 v7, v[{V0+4}:{V0+7}] offset:{144*16}",
              f"ds_write_b128 v7, v[{V0+8}:{V0+11}] offset:{4*144*16}", f"ds_write_b128 v7, v[{V0+12}:{V0+15}] offset:{5*144*16}"]:
        a.I(x)
    for d in range(8): a.I(f"v_cvt_pk_bf16_f32 v{QP+d}, v{ACC+2*d}, v{ACC+1+2*d}")
    a.I("v_subrev_u32 v15, 224, v15\nv_subrev_u32 v7, 224, v7\ns_waitcnt lgkmcnt(0)\ns_barrier")
    a.reset()
    for e in range(2):
        for w in range(8):
            a.DS(f"ds_read_b128 v[{32+(e*8+w)*4}:{35+(e*8+w)*4}], v15 offset:{e*2*144*16 + (7-w)*32}", f"k{e}{w//4}")
    VB, LG = 128, 96
    def vread(e, w):
        for aa in range(2):
            r = VB + ((e*8+w)*2+aa)*4
            a.DS(f"ds_read_b128 v[{r}:{r+3}], v7 offset:{e*4*144*16 + aa*144*16 + (7-w)*32}", f"v{e}{w//2}")
    for e in range(2):
        for w in range(8):
            if w % 4 == 0: a.WAIT(ds=f"k{e}{w//4}")
            kb = 32+(e*8+w)*4
            a.I(f"v_dot2_f32_bf16 v{LG+e*8+w}, v{QP+4*e}, v{kb}, 0")
            for d in range(1, 4):
                a.I(f"v_dot2_f32_bf16 v{LG+e*8+w}, v{QP+4*e+d}, v{kb+d}, v{LG+e*8+w}")
            vread(e, w)
    for w in range(8): a.I(f"v_permlane32_swap_b32 v{LG+w}, v{LG+8+w}")
    for w in range(8): a.I(f"v_add_f32 v{LG+w}, v{LG+w}, v{LG+8+w}")
    for w in range(0, 8, 2):
        a.I(f"v_cvt_pk_bf16_f32 v5, v{LG+w}, v{LG+w+1}\nv_lshlrev_b32 v{LG+w}, 16, v5\nv_and_b32 v{LG+w+1}, 0xffff0000, v5")
    a.I(f"s_mov_b32 s35, 0x3eb8aa3b\ns_cmp_lg_u32 s36, 0\ns_cbranch_scc1 P1_NOMASK\nv_and_b32 v3, 31, v2\nv_mov_b32 v4, 0xcf6e6b28")
    for w in range(1, 8):
        a.I(f"v_cmp_le_u32 vcc, {2*w}, v3\nv_cndmask_b32 v{LG+w}, v4, v{LG+w}, vcc")
    a.T("P1_NOMASK:")
    a.I(f"v_max3_f32 v5, v{LG}, v{LG+1}, v{LG+2}\nv_max3_f32 v6, v{LG+3}, v{LG+4}, v{LG+5}\nv_max3_f32 v5, v5, v{LG+6}, v{LG+7}\nv_max_f32 v5, v5, v6")
    for w in range(8): a.I(f"v_sub_f32 v{LG+w}, v{LG+w}, v5")
    for w in range(8): a.I(f"v_mul_f32 v{LG+w}, s35, v{LG+w}")
    for w in range(8): a.I(f"v_exp_f32 v{LG+w}, v{LG+w}")
    a.I(f"v_add_f32 v5, v{LG}, v{LG+1}\nv_add_f32 v6, v{LG+2}, v{LG+3}\nv_add_f32 v9, v{LG+4}, v{LG+5}\nv_add_f32 v10, v{LG+6}, v{LG+7}\nv_add_f32 v5, v5, v6\nv_add_f32 v9, v9, v10\nv_add_f32 v6, v5, v9\nv_rcp_f32 v6, v6")
    for w in range(8): a.I(f"v_mul_f32 v{LG+w}, v{LG+w}, v6")
    for w in range(0, 8, 2):
        a.I(f"v_cvt_pk_bf16_f32 v5, v{LG+w}, v{LG+w+1}\nv_lshlrev_b32 v{LG+w}, 16, v5\nv_and_b32 v{LG+w+1}, 0xffff0000, v5")
    for w in range(8): a.I(f"v_mov_b32 v{LG+8+w}, v{LG+w}")
    for w in range(8): a.I(f"v_permlane32_swap_b32 v{LG+w}, v{LG+8+w}")
    OA = 16
    a.I(f"s_lshl_b32 s37, s36, 15\ns_lshl_b32 s38, s34, 11\ns_add_u32 s37, s37, s38\ns_add_u32 s37, s37, {OO}")
    for e in range(2):
        for w in range(8):
            if w % 2 == 0: a.WAIT(ds=f"v{e}{w//2}")
            for q in range(8):
                r = VB + (e*8+w)*8 + q
                a.I(f"v_mul_f32 v{OA+q}, v{LG+8*e+w}, v{r}" if w == 0 else f"v_fmac_f32 v{OA+q}, v{LG+8*e+w}, v{r}")
        for d in range(4): a.I(f"v_cvt_pk_bf16_f32 v{32+4*e+d}, v{OA+2*d}, v{OA+2*d+1}")
        a.I(f"buffer_store_dwordx4 v[{32+4*e}:{35+4*e}], v8, s[8:11], s37 offen offset:{1024*e}{SC}")
    a.I(f"s_lshl_b32 s38, s36, 8\ns_add_u32 s38, s38, {CNT}")
    signal(a, "s38")
    P.stamp()
    def proj_compute(which):
        nt = 32 if which == 2 else 86
        wg_map(a, "sq")
        a.I(f"""
        s_and_b32 s51, s3, 1
        s_lshr_b32 s52, s3, 1
        s_lshl_b32 s36, s33, 1
        s_add_u32 s36, s36, s51         ; mb
        s_lshl_b32 s35, s34, 1
        s_add_u32 s35, s35, s52         ; ct
        v_and_b32 v3, 31, v2
        v_lshrrev_b32 v4, 5, v2
        v_lshlrev_b32 v5, 4, v4
        s_lshl_b32 s41, s36, 15
        s_lshl_b32 s42, s35, 6
        s_add_u32 s41, s41, s42
        v_lshlrev_b32 v6, 10, v3
        v_lshl_add_u32 v6, v4, 3, v6
        s_lshl_b32 s42, s36, 15
        s_lshl_b32 s44, s35, 11
        s_add_u32 s42, s42, s44
        s_add_u32 s42, s42, {X1}
        """)
        a.reset()
        modvec_loads(a, 2 if which == 2 else 5, 128, "s43", "s35", "v5")
        if which == 2:
            modvec_loads(a, 4, 192, "s43", "s35", "v5")
            for aa in range(4):
                a.VM(f"buffer_load_dwordx2 v[{32+2*aa}:{33+2*aa}], v6, s[12:15], s41 offen offset:{16*aa}", "mv")
            a.I("""
            s_lshl_b32 s44, s52, 15
            v_add_u32 v10, s44, v8
            s_lshl_b32 s44, s51, 15
            s_add_u32 s44, s44, 65536
            v_add_u32 v9, s44, v8
            """)
        else:
            a.I("""
            s_lshl_b32 s44, s51, 13
            v_add_u32 v9, s44, v8
            s_lshl_b32 s44, s52, 13
            s_add_u32 s44, s44, 16384
            v_add_u32 v10, s44, v8
            v_add_u32 v11, 65536, v9
            v_add_u32 v12, 65536, v10
            """)
        a.WAIT(vm="mv")
        modvec_sum(a, 128, 16, False)
        if which == 2: modvec_sum(a, 192, 112, True)
        FR = 64
        def fread(t):
            if which == 2:
                rb, ra, off = "v9", "v10", t*1024
            else:
                off = ((t//8) % 4)*32768 + (t % 8)*1024
                rb, ra = [("v9", "v10"), ("v11", "v12")][off // 65536]; off %= 65536
            st = FR + 8*(t % 4)
            a.DS(f"ds_read_b128 v[{st}:{st+3}], {ra} offset:{off}", f"f{t}")
            a.DS(f"ds_read_b128 v[{st+4}:{st+7}], {rb} offset:{off}", f"f{t}")
        a.I("s_barrier")
        P.stamp()
        if which == 4:
            a.I("s_lshl_b32 s43, s3, 11\ns_add_u32 s43, s43, 155648\nv_add_u32 v7, s43, v8")
            a.DS("ds_read_b128 v[32:35], v7", "x1"); a.DS("ds_read_b128 v[36:39], v7 offset:1024", "x1")
        for t in range(3): fread(t)
        for t in range(nt):
            if t + 3 < nt:
                if (t+3) % 8 == 0: a.I("s_barrier")
                fread(t+3)
            a.WAIT(ds=f"f{t}")
            st = FR + 8*(t % 4)
            cin = "0" if t == 0 else "v[48:63]"
            a.I(f"v_mfma_f32_32x32x16_bf16 v[48:63], v[{st}:{st+3}], v[{st+4}:{st+7}], {cin}")
            if t == nt - 6:
                a.WAIT(vm="e")
                for d in range(8):
                    a.I(f"v_lshlrev_b32 v{96+2*d}, 16, v{32+d}\nv_and_b32 v{97+2*d}, 0xffff0000, v{32+d}")
        if which == 2: a.I("s_barrier")
        P.stamp()
        for r in range(16): a.I(f"v_fmac_f32 v{96+r}, v{48+r}, v{16+r}")
        for d in range(8): a.I(f"v_cvt_pk_bf16_f32 v{84+d}, v{96+2*d}, v{97+2*d}")
        if which == 2:
            for d in range(8):
                a.I(f"v_lshlrev_b32 v{96+2*d}, 16, v{84+d}\nv_and_b32 v{97+2*d}, 0xffff0000, v{84+d}")
            for r in range(16): a.I(f"v_mul_f32 v{112+r}, v{112+r}, v{96+r}")
            for d in range(8): a.I(f"v_cvt_pk_bf16_f32 v{64+d}, v{112+2*d}, v{113+2*d}")
            a.I(f"""
            s_add_u32 s43, s42, {YY - X1}
            buffer_store_dwordx4 v[64:67], v8, s[8:11], s43 offen{SC}
            buffer_store_dwordx4 v[68:71], v8, s[8:11], s43 offen offset:1024{SC}
            v_add_f32 v92, v96, v97
            v_add_f32 v94, v98, v99
            v_mul_f32 v93, v96, v96
            v_mul_f32 v95, v97, v97
            v_fmac_f32 v93, v98, v98
            v_fmac_f32 v95, v99, v99
            """)
            for r in range(4, 16, 2):
                a.I(f"v_add_f32 v92, v92, v{96+r}\nv_add_f32 v94, v94, v{97+r}\nv_fmac_f32 v93, v{96+r}, v{96+r}\nv_fmac_f32 v95, v{97+r}, v{97+r}")
            a.I(f"""
            v_add_f32 v92, v92, v94
            v_add_f32 v93, v93, v95
            v_mov_b32 v94, v92
            v_mov_b32 v95, v93
            v_permlane32_swap_b32 v92, v94
            v_permlane32_swap_b32 v93, v95
            v_add_f32 v92, v92, v94
            v_add_f32 v93, v93, v95
            v_lshlrev_b32 v7, 7, v3
            s_lshl_b32 s44, s36, 12
            s_lshl_b32 s43, s35, 3
            s_add_u32 s44, s44, s43
            s_add_u32 s44, s44, {ST}
            buffer_store_dwordx2 v[92:93], v7, s[8:11], s44 offen{SC}
            s_lshl_b32 s43, s3, 11
            s_add_u32 s43, s43, 155648
            v_add_u32 v7, s43, v8
            ds_write_b128 v7, v[84:87]
            ds_write_b128 v7, v[88:91] offset:1024
            s_lshl_b32 s38, s36, 8
            s_add_u32 s38, s38, {CNT + 0x4000}
            """)
            signal(a, "s38")
        else:
            a.I("""
            v_permlane32_swap_b32 v84, v86
            v_permlane32_swap_b32 v85, v87
            v_permlane32_swap_b32 v88, v90
            v_permlane32_swap_b32 v89, v91
            v_lshlrev_b32 v6, 10, v3
            v_lshl_add_u32 v6, v4, 4, v6
            buffer_store_dwordx4 v[84:87], v6, s[16:19], s41 offen
            buffer_store_dwordx4 v[88:91], v6, s[16:19], s41 offen offset:32
            """)
        P.stamp()
    proj_compute(2)
    wg_map(a, "r2c4")
    a.I(f"""
    s_cmp_ge_u32 s34, 15
    s_cbranch_scc1 UT_GO
    s_lshl_b32 s36, s33, 2
    s_add_u32 s36, s36, s50
    v_and_b32 v3, 31, v2
    v_lshrrev_b32 v4, 5, v2
    v_mov_b32 v9, v8
    v_add_u32 v11, 49152, v9
    v_lshlrev_b32 v5, 4, v4
    v_add_u32 v5, 147456, v5
    v_lshlrev_b32 v6, 7, v3
    v_lshl_add_u32 v6, v4, 6, v6
    s_lshl_b32 s41, s36, 12
    s_add_u32 s41, s41, {ST}
    s_lshl_b32 s37, s36, 15
    s_add_u32 s37, s37, {YY}
    s_mul_i32 s44, s36, {86*1024}
    s_mul_i32 s43, s34, {6*1024}
    s_add_u32 s44, s44, s43
    s_add_u32 s44, s44, {HH}
    s_mov_b32 s45, {LOG2E}
    s_mov_b32 s46, 49152
    s_mov_b32 s47, 0
    s_mov_b32 s48, {-49152 & 0xffffffff}
    s_lshl_b32 s38, s36, 8
    s_add_u32 s38, s38, {CNT + 0x4000}
    """)
    AF3, BB, AC3 = 16, 112, 160
    for i in range(96): a.I(f"v_mov_b32 v{AC3+i}, 0")
    poll(a, "C_PL3", "s38", 16)
    P.stamp()
    for q in range(4):
        a.I(f"buffer_load_dwordx4 v[{144+4*q}:{147+4*q}], v6, s[8:11], s41 offen offset:{16*q}{SC}")
    def bload3(i):
        a.I(f"buffer_load_dwordx4 v[{BB+4*i}:{BB+4*i+3}], v8, s[8:11], s37 offen offset:{1024*(i%4)}{SC}")
        if i % 4 == 3: a.I("s_add_u32 s37, s37, 4096")
    for i in range(8): bload3(i)
    def fread3(i, lo, hi):
        ra = "v11" if i >= 8 else "v9"
        for f in range(lo, hi):
            a.I(f"ds_read_b128 v[{AF3+24*(i%4)+4*f}:{AF3+24*(i%4)+4*f+3}], {ra} offset:{(i%8)*6144 + 1024*f}")
    a.I("s_barrier")
    fread3(0, 0, 6); fread3(1, 0, 6)
    a.T("P3_LOOP:")
    for i in range(8):
        if i % 2 == 0: a.I("s_barrier")
        for hf in range(2):
            fread3(i+2, 3*hf, 3*hf+3)
            a.I("s_waitcnt vmcnt(7) lgkmcnt(12)" if hf == 0 else "s_waitcnt lgkmcnt(12)")
            for f in range(3*hf, 3*hf+3):
                a.I(f"v_mfma_f32_32x32x16_bf16 v[{AC3+16*f}:{AC3+16*f+15}], v[{AF3+24*(i%4)+4*f}:{AF3+24*(i%4)+4*f+3}], v[{BB+4*i}:{BB+4*i+3}], v[{AC3+16*f}:{AC3+16*f+15}]")
        bload3(i)
    a.I(f"""
    v_mov_b32 v9, v11
    s_add_u32 s46, s46, 49152
    s_cmp_eq_u32 s46, 147456
    s_cselect_b32 s49, 98304, s48
    s_cselect_b32 s46, 0, s46
    v_subrev_u32 v11, s49, v11
    s_add_u32 s47, s47, 1
    s_cmp_eq_u32 s47, 3
    s_cselect_b32 s37, 0x7ff00000, s37
    s_cmp_lt_u32 s47, 4
    s_cbranch_scc1 P3_LOOP
    s_waitcnt vmcnt(0) lgkmcnt(0)
    s_barrier
    """)
    P.stamp()
    a.reset()
    def ut_reads(p):
        for arr in range(4):
            for aa in range(4):
                r = 16 + arr*16 + 4*aa
                a.DS(f"ds_read_b128 v[{r}:{r+3}], v5 offset:{arr*384 + p*128 + aa*32}", f"u{p}_{arr//2}")
    ut_reads(0)
    for q in range(1, 8): a.I(f"v_add_f32 v144, v144, v{144+2*q}\nv_add_f32 v145, v145, v{145+2*q}")
    a.I("""
    v_mov_b32 v146, v144
    v_mov_b32 v147, v145
    v_permlane32_swap_b32 v144, v146
    v_permlane32_swap_b32 v145, v147
    v_add_f32 v144, v144, v146
    v_add_f32 v145, v145, v147
    v_mul_f32 v13, 0x3b000000, v144
    v_mul_f32 v12, 0x3b000000, v145
    v_fma_f32 v12, -v13, v13, v12
    v_max_f32 v12, 0, v12
    v_add_f32 v12, 0x3727c5ac, v12
    v_rsq_f32 v14, v12
    v_sub_f32 v15, 0, v13
    """)
    U = 16; TMP = 80
    for p in range(3):
        if p == 1: a.I("s_cmp_eq_u32 s34, 14\ns_cbranch_scc1 P3_FIN")
        for mm in range(2):
            a.WAIT(ds=f"u{p}_{mm}")
            A = AC3 + 32*p + 16*mm
            for r in range(16): a.I(f"v_fmac_f32 v{A+r}, v{U+32*mm+r}, v15")
            for r in range(16): a.I(f"v_fma_f32 v{A+r}, v{A+r}, v14, v{U+32*mm+16+r}")
        G = AC3 + 32*p
        if p < 2: ut_reads(p+1)
        for r in range(16): a.I(f"v_mul_f32 v{TMP+r}, s45, v{G+r}")
        for r in range(16): a.I(f"v_exp_f32 v{TMP+r}, -v{TMP+r}")
        for r in range(16): a.I(f"v_mul_f32 v{G+r}, v{G+r}, v{G+16+r}")
        for r in range(16): a.I(f"v_add_f32 v{TMP+r}, 1.0, v{TMP+r}")
        for r in range(16): a.I(f"v_rcp_f32 v{TMP+r}, v{TMP+r}")
        for r in range(16): a.I(f"v_mul_f32 v{G+r}, v{G+r}, v{TMP+r}")
        for d in range(8): a.I(f"v_cvt_pk_bf16_f32 v{96+8*p+d}, v{G+2*d}, v{G+2*d+1}")
        a.I(f"buffer_store_dwordx4 v[{96+8*p}:{99+8*p}], v8, s[8:11], s44 offen offset:{(p*2048)%4096}{SC}")
        a.I(f"buffer_store_dwordx4 v[{100+8*p}:{103+8*p}], v8, s[8:11], s44 offen offset:{(p*2048)%4096+1024}{SC}")
        if p == 1: a.I("s_add_u32 s44, s44, 4096")
    a.T("P3_FIN:")
    a.I(f"s_waitcnt lgkmcnt(0)\ns_lshl_b32 s38, s36, 8\ns_add_u32 s38, s38, {CNT + 0x8000}")
    signal(a, "s38")
    if PROF: a.I("s_branch C_P4X")
    a.T("C_P4:")
    if PROF:
        n = P.n; P.n = n - 2; P.stamp(); P.stamp()
        a.T("C_P4X:")
    P.stamp()
    proj_compute(4)
    P.flush()
    a.I("s_endpgm")
    a.T("KM_LOADER:"); a.reset()
    HB, HA = 100, 116
    a.I(f"""
    s_mul_i32 s39, s50, 3072
    s_mul_i32 s38, s34, 98304
    s_add_u32 s38, s38, {WQ}
    s_add_u32 s38, s38, s39
    s_mov_b32 s40, s39
    v_and_b32 v4, 15, v2
    v_lshrrev_b32 v5, 4, v2
    v_lshrrev_b32 v6, 1, v5
    v_and_b32 v7, 1, v5
    v_lshlrev_b32 v9, 10, v6
    v_lshl_add_u32 v9, v7, 9, v9
    v_lshl_add_u32 v9, v4, 4, v9
    v_add_u32 v9, 256, v9
    s_lshl_b32 s41, s33, 2
    s_sub_u32 s41, s41, 1
    s_max_i32 s41, s41, 0
    s_lshl_b32 s41, s41, 15
    s_lshl_b32 s43, s50, 11
    s_add_u32 s41, s41, s43
    s_add_u32 s41, s41, {XN}
    v_mul_u32_u24 v13, 3072, v6
    v_lshl_add_u32 v13, v7, 9, v13
    v_lshl_add_u32 v13, v4, 4, v13
    s_lshr_b32 s43, s50, 1
    s_add_u32 s43, s43, 1
    s_lshl_b32 s43, s43, 10
    s_and_b32 s44, s50, 1
    s_lshl_b32 s44, s44, 8
    s_add_u32 s43, s43, s44
    v_add_u32 v13, s43, v13
    v_add_u32 v14, 49152, v13
    v_lshlrev_b32 v12, 5, v5
    s_lshl_b32 s43, s50, 7
    v_add_u32 v12, s43, v12
    v_add_u32 v12, {TAB}, v12
    v_add_u32 v10, {HBL}, v8
    s_lshl_b32 s43, s50, 10
    v_add_u32 v11, s43, v10
    """)
    def issue1(g):
        a.I("s_mov_b32 m0, s40")
        for i in range(3): a.VM(f"buffer_load_dwordx4 v8, s[8:11], s38 offen offset:{1024*i} lds", f"w{g}")
        a.I("s_add_u32 s38, s38, 12288\ns_add_u32 s40, s40, 12288")
    issue1(0); issue1(1)
    for i in range(4):
        a.VM(f"buffer_load_dwordx4 v[{HB+4*i}:{HB+3+4*i}], v9, s[8:11], s41 offen", "h")
        a.I("s_add_u32 s41, s41, 8192")
    issue1(2); issue1(3)
    def halo(g):
        for i in range(2):
            a.DS(f"ds_read_b128 v[{64+8*i}:{67+8*i}], {'v13' if g < 4 else 'v14'} offset:{(g%4)*12288 + i*6144}", f"hh{g}")
            a.DS(f"ds_read_b128 v[{68+8*i}:{71+8*i}], v10 offset:{(2*g+i)*1024}", f"hh{g}")
        a.WAIT(ds=f"hh{g}")
        for i in range(2):
            cin = "0" if (g == 0 and i == 0) else f"v[{HA}:{HA+3}]"
            a.I(f"v_mfma_f32_16x16x32_bf16 v[{HA}:{HA+3}], v[{64+8*i}:{67+8*i}], v[{68+8*i}:{71+8*i}], {cin}")
    for g in range(8):
        a.WAIT(vm=f"w{g}", ds="hw"); a.I("s_barrier")
        if g + 4 < 8: issue1(g+4)
        if g == 3 and opt("touch", 1):
            a.I("s_lshl_b32 s43, s2, 2\ns_add_u32 s43, s43, s50\ns_lshl_b32 s43, s43, 11")
            for pp in (24, 26, 28):
                srd(a, 56, pp, 512*2752)
                a.VM("buffer_load_dwordx4 v[140:143], v8, s[56:59], s43 offen", "pp")
                a.VM("buffer_load_dwordx4 v[140:143], v8, s[56:59], s43 offen offset:1024", "pp")
        if g < 4:
            for q in range(4):
                a.DS(f"ds_read_b128 v[{32+4*q}:{35+4*q}], v12 offset:{(q//2)*2048 + g*512 + (q%2)*16}", f"ht{g}")
        if g > 0: halo(g-1)
        if g < 4:
            a.WAIT(vm="h", ds=f"ht{g}")
            for x in modulate(HB+4*g, 32): a.I(x)
            a.DS(f"ds_write_b128 v11, v[{HB+4*g}:{HB+4*g+3}] offset:{g*4096}", "hw")
    a.I("s_barrier")
    halo(7)
    a.I(f"""
    v_and_b32 v3, 15, v2
    v_lshrrev_b32 v4, 4, v2
    v_and_b32 v5, 1, v4
    v_lshrrev_b32 v6, 1, v4
    s_and_b32 s35, s3, 1
    s_nop 7
    v_cvt_pk_bf16_f32 v84, v{HA}, v{HA+1}
    v_cvt_pk_bf16_f32 v85, v{HA+2}, v{HA+3}
    s_cmp_ge_u32 s50, 2
    s_cbranch_scc1 L_HV
    s_mul_i32 s35, s35, {2*144*16}
    v_mul_u32_u24 v5, {144*16}, v5
    v_lshl_add_u32 v5, v3, 4, v5
    v_lshl_add_u32 v5, v6, 3, v5
    v_add_u32 v5, s35, v5
    v_add_u32 v5, {KT}, v5
    ds_write_b64 v5, v[84:85]
    s_branch L_HD
    """)
    a.T("L_HV:")
    a.I(f"""
    v_lshlrev_b32 v80, 16, v84
    v_and_b32 v81, 0xffff0000, v84
    v_lshlrev_b32 v82, 16, v85
    v_and_b32 v83, 0xffff0000, v85
    s_mul_i32 s35, s35, {4*144*16}
    v_lshl_add_u32 v5, v5, 1, v6
    v_mul_u32_u24 v5, {144*16}, v5
    v_lshl_add_u32 v5, v3, 4, v5
    v_add_u32 v5, s35, v5
    v_add_u32 v5, {VT}, v5
    ds_write_b128 v5, v[80:83]
    """)
    a.T("L_HD:")
    a.I("s_waitcnt lgkmcnt(0)\ns_barrier\ns_barrier")
    a.reset()
    a.I(f"""
    s_mov_b32 s55, 0x7ff00000
    s_cmp_ge_u32 s50, 2
    s_cbranch_scc1 RL_END
    s_mov_b32 s40, 0x05040100
    s_mov_b32 s41, 0x07060302
    s_lshl_b32 s52, s2, 1
    s_add_u32 s52, s52, s50
    s_lshl_b32 s45, s50, 15
    s_add_u32 s45, s45, 65536
    s_cmp_ge_u32 s52, 344
    s_cbranch_scc1 RL_W2
    s_and_b32 s44, s52, 3           ; kq
    s_bfe_u32 s53, s52, 0x10002     ; mat
    s_lshr_b32 s54, s52, 3          ; nb
    v_lshrrev_b32 v14, 3, v2
    v_bfe_u32 v4, v2, 2, 1
    v_and_b32 v5, 3, v2
    s_lshl_b32 s42, s44, 3
    v_add_u32 v13, s42, v14
    v_lshlrev_b32 v15, 4, v13
    v_lshl_add_u32 v15, v4, 2, v15
    s_mov_b32 s42, 2752
    v_mul_lo_u32 v7, v15, s42
    v_lshl_add_u32 v7, v5, 4, v7
    s_lshl_b32 s42, s54, 6
    s_cmp_eq_u32 s53, 1
    s_cselect_b32 s22, s26, s24
    s_cselect_b32 s23, s27, s25
    """)
    srd(a, 56, 22, 512*2752)
    for j in range(8):
        row = (j % 4) + 8*(j // 4)
        a.I(f"v_add_u32 v9, {row*2752}, v7\nbuffer_load_dwordx4 v[{64+4*j}:{67+4*j}], v9, s[56:59], s42 offen")
    a.I(f"""
    v_lshlrev_b32 v6, 10, v14
    v_lshl_add_u32 v6, v4, 9, v6
    v_lshl_add_u32 v6, v5, 7, v6
    v_add_u32 v6, s45, v6
    v_add_u32 v7, s45, v8
    s_mul_i32 s43, s54, 43691
    s_lshr_b32 s43, s43, 17
    s_mul_i32 s39, s43, 3
    s_sub_u32 s39, s54, s39
    s_lshl_b32 s39, s39, 1
    s_add_u32 s39, s39, s53
    s_lshl_b32 s39, s39, 10
    s_mul_i32 s38, s43, 196608
    s_add_u32 s38, s38, s39
    s_mul_i32 s39, s44, {8*6144}
    s_add_u32 s38, s38, s39
    s_add_u32 s38, s38, {W13}
    s_waitcnt vmcnt(0)
    """)
    transpose8x8(a, 64, 96, 40, 41)
    for i in range(8): a.I(f"ds_write_b128 v6, v[{96+4*i}:{99+4*i}] offset:{16*i}")
    a.I("s_waitcnt lgkmcnt(0)")
    for f in range(8): a.I(f"ds_read_b128 v[{96+4*f}:{99+4*f}], v7 offset:{1024*f}")
    a.I("s_waitcnt lgkmcnt(0)")
    for f in range(8):
        a.I(f"buffer_store_dwordx4 v[{96+4*f}:{99+4*f}], v8, s[8:11], s38 offen{SC}\ns_add_u32 s38, s38, 6144")
    a.I(f"s_lshl_b32 s55, s43, 8\ns_add_u32 s55, s55, {CNTW}\ns_branch RL_END")
    a.T("RL_W2:")
    srd(a, 56, 28, 1376*1024)
    a.I("s_sub_u32 s53, s52, 344")
    a.T("RL_W2L:")
    chained_addr(a, 53, 64)
    for j in range(8):
        a.I(f"buffer_load_dwordx4 v[{64+4*j}:{67+4*j}], v{5 if j < 4 else 9}, s[56:59], s36 offen offset:{1024*(j%4)}")
    chained_store(a, 64, 96, W2, 88064, 21, stg="s45", sc=SC)
    a.I(f"s_lshl_b32 s55, s35, 8\ns_add_u32 s55, s55, {CNT2}")
    a.I("s_cmp_ge_u32 s53, 8\ns_cbranch_scc1 RL_END")
    signal(a, "s55")
    a.I("s_add_u32 s53, s53, 168\ns_branch RL_W2L")
    a.T("RL_END:")
    wg_map(a, "sq")
    a.I(f"""
    s_and_b32 s51, s3, 1
    s_cmp_ge_u32 s50, 2
    s_cbranch_scc1 L2_A
    s_lshl_b32 s36, s33, 1
    s_add_u32 s36, s36, s51
    s_lshl_b32 s38, s36, 15
    s_add_u32 s38, s38, {OO}
    s_lshl_b32 s40, s51, 15
    s_add_u32 s40, s40, 65536
    s_lshl_b32 s43, s36, 8
    s_add_u32 s43, s43, {CNT}
    """)
    signal(a, "s55")
    poll(a, "L_PL2", "s43", 16)
    def stream(n4, sc, tag):
        for q in range(n4):
            a.I("s_mov_b32 m0, s40")
            for i in range(4): a.VM(f"buffer_load_dwordx4 v8, s[8:11], s38 offen offset:{1024*i}{sc} lds", f"{tag}{q//2}")
            a.I("s_add_u32 s38, s38, 4096\ns_add_u32 s40, s40, 4096")
    stream(8, SC, "c")
    for g in range(4):
        a.WAIT(vm=f"c{g}"); a.I("s_barrier")
    a.I("s_branch L2_E")
    a.T("L2_A:"); a.reset()
    a.I(f"""
    s_lshl_b32 s38, s34, 1
    s_add_u32 s38, s38, s51
    s_lshl_b32 s38, s38, 15
    s_add_u32 s38, s38, {WO}
    s_lshl_b32 s40, s51, 15
    """)
    stream(8, "", "c")
    a.I("s_waitcnt vmcnt(0)\ns_barrier\ns_barrier\ns_barrier\ns_barrier")
    a.T("L2_E:")
    a.I("s_barrier")
    a.reset()
    wg_map(a, "r2c4")
    a.I(f"""
    s_cmp_ge_u32 s34, 15
    s_cbranch_scc1 UT_GO
    s_mul_i32 s38, s34, 196608
    s_add_u32 s38, s38, {W13}
    s_mul_i32 s39, s50, 3072
    s_add_u32 s38, s38, s39
    s_mov_b32 s40, s39
    s_mul_i32 s42, s34, 384
    s_add_u32 s42, s42, {UT}
    s_lshl_b32 s45, s34, 8
    s_add_u32 s45, s45, {CNTU}
    s_cmp_eq_u32 s34, 14
    s_cselect_b32 s46, 2, 6
    """)
    NS3 = 12
    def issue3(g):
        if g % NS3 == 0 and g: a.I("s_mov_b32 s40, s39")
        a.I("s_mov_b32 m0, s40")
        for i in range(3): a.VM(f"buffer_load_dwordx4 v8, s[8:11], s38 offen offset:{1024*i}{SC} lds", f"w{g}")
        a.I("s_add_u32 s38, s38, 12288\ns_add_u32 s40, s40, 12288")
    a.I(f"s_lshl_b32 s43, s34, 8\ns_add_u32 s43, s43, {CNTW}\ns_lshl_b32 s44, s46, 2")
    poll(a, "L_PLW", "s43", "s44")
    for g in range(NS3): issue3(g)
    nxt = NS3
    for g in range(16):
        a.WAIT(vm=f"w{g}"); a.I("s_barrier")
        if nxt < 16 and nxt - NS3 <= g - 2:
            issue3(nxt); nxt += 1
        if g == opt("gu", 13):
            q = list(a.vmq)
            a.I("s_cmp_lg_u32 s50, 0\ns_cbranch_scc1 L_NOU")
            poll(a, "L_PLU", "s45", "s46")
            a.I("s_mov_b64 exec, 0xffffff")
            for arr in range(4):
                a.I(f"s_mov_b32 m0, {147456 + arr*384}\ns_add_u32 s43, s42, {arr*1408*4}\nbuffer_load_dwordx4 v8, s[8:11], s43 offen{SC} lds")
            a.I("s_mov_b64 exec, -1")
            a.T("L_NOU:")
            a.vmq = q
    assert nxt == 16
    a.I("s_barrier")
    a.I("s_waitcnt vmcnt(0)\ns_barrier")
    a.T("L_P4:"); a.reset()
    wg_map(a, "sq")
    a.I(f"""
    s_and_b32 s51, s3, 1
    s_lshl_b32 s36, s33, 1
    s_add_u32 s36, s36, s51
    s_mul_i32 s37, s36, {86*1024}
    s_add_u32 s37, s37, {HH}
    s_lshl_b32 s38, s34, 1
    s_add_u32 s38, s38, s51
    s_mul_i32 s38, s38, {86*1024}
    s_add_u32 s38, s38, {W2}
    s_lshl_b32 s39, s50, 13
    s_mov_b32 s40, s39
    s_lshl_b32 s43, s34, 8
    s_add_u32 s43, s43, {CNT2}
    s_mov_b32 s44, 22
    s_cmp_ge_u32 s50, 2
    s_cbranch_scc1 L4_PL
    s_mov_b32 s38, s37
    s_lshl_b32 s43, s36, 8
    s_add_u32 s43, s43, {CNT + 0x8000}
    s_mov_b32 s44, 15
    """)
    a.T("L4_PL:")
    poll(a, "L_PL4", "s43", "s44")
    a.T("L4_GO:")
    def issue4(g):
        if g % 4 == 0 and g: a.I("s_mov_b32 s40, s39")
        for hf in range(2):
            n = min(4, 86 - 8*g - 4*hf)
            if n <= 0: continue
            a.I(f"s_add_u32 m0, s40, {4096*hf}")
            for i in range(n): a.VM(f"buffer_load_dwordx4 v8, s[8:11], s38 offen offset:{1024*i}{SC} lds", f"w{g}")
            a.I("s_add_u32 s38, s38, 4096")
        a.I("s_add_u32 s40, s40, 32768")
    for g in range(4): issue4(g)
    nxt = 4
    for g in range(11):
        a.WAIT(vm=f"w{g}"); a.I("s_barrier")
        if nxt < 11 and nxt - 4 <= g - 2:
            issue4(nxt); nxt += 1
    assert nxt == 11
    a.I("s_endpgm")
    a.T("UT_GO:"); a.reset()
    gen_ut()
    a.I("s_cmp_ge_u32 s3, 4\ns_cbranch_scc1 L_P4\ns_branch C_P4")
    a.T("KM_END:")
    a.I("s_endpgm")

def main():
    a = Asm()
    gen_k0(a); gen_main(a)
    head = """; generated by work/gen27.py
; @launch kernel=k0_kernel grid=(320,1,1) block=(256,1,1) lds=32768
; @launch kernel=km_kernel grid=(256,1,1) block=(512,1,1) lds=163840
.amdgcn_target "amdgcn-amd-amdhsa--gfx950"
.text
"""
    tail = '.section .rodata,"a"\n' + desc("k0_kernel", 128) + desc("km_kernel", 256)
    out = head + a.render() + tail
    args = [x for x in sys.argv[1:] if not x.startswith("-")]
    path = args[0] if args else f"cdna_kernels/{NAME}.s"
    open(path, "w").write(out)
    print("wrote", path, len(out))
main()
```
